```python
import torch

def _softmax(x, axis=-1):
    return torch.softmax(x, dim=axis)

def _gelu(x):
    return torch.nn.functional.gelu(x, approximate='tanh')

def _silu(x):
    return torch.nn.functional.silu(x)

def _sigmoid(x):
    return torch.sigmoid(x)

def _layernorm(x, axis=-1, eps=1e-05):
    m = x.mean(dim=axis, keepdim=True)
    v = x.var(dim=axis, keepdim=True, unbiased=False)
    return (x - m) / torch.sqrt(v + eps)

def _scatter_add(tgt, idx, src, axis=0):
    return tgt.clone().index_add_(axis, idx, src)

def _segment_sum(src, seg, n):
    out = torch.zeros((n,) + src.shape[1:], dtype=src.dtype)
    return out.index_add_(0, seg, src)

def _pad(x, pw):
    flat = tuple((v for pair in reversed(pw) for v in pair))
    return torch.nn.functional.pad(x, flat)
kernel_name = 'gather_scatter__tensor_product_equiv_equiformer__graph'

def setup_inputs():

    _w = lambda a: (lambda t: t.to(torch.bfloat16) if t.is_floating_point() else t)(torch.as_tensor(a))
    N, deg, C, De = (25000, 32, 64, max(0, 1))
    E = N * deg
    src = (lambda lo, hi, *s: torch.randint(lo, hi, s))(0, N, E).to(torch.int64)
    dst = (lambda lo, hi, *s: torch.randint(lo, hi, s))(0, N, E).to(torch.int64)
    rvec = (lambda *s: torch.randn(*s, dtype=torch.bfloat16) * 0.05)(E, 3).to(float)
    rn = (torch.linalg.norm(rvec, dim=-1, keepdim=True) + 1e-06).to(float)
    rhat = (rvec / rn).to(float)
    eps = torch.zeros((3, 3, 3), dtype=float)
    eps[0, 1, 2] = eps[1, 2, 0] = eps[2, 0, 1] = 1.0
    eps[0, 2, 1] = eps[2, 1, 0] = eps[1, 0, 2] = -1.0
    return {'x': _w((lambda *s: torch.randn(*s, dtype=torch.bfloat16) * 0.4)(N, 4 * C).to(float)), 'rhat': _w(rhat), 'e_attr': _w((lambda *s: torch.randn(*s, dtype=torch.bfloat16) * 0.4)(E, De).to(float)), 'src': _w(src), 'dst': _w(dst), 'w_rad': _w((lambda *s: torch.randn(*s, dtype=torch.bfloat16) * 0.4)(De, 5 * C).to(float)), 'w_si0': _w((lambda *s: torch.randn(*s, dtype=torch.bfloat16) * 0.4)(2 * C, C).to(float)), 'w_si1': _w((lambda *s: torch.randn(*s, dtype=torch.bfloat16) * 0.05)(3 * C, C).to(float)), 'cg_eps': _w(eps)}

def reference(x, rhat, e_attr, src, dst, w_rad, w_si0, w_si1, cg_eps):
    N = x.shape[0]
    C = w_si0.shape[1]
    E = rhat.shape[0]
    x0 = x[:, :C].clone()
    x1 = x[:, C:].reshape(N, 3, C)
    R = (e_attr @ w_rad).reshape(E, 5, C)
    f0 = x0[src]
    f1 = x1[src]
    Y1 = rhat
    p00_0 = f0 * R[:, 0, :]
    p11_0 = torch.einsum('ejc,ej->ec', f1, Y1) * R[:, 1, :]
    p01_1 = torch.einsum('ec,ej->ejc', f0, Y1) * R[:, 2, :][:, None, :]
    p10_1 = f1 * R[:, 3, :][:, None, :]
    p11_1 = torch.einsum('ijk,ekc,ej->eic', cg_eps, f1, Y1) * R[:, 4, :][:, None, :]
    m0 = torch.concatenate([p00_0, p11_0], axis=-1) @ w_si0
    m1 = torch.einsum('ejp,pc->ejc', torch.concatenate([p01_1, p10_1, p11_1], axis=-1), w_si1)
    agg0 = _segment_sum(m0, dst, N)
    agg1 = _segment_sum(m1.reshape(E, 3 * C), dst, N).reshape(N, 3, C)
    gate = _sigmoid(agg0)
    out1 = agg1 * gate[:, None, :]
    return torch.concatenate([agg0, out1.reshape(N, 3 * C)], axis=-1)
```

```python
import sys

NAME = "gather_scatter__tensor_product_equiv_equiformer__graph"
N = 25000
E = 800000
XBYTES = N * 512
NCH = 250
CH = 3200
RECB = 12
CHB = CH * RECB
REC_TOTAL = NCH * CHB
TABOFF = REC_TOTAL
WFOFF = TABOFF + 256 * 1024
WS_USED = WFOFF + 6 * 8192

class Opt:
    nph = 3
    k1_prefetch = True
    k2_prefetch = 0
    stamps = False
    guard = False

class Asm:
    def __init__(self):
        self.L = []
    def __call__(self, s):
        for line in s.strip().split("\n"):
            line = line.strip()
            if line:
                self.L.append(line)
    def label(self, s):
        self.L.append(s + ":")
    def text(self):
        out = []
        for l in self.L:
            out.append(l if l.endswith(":") else "    " + l)
        return "\n".join(out)

def vr(a, n):
    return f"v[{a}:{a+n-1}]" if n > 1 else f"v{a}"
def ar(a, n):
    return f"a[{a}:{a+n-1}]" if n > 1 else f"a{a}"
def sr(a, n):
    return f"s[{a}:{a+n-1}]" if n > 1 else f"s{a}"

def srd(A, s, lo, hi, size):
    A(f"s_mov_b32 s{s}, s{lo}")
    A(f"s_mov_b32 s{s+1}, s{hi}")
    A(f"s_mov_b32 s{s+2}, {size}")
    A(f"s_mov_b32 s{s+3}, 0x20000")

def guard(A, o, tag):
    if o.guard:
        A("s_load_dword s3, s[0:1], 96")
        A("s_waitcnt lgkmcnt(0)")
        A("s_cmp_eq_u32 s3, 0x5eed1234")
        A(f"s_cbranch_scc0 L_{tag}_end")

def dpp_scan(A, v):
    for ctl in ("row_shr:1", "row_shr:2", "row_shr:4", "row_shr:8"):
        A(f"v_add_u32_dpp v{v}, v{v}, v{v} {ctl} row_mask:0xf bank_mask:0xf")
        A("s_nop 1")
    A(f"v_add_u32_dpp v{v}, v{v}, v{v} row_bcast:15 row_mask:0xa bank_mask:0xf")
    A("s_nop 1")
    A(f"v_add_u32_dpp v{v}, v{v}, v{v} row_bcast:31 row_mask:0xc bank_mask:0xf")

STAMP_OFF = 16 << 20
def stamp(A, o, idx, base=86):
    if o.stamps:
        A(f"s_memrealtime s[{base+2*idx}:{base+2*idx+1}]")
        A("s_waitcnt lgkmcnt(0)")
def stamp_out(A, o, n, base, lo, hi, srd0, slot_sgpr, region):
    if o.stamps:
        A("s_mov_b64 exec, 1")
        A(f"s_add_u32 s{srd0}, s{lo}, {STAMP_OFF+region}")
        A(f"s_addc_u32 s{srd0+1}, s{hi}, 0")
        A(f"s_mov_b32 s{srd0+2}, {1<<18}")
        A(f"s_mov_b32 s{srd0+3}, 0x20000")
        A(f"s_lshl_b32 s{slot_sgpr}, s{slot_sgpr}, 5")
        A("v_mov_b32 v1, 0")
        for i in range(n):
            A(f"v_mov_b32 v2, s{base+2*i}")
            A(f"buffer_store_dword v2, v1, s[{srd0}:{srd0+3}], s{slot_sgpr} offen offset:{4*i}")

K1_HIST, K1_BASE, K1_STG = 0, 1024, 2048
K1_LDS = K1_STG + CH * 16
K1_BLOCK = 832

def k1(o):
    A = Asm()
    guard(A, o, "k1")
    A("s_cmp_ge_u32 s2, 256")
    A("s_cbranch_scc1 L_k1_end")
    stamp(A, o, 0, 72)
    A("s_load_dwordx4 s[4:7], s[0:1], 0")
    A("s_load_dwordx4 s[8:11], s[0:1], 16")
    A("s_load_dwordx4 s[12:15], s[0:1], 32")
    A("s_load_dwordx4 s[16:19], s[0:1], 48")
    A("s_load_dwordx2 s[20:21], s[0:1], 88")
    A("s_and_b32 s22, s2, 7")
    A("s_lshl_b32 s22, s22, 5")
    A("s_lshr_b32 s23, s2, 3")
    A("s_add_u32 s22, s22, s23")
    A("v_lshlrev_b32 v1, 4, v0")
    A("v_mul_u32_u24 v2, 24, v0")
    A("v_lshlrev_b32 v3, 3, v0")
    A("s_lshl_b32 s60, s22, 2")
    A(f"s_add_u32 s60, s60, {TABOFF}")
    A("s_cmp_ge_u32 s22, 250")
    A("s_cbranch_scc1 L_k1_wprep")
    A(f"s_mul_i32 s56, s22, {CH*4}")
    A(f"s_mul_i32 s57, s22, {CH*6}")
    A(f"s_mul_i32 s58, s22, {CH*2}")
    A(f"s_mul_i32 s59, s22, {400*128}")
    A("v_cmp_gt_u32 vcc, 800, v0")
    A("s_and_b64 exec, exec, vcc")
    A("v_mov_b32 v44, 0")
    A("v_mov_b32 v45, 0")
    A("v_mov_b32 v46, 0")
    A("v_mov_b32 v47, 0")
    A("s_waitcnt lgkmcnt(0)")
    srd(A, 24, 12, 13, E * 4)
    srd(A, 28, 10, 11, E * 4)
    srd(A, 32, 6, 7, E * 6)
    srd(A, 36, 8, 9, E * 2)
    A("buffer_load_dwordx4 v[4:7], v1, s[24:27], s56 offen")
    A("buffer_load_dwordx4 v[8:11], v1, s[28:31], s56 offen")
    A("buffer_load_dwordx4 v[12:15], v2, s[32:35], s57 offen")
    A("buffer_load_dwordx2 v[16:17], v2, s[32:35], s57 offen offset:16")
    A("buffer_load_dwordx2 v[18:19], v3, s[36:39], s58 offen")
    npf = 0
    if o.k1_prefetch:
        srd(A, 40, 4, 5, XBYTES)
        A("v_lshlrev_b32 v48, 6, v0")
        A("buffer_load_dword v49, v48, s[40:43], s59 offen")
        npf = 1
    srd(A, 44, 20, 21, WS_USED)
    A("v_readfirstlane_b32 s61, v0")
    A("s_cmp_lt_u32 s61, 64")
    A("s_cbranch_scc0 L_k1_nz")
    A(f"ds_write_b128 v1, v[44:47] offset:{K1_HIST}")
    A("s_waitcnt lgkmcnt(0)")
    A.label("L_k1_nz")
    A("s_mov_b32 s62, 43980466")
    A("s_mov_b32 s63, 3125")
    A("s_mov_b32 s64, 0xe0000000")
    A("v_mov_b32 v50, 1")
    A("s_barrier")
    A(f"s_waitcnt vmcnt({4+npf})")
    stamp(A, o, 1, 72)
    for i in range(4):
        A(f"v_mul_hi_u32 v{52+i}, v{4+i}, s62")
    for i in range(4):
        A(f"v_lshlrev_b32 v{20+i}, 2, v{52+i}")
        A(f"ds_add_rtn_u32 v{24+i}, v{20+i}, v50 offset:{K1_HIST}")
    for i in range(4):
        A(f"v_mad_u32_u24 v{52+i}, v{52+i}, s63, 31")
    for i in range(4):
        A(f"v_lshrrev_b32 v{52+i}, 5, v{52+i}")
    for i in range(4):
        A(f"v_sub_u32 v{52+i}, v{4+i}, v{52+i}")
    A(f"s_waitcnt vmcnt({3+npf})")
    R = [28, 32, 36, 40]
    for i in range(4):
        A(f"v_mul_u32_u24 v{56+i}, 0x29f00, v{8+i}")
        A(f"v_lshl_or_b32 v{52+i}, v{52+i}, 19, v{8+i}")
        A(f"v_and_or_b32 v{R[i]+2}, v{56+i}, s64, v{52+i}")
    A(f"s_waitcnt vmcnt({npf})")
    src = [((18, 0), (12, 0), (12, 1), (13, 0)),
           ((18, 1), (13, 1), (14, 0), (14, 1)),
           ((19, 0), (15, 0), (15, 1), (16, 0)),
           ((19, 1), (16, 1), (17, 0), (17, 1))]
    for i in range(4):
        for k, (r, h) in enumerate(src[i]):
            if h == 0:
                A(f"v_lshlrev_b32 v{52+k}, 16, v{r}")
            else:
                A(f"v_and_b32 v{52+k}, 0xffff0000, v{r}")
        for k in range(1, 4):
            A(f"v_mul_f32 v{52+k}, v52, v{52+k}")
        A(f"v_cvt_pk_bf16_f32 v{R[i]}, v52, v53")
        A(f"v_cvt_pk_bf16_f32 v{R[i]+1}, v54, v55")
    A("s_waitcnt lgkmcnt(0)")
    stamp(A, o, 2, 72)
    A("s_barrier")
    A("s_cmp_lt_u32 s61, 64")
    A("s_cbranch_scc0 L_k1_ns")
    A(f"ds_read_b128 v[52:55], v1 offset:{K1_HIST}")
    A("v_lshlrev_b32 v60, 12, v0")
    A("s_waitcnt lgkmcnt(0)")
    A("v_add_u32 v56, v52, v53")
    A("v_add_u32 v57, v56, v54")
    A("v_add_u32 v58, v57, v55")
    A("v_mov_b32 v59, v58")
    A("s_nop 1")
    dpp_scan(A, 59)
    A("v_sub_u32 v44, v59, v58")
    A("v_add_u32 v45, v44, v52")
    A("v_add_u32 v46, v44, v56")
    A("v_add_u32 v47, v44, v57")
    A(f"ds_write_b128 v1, v[44:47] offset:{K1_BASE}")
    for i in range(4):
        A(f"v_lshl_or_b32 v{52+i}, v{52+i}, 16, v{44+i}")
        A(f"buffer_store_dword v{52+i}, v60, s[44:47], s60 offen offset:{1024*i}")
    A("s_waitcnt lgkmcnt(0)")
    A.label("L_k1_ns")
    A("s_barrier")
    stamp(A, o, 3, 72)
    for i in range(4):
        A(f"ds_read_b32 v{56+i}, v{20+i} offset:{K1_BASE}")
    A(f"s_mul_i32 s56, s22, {CHB}")
    A("s_add_u32 s57, s56, 9600")
    A("s_add_u32 s58, s56, 19200")
    A("s_add_u32 s59, s56, 28800")
    A("v_mul_u32_u24 v2, 12, v0")
    for i in range(4):
        A(f"s_waitcnt lgkmcnt(3)")
        A(f"v_add_lshl_u32 v{56+i}, v{56+i}, v{24+i}, 4")
        A(f"ds_write_b96 v{56+i}, {vr(R[i],3)} offset:{K1_STG}")
    A("s_waitcnt lgkmcnt(0)")
    A("s_barrier")
    stamp(A, o, 4, 72)
    for i in range(4):
        A(f"ds_read_b96 {vr(4+4*i,3)}, v1 offset:{K1_STG+12800*i}")
    for i in range(4):
        A(f"s_waitcnt lgkmcnt({3-i})")
        A(f"buffer_store_dwordx3 {vr(4+4*i,3)}, v2, s[44:47], s{56+i} offen")
    if o.stamps:
        stamp(A, o, 5, 72)
        A("s_waitcnt vmcnt(0)")
        stamp(A, o, 6, 72)
        A("s_lshr_b32 s61, s61, 6")
        A("s_lshl_b32 s62, s2, 4")
        A("s_add_u32 s61, s61, s62")
        stamp_out(A, o, 7, 72, 20, 21, 24, 61, 0)
    A("s_endpgm")

    A.label("L_k1_wprep")
    A("v_cmp_gt_u32 vcc, 512, v0")
    A("s_and_b64 exec, exec, vcc")
    A("s_cbranch_execz L_k1_end")
    A("s_sub_u32 s23, s22, 250")
    A("s_min_u32 s24, s23, 4")
    A("s_lshl_b32 s24, s24, 7")
    A("s_and_b32 s25, s23, 1")
    A("s_lshl_b32 s25, s25, 13")
    A("s_cmp_ge_u32 s23, 4")
    A("s_cselect_b32 s25, 16384, s25")
    A("s_cmp_eq_u32 s23, 5")
    A("s_cselect_b32 s26, 0x80000000, 0")
    A("s_lshl_b32 s27, s23, 13")
    A(f"s_add_u32 s27, s27, {WFOFF}")
    A("v_lshrrev_b32 v4, 6, v0")
    A("v_and_b32 v5, 63, v0")
    A("v_and_b32 v6, 31, v5")
    A("v_lshrrev_b32 v7, 5, v5")
    A("v_and_b32 v8, 1, v4")
    A("v_lshl_add_u32 v6, v6, 1, v8")
    A("v_bfe_u32 v8, v4, 1, 1")
    A("v_lshl_add_u32 v7, v8, 1, v7")
    A("v_lshrrev_b32 v8, 2, v4")
    A("v_lshlrev_b32 v8, 2, v8")
    A("v_lshl_add_u32 v7, v7, 4, v8")
    A("v_lshlrev_b32 v9, 1, v7")
    A("v_lshlrev_b32 v10, 6, v7")
    A("v_add_lshl_u32 v10, v10, v6, 1")
    A("v_mov_b32 v11, 0")
    A("v_lshlrev_b32 v30, 10, v0")
    A("s_waitcnt lgkmcnt(0)")
    srd(A, 44, 20, 21, WS_USED)
    srd(A, 32, 14, 15, 640)
    srd(A, 36, 16, 17, 128 * 128)
    srd(A, 40, 18, 19, 192 * 128)
    A("buffer_load_dwordx2 v[12:13], v9, s[32:35], s24 offen")
    A("buffer_load_dwordx2 v[14:15], v9, s[32:35], s24 offen offset:16")
    A("s_cmp_ge_u32 s23, 2")
    A("s_cbranch_scc1 L_k1_w1")
    for ii in range(8):
        A(f"buffer_load_ushort v{16+ii}, v10, s[36:39], s25 offen offset:{((ii>>2)*8+(ii&3))*128}")
    A("s_branch L_k1_w2")
    A.label("L_k1_w1")
    for ii in range(8):
        A(f"buffer_load_ushort v{16+ii}, v10, s[40:43], s25 offen offset:{((ii>>2)*8+(ii&3))*128}")
    A.label("L_k1_w2")
    A("v_cmp_gt_u32 vcc, 256, v0")
    A("s_and_saveexec_b64 s[28:29], vcc")
    A("s_cbranch_execz L_k1_w3")
    A("buffer_store_dword v11, v30, s[44:47], s60 offen")
    A.label("L_k1_w3")
    A("s_mov_b64 exec, s[28:29]")
    A("s_waitcnt vmcnt(0)")
    for ii in range(8):
        r = 12 + (ii >> 1)
        if ii & 1:
            A(f"v_and_b32 v24, 0xffff0000, v{r}")
        else:
            A(f"v_lshlrev_b32 v24, 16, v{r}")
        A(f"v_lshlrev_b32 v{16+ii}, 16, v{16+ii}")
        A(f"v_mul_f32 v{16+ii}, v24, v{16+ii}")
        A(f"v_xor_b32 v{16+ii}, s26, v{16+ii}")
    for k in range(4):
        A(f"v_cvt_pk_bf16_f32 v{24+k}, v{16+2*k}, v{17+2*k}")
    A("buffer_store_dwordx4 v[24:27], v1, s[44:47], s27 offen")
    A.label("L_k1_end")
    A("s_endpgm")
    return A, 64, (96 if o.stamps else 72)

L_NI, L_CNT, L_RG, L_FLAG = 0, 2048, 2304, 2432
L_NODE, L_OV, L_DUM, L_STR = 2560, 3072, 3840, 3968
STRB = 848
L_WF = 8192
L_TBL = L_WF + 6 * 8192
WREG = 26000
GCAP = 40
K2_LDS = L_TBL + 4 * WREG
NSLOT = 22
OVCAP = 24
BIG = 0x7ffffff0

S_X, S_WS, S_OUT = 4, 8, 12
S_W, S_BIN, S_NST, S_NN, S_WB, S_512, S_S, S_SEND = 16, 17, 18, 19, 20, 21, 22, 23
S_MASK = 24
S_VAL = 34
S_T0, S_T1, S_T2, S_T3 = 78, 79, 80, 81
S_MODE, S_B, S_NB, S_TAB = 82, 83, 84, 85
V_LANE, V_LOFF, V_HOFF, V_SP, V_Q, V_TP = 0, 1, 2, 3, 4, 5
V_SEL, V_A, V_C = 8, 12, 16
V_AD = 26
V_P = 28
V_S = 32
V_RING = 52

def acc(m):
    return ar(16 * m, 16) if m < 16 else vr(112 + 16 * (m - 16), 16)

def rec(u):
    return 44 if u == 0 else 112 + 6 * (u - 1)
def ent(u):
    return 240 + u
V_I = 6
V_LB = 7
V_PF = 31
V_TID = 35
V_EL = 39
V_MAX = 43
V_T = 50
V_E0 = V_T + 22

def k2(o):
    nph = o.nph
    ring = 112 - 20 * nph
    vS = V_S
    assert vS + 4 * nph <= ring
    A = Asm()
    guard(A, o, "k2")
    A("s_cmp_ge_u32 s2, 256")
    A("s_cbranch_scc1 L_k2_end")
    stamp(A, o, 0)
    A("s_load_dwordx2 s[4:5], s[0:1], 0")
    A("s_load_dwordx2 s[8:9], s[0:1], 88")
    A("s_load_dwordx2 s[12:13], s[0:1], 72")
    A(f"v_mov_b32 v{V_TID}, v0")
    A("v_lshrrev_b32 v1, 6, v0")
    A("v_and_b32 v0, 63, v0")
    A(f"v_readfirstlane_b32 s{S_W}, v1")
    A(f"s_and_b32 s{S_BIN}, s2, 7")
    A(f"s_lshl_b32 s{S_BIN}, s{S_BIN}, 5")
    A(f"s_lshr_b32 s{S_T0}, s2, 3")
    A(f"s_add_u32 s{S_BIN}, s{S_BIN}, s{S_T0}")
    A(f"s_mul_i32 s{S_NST}, s{S_BIN}, 3125")
    A(f"s_add_u32 s{S_NN}, s{S_NST}, {3125+31}")
    A(f"s_add_u32 s{S_NST}, s{S_NST}, 31")
    A(f"s_lshr_b32 s{S_NST}, s{S_NST}, 5")
    A(f"s_lshr_b32 s{S_NN}, s{S_NN}, 5")
    A(f"s_sub_u32 s{S_NN}, s{S_NN}, s{S_NST}")
    A(f"s_mul_i32 s{S_WB}, s{S_W}, {WREG}")
    A(f"s_add_u32 s{S_WB}, s{S_WB}, {L_TBL}")
    A(f"s_lshl_b32 s{S_TAB}, s{S_BIN}, 10")
    A(f"s_add_u32 s{S_TAB}, s{S_TAB}, {TABOFF}")
    A(f"s_mov_b32 s{S_512}, 512")
    A(f"s_mov_b32 s{S_MODE}, 0")
    A(f"s_mov_b32 s{S_B}, 0")
    A(f"s_mov_b32 s{S_NB}, 0")
    A(f"s_mov_b32 s6, {XBYTES}")
    A("s_mov_b32 s7, 0x20000")
    A(f"s_mov_b32 s10, {WS_USED}")
    A("s_mov_b32 s11, 0x20000")
    A(f"s_mov_b32 s14, {XBYTES}")
    A("s_mov_b32 s15, 0x20000")
    A(f"v_and_b32 v{V_I}, 15, v0")
    T = V_T
    A(f"v_lshrrev_b32 v{T}, 4, v{V_TID}")
    A(f"v_lshlrev_b32 v{T+1}, 6, v{T}")
    A(f"v_lshlrev_b32 v{T+2}, 2, v{V_TID}")
    A(f"s_mov_b32 s{S_T0}, {16*CHB}")
    A(f"v_mul_lo_u32 v{V_LB}, v{T}, s{S_T0}")
    A(f"v_mad_u32_u24 v{V_LB}, v{V_I}, 12, v{V_LB}")
    A("s_waitcnt lgkmcnt(0)")
    for k in range(4):
        A(f"buffer_load_dwordx4 {vr(ent(4*k),4)}, v{T+1}, s[8:11], s{S_TAB} offen offset:{16*k}")
    A(f"buffer_load_dword v{V_EL}, v{T+2}, s[8:11], s{S_TAB} offen")
    A(f"v_and_b32 v{V_LOFF}, 31, v0")
    A(f"v_lshrrev_b32 v{V_HOFF}, 5, v0")
    A(f"v_lshrrev_b32 v{T}, 3, v{V_LOFF}")
    A(f"v_mul_u32_u24 v{T}, 0x202, v{T}")
    A(f"v_add_u32 v{T}, 0x100, v{T}")
    A(f"v_or_b32 v{T+1}, 0x0c0c0000, v{T}")
    A(f"v_lshlrev_b32 v{T}, 16, v{T}")
    A(f"v_or_b32 v{T}, 0x0c0c, v{T}")
    A(f"v_and_b32 v{T+2}, 1, v0")
    A(f"v_cmp_eq_u32 vcc, 1, v{T+2}")
    A(f"v_bfe_u32 v{T+2}, v0, 1, 2")
    A(f"v_mov_b32 v{T+3}, 0x0c0c0c0c")
    A(f"v_cndmask_b32 v{T}, v{T+1}, v{T}, vcc")
    for r in range(4):
        A(f"v_cmp_eq_u32 vcc, {r}, v{T+2}")
        A(f"v_mov_b32 v{V_A+r}, 0")
        A("s_nop 0")
        A(f"v_cndmask_b32 v{V_SEL+r}, v{T+3}, v{T}, vcc")
    A(f"v_lshlrev_b32 v{V_LOFF}, 4, v{V_LOFF}")
    A(f"v_lshlrev_b32 v{V_HOFF}, 6, v{V_HOFF}")
    for m in range(16):
        A(f"v_mfma_f32_32x32x16_bf16 {acc(m)}, {vr(V_A,4)}, {vr(V_A,4)}, 0")

    A.label("L_batch")
    A(f"v_and_b32 v{T}, 3, v0")
    A(f"v_cmp_eq_u32 vcc, 3, v{T}")
    A(f"v_lshl_add_u32 v{T+1}, v0, 4, s{S_WB}")
    A(f"v_mov_b32 v{T+8}, 0")
    A(f"v_cndmask_b32 v{T+4}, 0, -1, vcc")
    A(f"v_mov_b32 v{T+5}, v{T+4}")
    A(f"v_mov_b32 v{T+6}, v{T+4}")
    A(f"v_mov_b32 v{T+7}, v{T+4}")
    A(f"v_mov_b32 v{T+9}, 0")
    A(f"v_mov_b32 v{T+10}, 0")
    A(f"v_mov_b32 v{T+11}, 0")
    A(f"v_lshlrev_b32 v{T+2}, 4, v{V_TID}")
    A(f"v_cmp_gt_u32 vcc, 160, v{V_TID}")
    A("s_and_saveexec_b64 s[78:79], vcc")
    A(f"ds_write_b128 v{T+2}, {vr(T+8,4)} offset:{L_NI}")
    A("s_mov_b64 exec, s[78:79]")
    A(f"s_mul_i32 s{S_T2}, s{S_W}, 192")
    A(f"s_mul_i32 s{S_T3}, s{S_W}, {STRB}")
    A(f"v_lshl_add_u32 v{T+2}, v0, 4, s{S_T2}")
    A(f"v_lshl_add_u32 v{T+3}, v0, 4, s{S_T3}")
    A(f"v_mov_b32 v{T+12}, {L_DUM}")
    A(f"v_mov_b32 v{T+13}, {L_DUM}")
    A(f"v_mov_b32 v{T+14}, {L_DUM}")
    A(f"v_mov_b32 v{T+15}, {L_DUM}")
    A(f"v_lshlrev_b32 v{T+16}, 4, v0")
    A(f"s_lshl_b32 s{S_T2}, s{S_W}, 7")
    A(f"v_lshl_add_u32 v{T+17}, v0, 2, s{S_T2}")
    A(f"v_mov_b32 v{T+18}, {BIG}")
    A("s_mov_b64 exec, 0xfff")
    A(f"ds_write_b128 v{T+2}, {vr(T+8,4)} offset:{L_OV}")
    A("s_mov_b32 exec_lo, -1")
    A("s_mov_b32 exec_hi, 0x1fffff")
    A(f"ds_write_b128 v{T+3}, {vr(T+12,4)} offset:{L_STR}")
    A("s_mov_b32 exec_hi, 0")
    A(f"ds_write_b32 v{T+17}, v{T+18} offset:{L_NODE}")
    A("s_mov_b32 exec_lo, 0xff")
    A(f"s_cmp_eq_u32 s{S_W}, 0")
    A("s_cbranch_scc0 L_nodum")
    A(f"ds_write_b128 v{T+16}, {vr(T+4,4)} offset:{L_DUM}")
    A.label("L_nodum")
    A("s_mov_b64 exec, -1")
    for k in range(25):
        A(f"ds_write_b128 v{T+1}, {vr(T+4,4)} offset:{1024*k}")
    A(f"v_mov_b32 v{V_MAX}, 0")
    A(f"s_cmp_eq_u32 s{S_MODE}, 0")
    A("s_cbranch_scc0 L_slow_entries")

    def load_rec(u, e, soff):
        m = S_VAL + 2 * u
        A(f"v_mad_u32_u16 v{V_AD+(u&1)}, v{e}, 12, v{V_LB}")
        A(f"v_cmpx_lt_u32_sdwa {sr(m,2)}, v{V_I}, v{e} src0_sel:DWORD src1_sel:WORD_1")
        A(f"buffer_load_dwordx3 {vr(rec(u),3)}, v{V_AD+(u&1)}, s[8:11], {soff} offen")
        A("s_mov_b64 exec, -1")
    A("s_waitcnt vmcnt(0)")
    stamp(A, o, 1)
    A(f"s_mov_b32 s{S_T0}, 0")
    for u in range(16):
        load_rec(u, ent(u), f"s{S_T0}")
        if u < 15:
            A(f"s_add_u32 s{S_T0}, s{S_T0}, {CHB}")
    A(f"v_lshrrev_b32 v{T}, 16, v{V_EL}")
    A(f"v_cmp_lt_u32 s[24:25], 16, v{T}")
    A(f"v_cmp_lt_u32 s[26:27], 32, v{T}")
    A(f"v_cmp_lt_u32 s[28:29], 48, v{T}")
    A(f"s_mov_b32 s{S_T0}, {CHB}")
    A(f"v_mul_lo_u32 v{T+1}, v{V_TID}, s{S_T0}")
    A(f"v_mad_u32_u16 v{T+2}, v{V_EL}, 12, v{T+1}")
    A(f"v_mbcnt_lo_u32_b32 v{T+6}, s24, 0")
    A(f"v_mbcnt_hi_u32_b32 v{T+6}, s25, v{T+6}")
    A(f"s_bcnt1_i32_b64 s{S_T0}, s[24:25]")
    A(f"s_bcnt1_i32_b64 s{S_T1}, s[26:27]")
    A(f"s_add_u32 s{S_T1}, s{S_T1}, s{S_T0}")
    A(f"s_mul_i32 s{S_T2}, s{S_W}, 192")
    A(f"v_mbcnt_lo_u32_b32 v{T+7}, s26, 0")
    A(f"v_mbcnt_hi_u32_b32 v{T+7}, s27, v{T+7}")
    A(f"v_add_u32 v{T+2}, 192, v{T+2}")
    A(f"v_add_u32 v{T+3}, -16, v{T}")
    A(f"v_add_u32 v{T+4}, 192, v{T+2}")
    A(f"v_add_u32 v{T+5}, -16, v{T+3}")
    A(f"v_add_u32 v{T+7}, s{S_T0}, v{T+7}")
    A(f"v_lshl_add_u32 v{T+6}, v{T+6}, 3, s{S_T2}")
    A(f"v_lshl_add_u32 v{T+7}, v{T+7}, 3, s{S_T2}")
    A(f"v_lshrrev_b32 v{T+8}, 4, v0")
    A(f"v_lshl_add_u32 v{T+8}, v{T+8}, 3, s{S_T2}")
    A(f"s_cmp_gt_u32 s{S_T1}, {OVCAP}")
    A("s_cbranch_scc1 L_ov_fail")
    A("s_cmp_lg_u64 s[28:29], 0")
    A("s_cbranch_scc1 L_ov_fail")
    A("s_mov_b64 exec, s[24:25]")
    A(f"ds_write_b64 v{T+6}, {vr(T+2,2)} offset:{L_OV}")
    A("s_mov_b64 exec, s[26:27]")
    A(f"ds_write_b64 v{T+7}, {vr(T+4,2)} offset:{L_OV}")
    A("s_mov_b64 exec, -1")
    A.label("L_ov_done")
    for k in range(6):
        A(f"ds_read_b64 {vr(T+10+2*k,2)}, v{T+8} offset:{L_OV+32*k}")
    for k in range(6):
        u = 16 + k
        m = S_VAL + 2 * u
        A(f"s_waitcnt lgkmcnt({5-k})")
        A(f"v_mad_u32_u24 v{V_AD+(u&1)}, v{V_I}, 12, v{T+10+2*k}")
        A(f"v_cmpx_lt_u32 {sr(m,2)}, v{V_I}, v{T+11+2*k}")
        A(f"buffer_load_dwordx3 {vr(rec(u),3)}, v{V_AD+(u&1)}, s[8:11], 0 offen")
        A("s_mov_b64 exec, -1")
    A(f"v_lshlrev_b32 v{T}, 4, v0")
    A(f"s_mul_i32 s{S_T0}, s{S_W}, 12288")
    A(f"s_add_u32 s{S_T1}, s{S_T0}, {WFOFF}")
    A(f"s_add_u32 s{S_T0}, s{S_T0}, {L_WF}")
    for k in range(3):
        A(f"s_mov_b32 m0, s{S_T0}")
        A(f"s_add_u32 s{S_T0}, s{S_T0}, 4096")
        for kk in range(4):
            A(f"buffer_load_dwordx4 v{T}, s[8:11], s{S_T1} offen offset:{1024*kk} lds")
        if k < 2:
            A(f"s_add_u32 s{S_T1}, s{S_T1}, 4096")
    npf = o.k2_prefetch
    if npf:
        A(f"s_and_b32 s{S_T0}, s{S_BIN}, 31")
        A(f"s_mul_i32 s{S_T0}, s{S_T0}, {npf*4*64*128}")
        A(f"v_lshlrev_b32 v{T+1}, 7, v{V_TID}")
        for k in range(npf):
            A(f"buffer_load_dword v{V_PF}, v{T+1}, s[4:7], s{S_T0} offen")
            if k < npf - 1:
                A(f"s_add_u32 s{S_T0}, s{S_T0}, {256*128}")
    A("s_waitcnt lgkmcnt(0)")
    A("s_barrier")
    def phase_a(u, younger):
        r = rec(u)
        A(f"s_mov_b64 exec, {sr(S_VAL+2*u,2)}")
        A(f"s_waitcnt vmcnt({younger})")
        A(f"v_lshrrev_b32 v{r+3}, 26, v{r+2}")
        A(f"v_bfe_u32 v{V_AD+(u&1)}, v{r+2}, 15, 11")
        A(f"v_lshlrev_b64 {vr(r+4,2)}, v{r+3}, 1")
        A(f"ds_add_rtn_u64 {vr(r+4,2)}, v{V_AD+(u&1)}, {vr(r+4,2)} offset:{L_NI}")
    for u in range(NSLOT):
        phase_a(u, NSLOT - 1 - u + 12 + npf)
    A.label("L_a_done")
    A("s_mov_b64 exec, -1")
    A("s_waitcnt lgkmcnt(0)")
    stamp(A, o, 2)
    A("s_barrier")
    A(f"s_cmp_eq_u32 s{S_W}, 0")
    A("s_cbranch_scc0 L_node_done")
    X = [T, T + 20]
    A(f"v_lshlrev_b32 v{T+40}, 4, v0")
    A(f"ds_read_b64 {vr(X[0],2)}, v{T+40} offset:{L_NI}")
    A(f"ds_read_b64 {vr(X[1],2)}, v{T+40} offset:{L_NI+1024}")
    A(f"v_mov_b32 v{X[0]+12}, v0")
    A(f"v_add_u32 v{X[1]+12}, 64, v0")
    A(f"s_mov_b32 s{S_T0}, 0x01010101")
    A(f"v_mov_b32 v{T+41}, 1")
    for k, x in enumerate(X):
        A(f"s_waitcnt lgkmcnt({1-k})")
        A(f"v_cmp_gt_u32 vcc, s{S_NN}, v{x+12}")
        A(f"v_sad_u8 v{x+13}, v{x}, 0, 0")
        A(f"v_sad_u8 v{x+2}, v{x+1}, 0, v{x+13}")
        A(f"v_add_u32 v{x+2}, 1, v{x+2}")
        A(f"v_lshrrev_b32 v{x+3}, 1, v{x+2}")
        A(f"v_min_u32 v{x+3}, {GCAP}, v{x+3}")
        A(f"v_sub_u32 v{x+4}, 62, v{x+3}")
        A(f"v_cndmask_b32 v{x+4}, 63, v{x+4}, vcc")
        A(f"v_lshlrev_b32 v{x+4}, 2, v{x+4}")
        A(f"v_add_u32 v{x+14}, s{S_NST}, v{x+12}")
        A(f"v_lshlrev_b32 v{x+14}, 9, v{x+14}")
        A(f"v_mov_b32 v{x+15}, {BIG}")
        A(f"v_cndmask_b32 v{x+15}, v{x+15}, v{x+14}, vcc")
        A(f"ds_add_rtn_u32 v{x+5}, v{x+4}, v{T+41} offset:{L_CNT}")
        A(f"v_lshlrev_b32 v{x+8}, 8, v{x}")
        A(f"v_lshl_or_b32 v{x+9}, v{x+1}, 8, v{x+13}")
        A(f"v_mul_lo_u32 v{x+8}, v{x+8}, s{S_T0}")
        A(f"v_mul_lo_u32 v{x+9}, v{x+9}, s{S_T0}")
    A(f"s_cmp_eq_u32 s{S_MODE}, 0")
    A("s_cbranch_scc1 L_sort")
    A("s_waitcnt lgkmcnt(0)")
    A(f"v_mov_b32 v{X[0]+5}, v{X[0]+12}")
    A(f"v_mov_b32 v{X[1]+5}, v{X[1]+12}")
    A("s_branch L_sorted")
    A.label("L_sort")
    A(f"v_lshlrev_b32 v{T+42}, 2, v0")
    A(f"ds_read_b32 v{T+43}, v{T+42} offset:{L_CNT}")
    A("s_waitcnt lgkmcnt(0)")
    A(f"v_mov_b32 v{T+44}, v{T+43}")
    A("s_nop 1")
    dpp_scan(A, T + 44)
    A(f"v_sub_u32 v{T+44}, v{T+44}, v{T+43}")
    A(f"ds_write_b32 v{T+42}, v{T+44} offset:{L_CNT}")
    A(f"ds_read_b32 v{X[0]+13}, v{X[0]+4} offset:{L_CNT}")
    A(f"ds_read_b32 v{X[1]+13}, v{X[1]+4} offset:{L_CNT}")
    A("s_waitcnt lgkmcnt(1)")
    A(f"v_add_u32 v{X[0]+5}, v{X[0]+5}, v{X[0]+13}")
    A("s_waitcnt lgkmcnt(0)")
    A(f"v_add_u32 v{X[1]+5}, v{X[1]+5}, v{X[1]+13}")
    A.label("L_sorted")
    for k, x in enumerate(X):
        A(f"v_cmp_gt_u32 vcc, 100, v{x+5}")
        A(f"v_mul_u32_u24 v{x+6}, 205, v{x+5}")
        A(f"v_lshrrev_b32 v{x+6}, 10, v{x+6}")
        A(f"v_mul_u32_u24 v{x+13}, 5, v{x+6}")
        A(f"v_sub_u32 v{x+5}, v{x+5}, v{x+13}")
        A(f"v_bfe_u32 v{x+13}, v{x+6}, 2, 1")
        A(f"v_mul_u32_u24 v{x+13}, 3, v{x+13}")
        A(f"v_and_b32 v{x+14}, 3, v{x+6}")
        A(f"v_xor_b32 v{x+13}, v{x+13}, v{x+14}")
        A(f"v_lshrrev_b32 v{x+6}, 2, v{x+6}")
        A(f"v_lshl_add_u32 v{x+7}, v{x+13}, 3, v{x+6}")
        A(f"v_lshlrev_b32 v{x+7}, 2, v{x+7}")
        A(f"v_mad_u32_u24 v{x+14}, v{x+6}, 5, v{x+5}")
        A(f"v_lshl_add_u32 v{x+14}, v{x+13}, 5, v{x+14}")
        A(f"v_lshlrev_b32 v{x+14}, 2, v{x+14}")
        A(f"s_mov_b64 exec, vcc")
        A(f"ds_max_u32 v{x+7}, v{x+3} offset:{L_RG}")
        A(f"ds_write_b32 v{x+14}, v{x+15} offset:{L_NODE}")
        A("s_mov_b64 exec, -1")
        A(f"v_mul_u32_u24 v{x+13}, {WREG}, v{x+13}")
        A(f"v_mul_u32_u24 v{x+6}, {GCAP*128}, v{x+6}")
        A(f"v_lshl_add_u32 v{x+10}, v{x+5}, 3, v{x+13}")
        A(f"v_add_u32 v{x+10}, v{x+10}, v{x+6}")
        A(f"v_add_u32 v{x+10}, {L_TBL}, v{x+10}")
        A(f"v_mul_u32_u24 v{x+5}, 6, v{x+5}")
        A(f"v_sub_u32 v{x+5}, 48, v{x+5}")
        A(f"v_cvt_f32_u32 v{x+3}, v{x+3}")
        A(f"v_rcp_f32 v{x+3}, v{x+3}")
    for k, x in enumerate(X):
        A(f"ds_read_b32 v{x+13}, v{x+7} offset:{L_RG}")
    A(f"s_mov_b32 s{S_T0}, 0xffffff")
    for k, x in enumerate(X):
        A(f"s_waitcnt lgkmcnt({1-k})")
        A(f"v_lshlrev_b32 v{x+13}, 15, v{x+13}")
        A(f"v_cvt_f32_u32 v{x+13}, v{x+13}")
        A(f"v_mul_f32 v{x+13}, v{x+13}, v{x+3}")
        A(f"v_cvt_u32_f32 v{x+13}, v{x+13}")
        A(f"v_max_u32 v{x+13}, 0x8000, v{x+13}")
        A(f"v_and_b32 v{x+13}, s{S_T0}, v{x+13}")
        A(f"v_lshl_or_b32 v{x+11}, v{x+5}, 24, v{x+13}")
        A(f"ds_write_b128 v{T+40}, {vr(x+8,4)} offset:{L_NI+1024*k}")
    A("s_waitcnt lgkmcnt(0)")
    A.label("L_node_done")
    stamp(A, o, 3)
    A("s_barrier")
    A(f"s_lshl_b32 s{S_T2}, s{S_W}, 5")
    A(f"v_mov_b32 v{T+40}, s{S_T2}")
    A(f"ds_read_b128 {vr(T+32,4)}, v{T+40} offset:{L_RG}")
    A(f"ds_read_b32 v{T+36}, v{T+40} offset:{L_RG+16}")
    DEP = 4
    NI = lambda u: T + 4 * (u % (DEP + 1))
    TX = T + 20
    def s_read(u):
        A(f"s_mov_b64 exec, {sr(S_VAL+2*u,2)}")
        A(f"v_bfe_u32 v{V_AD+(u&1)}, v{rec(u)+2}, 15, 11")
        A(f"ds_read_b128 {vr(NI(u),4)}, v{V_AD+(u&1)} offset:{L_NI}")
    def s_proc(u, cnt):
        r = rec(u); n = NI(u)
        a, b = TX + 2 * (u & 1), TX + 4 + 2 * (u & 1)
        A(f"s_mov_b64 exec, {sr(S_VAL+2*u,2)}")
        A(f"v_lshrrev_b64 {vr(r+4,2)}, v{r+3}, {vr(r+4,2)}")
        A(f"s_waitcnt lgkmcnt({cnt})")
        A(f"v_lshrrev_b64 {vr(n,2)}, v{r+3}, {vr(n,2)}")
        A(f"v_add_u32_sdwa v{a}, v{n}, v{r+4} dst_sel:DWORD dst_unused:UNUSED_PAD src0_sel:BYTE_0 src1_sel:BYTE_0")
        A(f"v_or_b32 v{a+1}, 1, v{a}")
        A(f"v_mul_u32_u24 v{a+1}, v{a+1}, v{n+3}")
        A(f"v_lshrrev_b32 v{a+1}, 15, v{a+1}")
        A(f"v_bfi_b32 v{a+1}, 1, v{a}, v{a+1}")
        A(f"v_lshl_add_u32 v{b}, v{a+1}, 6, v{n+2}")
        A(f"v_add_u32_sdwa v{b+1}, v{b}, v{n+3} dst_sel:DWORD dst_unused:UNUSED_PAD src0_sel:DWORD src1_sel:BYTE_3")
        A(f"v_max_u32 v{V_MAX}, v{V_MAX}, v{a}")
        A(f"ds_write_b64 v{b}, {vr(r,2)}")
        A(f"ds_write_b16 v{b+1}, v{r+2}")
    for u in range(DEP):
        s_read(u)
    for u in range(NSLOT):
        if u + DEP < NSLOT:
            s_read(u + DEP)
        after = min(u, DEP) * 2 + min(DEP, NSLOT - 1 - u)
        s_proc(u, after)
        if u == 0:
            A(f"s_cmp_eq_u32 s{S_MODE}, 0")
            A("s_cbranch_scc0 L_s_done")
    A.label("L_s_done")
    A("s_mov_b64 exec, -1")
    A(f"v_cmp_le_u32 vcc, {2*GCAP}, v{V_MAX}")
    A(f"v_mov_b32 v{T}, 1")
    A(f"v_mov_b32 v{T+1}, 0")
    A("s_cbranch_vccz L_deg_ok")
    A(f"ds_write_b32 v{T+1}, v{T} offset:{L_FLAG}")
    A.label("L_deg_ok")
    R0 = T + 32
    A("s_waitcnt lgkmcnt(0)")
    A(f"v_max3_u32 v{T}, v{R0}, v{R0+1}, v{R0+2}")
    A(f"v_max3_u32 v{R0}, v{T}, v{R0+3}, v{R0+4}")
    A(f"v_cvt_f32_u32 v{T+1}, v{R0}")
    A(f"v_readfirstlane_b32 s{S_SEND}, v{R0}")
    A(f"v_rcp_f32 v{T+1}, v{T+1}")
    A(f"v_cmp_gt_u32 vcc, v{R0}, v0")
    A(f"v_mul_f32 v{T+1}, 0x47800000, v{T+1}")
    for g in range(5):
        A(f"v_cvt_f32_u32 v{T+2+g}, v{R0+g}")
    for g in range(5):
        A(f"v_mul_f32 v{T+2+g}, v{T+2+g}, v{T+1}")
    for g in range(5):
        A(f"v_cvt_u32_f32 v{T+2+g}, v{T+2+g}")
    for g in range(5):
        A(f"v_add_u32 v{T+2+g}, 2, v{T+2+g}")
    A("s_mov_b64 exec, vcc")
    for g in range(5):
        A(f"v_mul_u32_u24 v{T+8+g}, v0, v{T+2+g}")
    for g in range(5):
        A(f"v_add_u32 v{T+2+g}, v{T+8+g}, v{T+2+g}")
    for g in range(5):
        A(f"v_lshrrev_b32 v{T+8+g}, 16, v{T+8+g}")
        A(f"v_lshrrev_b32 v{T+2+g}, 16, v{T+2+g}")
    for g in range(5):
        A(f"v_cmp_gt_u32 {sr(S_MASK+2*g,2)}, v{T+2+g}, v{T+8+g}")
    A("s_mov_b64 exec, -1")
    A(f"s_mul_i32 s{S_T3}, s{S_W}, {STRB}")
    A(f"v_mov_b32 v{T+1}, 0")
    for g in range(5):
        A(f"v_mbcnt_lo_u32_b32 v{T+1}, s{S_MASK+2*g}, v{T+1}")
        A(f"v_mbcnt_hi_u32_b32 v{T+1}, s{S_MASK+2*g+1}, v{T+1}")
    A(f"v_lshl_add_u32 v{T+1}, v{T+1}, 2, s{S_T3}")
    A(f"s_mov_b32 s{S_T2}, s{S_WB}")
    for g in range(5):
        A(f"v_lshl_add_u32 v{T+8+g}, v{T+8+g}, 7, s{S_T2}")
        A(f"s_mov_b64 exec, {sr(S_MASK+2*g,2)}")
        A(f"ds_write_b32 v{T+1}, v{T+8+g} offset:{L_STR}")
        A(f"v_add_u32 v{T+1}, 4, v{T+1}")
        A("s_mov_b64 exec, -1")
        if g < 4:
            A(f"s_add_u32 s{S_T2}, s{S_T2}, {GCAP*128}")
    A(f"v_mov_b32 v{V_SP}, s{S_T3}")
    A(f"s_min_u32 s{S_SEND}, s{S_SEND}, {GCAP}")
    A(f"s_waitcnt vmcnt({npf}) lgkmcnt(0)")
    A(f"s_cmp_eq_u32 s{S_MODE}, 0")
    A("s_cbranch_scc0 L_nozero")
    for m in range(16, 25):
        A(f"v_mfma_f32_32x32x16_bf16 {acc(m)}, {vr(V_A,4)}, {vr(V_A,4)}, 0")
    A.label("L_nozero")
    stamp(A, o, 4)
    A("s_barrier")
    assert nph in (2, 3)
    A(f"ds_read_b128 v[48:51], v{V_SP} offset:{L_STR}")
    A(f"ds_read_b32 v{V_Q}, v{V_SP} offset:{L_STR+4*(nph+1)}")
    A("v_mov_b32 v46, 0")
    A(f"ds_read_b32 v45, v46 offset:{L_FLAG}")
    A(f"s_mov_b32 s{S_S}, 0")
    A("s_waitcnt lgkmcnt(0)")
    A(f"v_readfirstlane_b32 s{S_T0}, v45")
    A(f"v_add_u32 v47, v48, v{V_HOFF}")
    for t in range(1, nph):
        A(f"v_add_u32 v{V_P+t}, v{48+t}, v{V_HOFF}")
    A(f"v_add_u32 v{V_P}, v{48+nph}, v{V_HOFF}")
    A(f"s_andn2_b32 s{S_T0}, s{S_T0}, s{S_MODE}")
    A(f"s_cmp_lg_u32 s{S_T0}, 0")
    A("s_cbranch_scc1 L_to_slow")
    A(f"s_cmp_eq_u32 s{S_SEND}, 0")
    A("s_cbranch_scc1 L_exit")
    first = [vS + 4, vS + 8, 44][:nph] if nph == 3 else [vS + 4, 44]
    ptrs = [47] + [V_P + t for t in range(1, nph)]
    for t in range(nph):
        A(f"ds_read_b96 {vr(first[t],3)}, v{ptrs[t]} offset:48")
    A(f"ds_read_b96 {vr(vS,3)}, v{V_P} offset:48")
    A(f"ds_read_b128 {vr(V_C,4)}, v47")
    A(f"ds_read_b128 {vr(V_C+4,4)}, v47 offset:16")
    A(f"ds_read_b64 {vr(V_C+8,2)}, v47 offset:32")
    def mad(dst, sreg, j):
        op = " op_sel:[1,0,0,0]" if j & 1 else ""
        A(f"v_mad_u32_u16 v{dst}, v{sreg + (j >> 1)}, s{S_512}, v{V_LOFF}{op}")
    for t in range(nph):
        A(f"s_waitcnt lgkmcnt({nph+3-t})")
        for j in range(5):
            mad(V_AD + (j & 1), first[t], j)
            A(f"buffer_load_dwordx4 {vr(ring+(5*t+j)*4,4)}, v{V_AD+(j&1)}, s[4:7], 0 offen")
    A("s_waitcnt lgkmcnt(0)")
    stamp(A, o, 5)
    NB = 5 * nph
    def blk(g, p):
        for b in range(NB):
            if b % 5 == g and b % nph == p:
                return b
    K = NB - 1
    stubs = []
    for b in range(NB):
        g, p = b % 5, b % nph
        pn = (p + 1) % nph
        A.label(f"L_blk{b}")
        A(f"s_waitcnt lgkmcnt(3)")
        A(f"v_add_u32 v{V_TP}, v{V_Q}, v{V_HOFF}")
        A(f"ds_read_b96 {vr(vS+4*pn,3)}, v{V_TP} offset:48")
        A(f"ds_read_b32 v{V_Q}, v{V_SP} offset:{L_STR+4*(p+2+nph)}")
        for j in range(5):
            m = 5 * g + j
            B = ring + (5 * p + j) * 4
            if j in (0, 2, 4):
                A(f"s_waitcnt vmcnt({K}) lgkmcnt(4)")
            else:
                A(f"s_waitcnt vmcnt({K})")
            c = V_C + 2 * j
            for r in range(4):
                A(f"v_perm_b32 v{V_A+r}, v{c+1}, v{c}, v{V_SEL+r}")
            mad(V_AD + (j & 1), vS + 4 * p, j)
            if j == 0:
                if g < 4:
                    A(f"s_bitcmp1_b64 {sr(S_MASK+2*(g+1),2)}, s{S_S}")
                else:
                    A(f"s_add_u32 s{S_S}, s{S_S}, 1")
            elif j == 1:
                A(f"ds_read_b128 {vr(V_C,4)}, v{V_P+pn}")
            elif j == 2:
                if g == 4:
                    A(f"s_cmp_lt_u32 s{S_S}, s{S_SEND}")
                elif p == nph - 1:
                    A(f"v_add_u32 v{V_SP}, {4*nph}, v{V_SP}")
                else:
                    A("s_nop 0")
            elif j == 3:
                A(f"ds_read_b128 {vr(V_C+4,4)}, v{V_P+pn} offset:16")
            else:
                A(f"ds_read_b64 {vr(V_C+8,2)}, v{V_P+pn} offset:32")
            A(f"v_mfma_f32_32x32x16_bf16 {acc(m)}, {vr(V_A,4)}, {vr(B,4)}, {acc(m)}")
            A(f"buffer_load_dwordx4 {vr(B,4)}, v{V_AD+(j&1)}, s[4:7], 0 offen")
        A(f"v_mov_b32 v{V_P+pn}, v{V_TP}")
        if g == 4 and p == nph - 1:
            A(f"v_add_u32 v{V_SP}, {4*nph}, v{V_SP}")
        if g < 4:
            A(f"s_cbranch_scc0 L_stub{b}")
            stubs.append(b)
        else:
            A("s_cbranch_scc0 L_exit")
        if b == NB - 1:
            A("s_branch L_blk0")
    for b in stubs:
        g, p = b % 5, b % nph
        pn = (p + 1) % nph
        A.label(f"L_stub{b}")
        for g2 in range(g + 2, 5):
            A(f"s_bitcmp1_b64 {sr(S_MASK+2*g2,2)}, s{S_S}")
            A(f"s_cbranch_scc1 L_blk{blk(g2,pn)}")
        A(f"s_add_u32 s{S_S}, s{S_S}, 1")
        A(f"s_cmp_lt_u32 s{S_S}, s{S_SEND}")
        A(f"s_cbranch_scc1 L_blk{blk(0,pn)}")
        if b != stubs[-1]:
            A("s_branch L_exit")
    A.label("L_exit")
    A("s_waitcnt vmcnt(0) lgkmcnt(0)")
    stamp(A, o, 6)
    A(f"s_cmp_eq_u32 s{S_MODE}, 0")
    A("s_cbranch_scc0 L_next_batch")
    A.label("L_epi")
    epilogue(A, o)
    if o.stamps:
        A("s_waitcnt vmcnt(0)")
        stamp(A, o, 7)
        A(f"s_lshl_b32 s{S_T0}, s2, 2")
        A(f"s_add_u32 s{S_T0}, s{S_T0}, s{S_W}")
        stamp_out(A, o, 8, 86, 8, 9, 24, S_T0, 1 << 18)
    A("s_endpgm")

    A.label("L_ov_fail")
    A(f"v_mov_b32 v{T}, 1")
    A(f"v_mov_b32 v{T+1}, 0")
    A(f"ds_write_b32 v{T+1}, v{T} offset:{L_FLAG}")
    A("s_branch L_ov_done")

    A.label("L_to_slow")
    A(f"v_lshrrev_b32 v{T}, 16, v{V_EL}")
    A(f"v_mov_b32 v{T+1}, 0")
    A(f"ds_max_u32 v{T+1}, v{T} offset:{L_FLAG+4}")
    A("s_waitcnt lgkmcnt(0)")
    A("s_barrier")
    A(f"ds_read_b32 v{T}, v{T+1} offset:{L_FLAG+4}")
    A("s_waitcnt lgkmcnt(0)")
    A(f"v_readfirstlane_b32 s{S_NB}, v{T}")
    A("s_barrier")
    A(f"s_min_u32 s{S_NB}, s{S_NB}, {CH}")
    A(f"s_add_u32 s{S_NB}, s{S_NB}, 15")
    A(f"s_lshr_b32 s{S_NB}, s{S_NB}, 4")
    A(f"s_lshl_b32 s{S_NB}, s{S_NB}, 6")
    A(f"s_mov_b32 s{S_MODE}, 1")
    A(f"s_mov_b32 s{S_B}, 0")
    A("s_branch L_batch")

    A.label("L_next_batch")
    A(f"s_add_u32 s{S_B}, s{S_B}, 1")
    A(f"s_cmp_lt_u32 s{S_B}, s{S_NB}")
    A("s_cbranch_scc1 L_batch")
    A("s_branch L_epi")

    A.label("L_slow_entries")
    A(f"s_and_b32 s{S_T0}, s{S_B}, 15")
    A(f"v_lshrrev_b32 v{T+20}, 4, v{V_TID}")
    A(f"v_lshlrev_b32 v{T+20}, 6, v{T+20}")
    A(f"s_lshl_b32 s{S_T1}, s{S_T0}, 2")
    A(f"v_add_u32 v{T+20}, s{S_T1}, v{T+20}")
    A(f"buffer_load_dword v{V_E0}, v{T+20}, s[8:11], s{S_TAB} offen")
    A(f"s_mul_i32 s{S_T0}, s{S_T0}, {CHB}")
    A(f"s_lshr_b32 s{S_T1}, s{S_B}, 6")
    A(f"s_lshl_b32 s{S_T1}, s{S_T1}, 4")
    A(f"s_bfe_u32 s{S_T2}, s{S_B}, 0x20004")
    A(f"s_cmp_eq_u32 s{S_T2}, s{S_W}")
    A(f"s_cselect_b32 s{S_T3}, -1, 0")
    A("s_waitcnt vmcnt(0)")
    A(f"v_lshrrev_b32 v{T+21}, 16, v{V_E0}")
    A(f"v_and_b32 v{V_E0}, 0xffff, v{V_E0}")
    A(f"v_add_u32 v{V_E0}, s{S_T1}, v{V_E0}")
    A(f"v_max_u32 v{T+21}, s{S_T1}, v{T+21}")
    A(f"v_subrev_u32 v{T+21}, s{S_T1}, v{T+21}")
    A(f"v_and_b32 v{T+21}, s{S_T3}, v{T+21}")
    A(f"v_lshl_or_b32 v{V_E0}, v{T+21}, 16, v{V_E0}")
    load_rec(0, V_E0, f"s{S_T0}")
    for u in range(1, 5):
        A(f"s_mov_b64 {sr(S_VAL+2*u,2)}, 0")
    A("s_waitcnt lgkmcnt(0)")
    A("s_barrier")
    phase_a(0, 0)
    A("s_branch L_a_done")
    A.label("L_k2_end")
    A("s_endpgm")
    return A, 512, 102

def epilogue(A, o):
    V_TW, V_TR, V_WR, V_N2 = 1, 2, 3, 4
    PK = lambda m, q: 112 + 8 * (m - 16) + 2 * q
    OUTB = [32, 48, 64, 80, 96, 184, 200, 216]
    OUT = lambda oo, t: OUTB[2 * oo + t]
    TF = [8, 12]
    WFR = [16, 20, 24, 28]
    TMP = 232
    NOD = 240
    A(f"v_and_b32 v5, 31, v0")
    A(f"v_lshrrev_b32 v6, 5, v0")
    A(f"v_lshlrev_b32 v{V_TW}, 3, v5")
    A(f"v_lshl_add_u32 v{V_TW}, v6, 8, v{V_TW}")
    A(f"v_add_u32 v{V_TW}, s{S_WB}, v{V_TW}")
    A(f"v_min_u32 v{V_TR}, 24, v5")
    A(f"v_mul_u32_u24 v{V_TR}, 1040, v{V_TR}")
    A(f"v_lshl_add_u32 v{V_TR}, v6, 4, v{V_TR}")
    A(f"v_add_u32 v{V_TR}, s{S_WB}, v{V_TR}")
    A(f"v_lshlrev_b32 v{V_WR}, 4, v0")
    A(f"v_lshlrev_b32 v{V_N2}, 2, v5")
    A(f"s_lshl_b32 s{S_T0}, s{S_W}, 7")
    A(f"v_lshl_add_u32 v7, v6, 4, s{S_T0}")
    for a in range(3):
        A(f"ds_read_b128 {vr(8+4*a,4)}, v7 offset:{L_NODE+32*a}")
    A(f"ds_read_b32 v20, v7 offset:{L_NODE+96}")
    A("s_nop 1")
    for m in range(16, 25):
        s = 112 + 16 * (m - 16)
        for k in range(8):
            A(f"v_cvt_pk_bf16_f32 v{PK(m,0)+k}, v{s+2*k}, v{s+2*k+1}")
    A("s_waitcnt lgkmcnt(0)")
    for i in range(13):
        A(f"v_add_u32 v{NOD+i}, v{8+i}, v{V_N2}")

    def conv_write(q, lst):
        out = []
        k = 0
        for m in range(25):
            off = m * 1040 + (q & 1) * 512
            if m < 16:
                t = TMP + 4 * (k & 1); k += 1
                for i in range(4):
                    out.append(f"v_accvgpr_read_b32 v{t+i}, a{16*m+4*q+i}")
                out.append(f"v_cvt_pk_bf16_f32 v{t}, v{t}, v{t+1}")
                out.append(f"v_cvt_pk_bf16_f32 v{t+1}, v{t+2}, v{t+3}")
                out.append(f"ds_write_b64 v{V_TW}, {vr(t,2)} offset:{off}")
            else:
                out.append(f"ds_write_b64 v{V_TW}, {vr(PK(m,q),2)} offset:{off}")
        return out

    plan = {0: [(0, 0, 0), (1, 3, 1), (2, 3, 2), (3, 3, 3)],
            1: [(0, 2, 1), (1, 1, 0), (2, 4, 3), (3, 5, 2)],
            2: [(0, 2, 2), (1, 5, 3), (2, 1, 0), (3, 4, 1)],
            3: [(3, 1, 0), (2, 5, 1), (1, 4, 2), (0, 2, 3)]}
    for ins in conv_write(0, None):
        A(ins)
    G = lambda t, i: 112 + 16 * t + i
    started = set()
    for q in range(4):
        steps = [(c, b, oo, s) for (c, b, oo) in plan[q] for s in range(4)]
        def reads(k):
            c, b, oo, s = steps[k]
            tf = TF[k & 1]; w0 = WFR[2 * (k & 1)]
            toff = (q & 1) * 512 + (s >> 1) * 256 + c * 64 + (s & 1) * 32
            return [f"ds_read_b128 {vr(tf,4)}, v{V_TR} offset:{toff}",
                    f"ds_read_b128 {vr(w0,4)}, v{V_WR} offset:{L_WF + b*8192 + (2*s)*1024}",
                    f"ds_read_b128 {vr(w0+4,4)}, v{V_WR} offset:{L_WF + b*8192 + (2*s+1)*1024}"]
        if q < 3:
            fill = conv_write(q + 1, None)
        else:
            fill = []
        per = -(-len(fill) // 16) if fill else 0
        A("s_waitcnt lgkmcnt(0)")
        for ins in reads(0):
            A(ins)
        post = []
        if q == 3:
            post = gate_and_store(OUT, G, NOD, TMP)
        for k in range(16):
            c, b, oo, s = steps[k]
            tf = TF[k & 1]; w0 = WFR[2 * (k & 1)]
            chunk = fill[k * per:(k + 1) * per]
            nds = sum(1 for x in chunk if x.startswith("ds_"))
            if k + 1 < 16:
                for ins in reads(k + 1):
                    A(ins)
                A("s_waitcnt lgkmcnt(3)")
            else:
                A("s_waitcnt lgkmcnt(0)")
            for t in range(2):
                d = vr(OUT(oo, t), 16)
                cc = d if (oo, t) in started else "0"
                started.add((oo, t))
                A(f"v_mfma_f32_32x32x16_bf16 {d}, {vr(tf,4)}, {vr(w0+4*t,4)}, {cc}")
                half = chunk[:len(chunk)//2] if t == 0 else chunk[len(chunk)//2:]
                for ins in half:
                    A(ins)
            if q == 3:
                blkdone = k // 4
                lst = post
                if k % 4 >= 1 and blkdone >= 1:
                    part = lst[blkdone - 1]
                    n = len(part)
                    i0 = (k % 4 - 1) * n // 3
                    i1 = (k % 4) * n // 3
                    for ins in part[i0:i1]:
                        A(ins)
        if q == 3:
            A("s_nop 15")
            for ins in post[3]:
                A(ins)

def gate_and_store(OUT, G, NOD, TMP):
    res = []
    p = []
    for t in range(2):
        for i in range(13):
            p.append(f"v_mul_f32 v{G(t,i)}, 0xbfb8aa3b, v{OUT(0,t)+i}")
        for i in range(13):
            p.append(f"v_exp_f32 v{G(t,i)}, v{G(t,i)}")
        for i in range(13):
            p.append(f"v_add_f32 v{G(t,i)}, 1.0, v{G(t,i)}")
        for i in range(13):
            p.append(f"v_rcp_f32 v{G(t,i)}, v{G(t,i)}")
    for i in range(13):
        r = TMP + (i & 7)
        p.append(f"v_cvt_pk_bf16_f32 v{r}, v{OUT(0,0)+i}, v{OUT(0,1)+i}")
        p.append(f"buffer_store_dword v{r}, v{NOD+i}, s[12:15], 0 offen")
    res.append(p)
    for oo in range(1, 4):
        p = []
        for i in range(13):
            r = TMP + (i & 7)
            p.append(f"v_mul_f32 v{OUT(oo,0)+i}, v{OUT(oo,0)+i}, v{G(0,i)}")
            p.append(f"v_mul_f32 v{OUT(oo,1)+i}, v{OUT(oo,1)+i}, v{G(1,i)}")
            p.append(f"v_cvt_pk_bf16_f32 v{r}, v{OUT(oo,0)+i}, v{OUT(oo,1)+i}")
            p.append(f"buffer_store_dword v{r}, v{NOD+i}, s[12:15], 0 offen offset:{128*oo}")
        res.append(p)
    return res

def descriptor(name, vg, sg):
    accum = min(256, (vg + 3) // 4 * 4)
    return f""".amdhsa_kernel {name}
  .amdhsa_next_free_vgpr {vg}
  .amdhsa_next_free_sgpr {sg}
  .amdhsa_accum_offset {accum}
  .amdhsa_group_segment_fixed_size 0
  .amdhsa_kernarg_size 96
  .amdhsa_user_sgpr_count 2
  .amdhsa_user_sgpr_kernarg_segment_ptr 1
  .amdhsa_system_sgpr_workgroup_id_x 1
  .amdhsa_float_denorm_mode_32 3
.end_amdhsa_kernel"""

HEADER = """; Equiformer-style tensor-product message passing, two launches:
"""

def build(o):
    a1, v1, s1 = k1(o)
    a2, v2, s2 = k2(o)
    n1, n2 = "sort_kernel", "main_kernel"
    t = HEADER
    t += f"; @launch kernel={n1} grid=(256,1,1) block=({K1_BLOCK},1,1) lds={K1_LDS}\n"
    t += f"; @launch kernel={n2} grid=(256,1,1) block=(256,1,1) lds={K2_LDS}\n"
    t += '.amdgcn_target "amdgcn-amd-amdhsa--gfx950"\n.text\n'
    for n, a in ((n1, a1), (n2, a2)):
        t += f".globl {n}\n.p2align 8\n.type {n},@function\n{n}:\n{a.text()}\n"
    t += '.section .rodata,"a"\n.p2align 6\n' + descriptor(n1, v1, s1) + "\n.p2align 6\n" + descriptor(n2, v2, s2) + "\n"
    return t, a1, a2

if __name__ == "__main__":
    o = Opt()
    t, a1, a2 = build(o)
    out = sys.argv[1] if len(sys.argv) > 1 else f"cdna_kernels/{NAME}.s"
    open(out, "w").write(t)
    print("wrote", out, len(a1.L), len(a2.L))
```

```python
import sys

NAME = "gather_scatter__tensor_product_equiv_equiformer__graph"
N = 25000
E = 800000
XBYTES = N * 512
NCH = 250
CH = 3200
RECB = 12
CHB = CH * RECB
REC_TOTAL = NCH * CHB
TABOFF = REC_TOTAL
WFOFF = TABOFF + 256 * 1024
WS_USED = WFOFF + 6 * 8192

class Opt:
    nph = 3
    k1_prefetch = True
    k2_prefetch = 0
    stamps = False
    guard = False
    dbgstamps = False
    extra_pre = 0
    extra_post = 0

class Asm:
    def __init__(self):
        self.L = []
    def __call__(self, s):
        for line in s.strip().split("\n"):
            line = line.strip()
            if line:
                self.L.append(line)
    def label(self, s):
        self.L.append(s + ":")
    def text(self):
        out = []
        for l in self.L:
            out.append(l if l.endswith(":") else "    " + l)
        return "\n".join(out)

def vr(a, n):
    return f"v[{a}:{a+n-1}]" if n > 1 else f"v{a}"
def ar(a, n):
    return f"a[{a}:{a+n-1}]" if n > 1 else f"a{a}"
def sr(a, n):
    return f"s[{a}:{a+n-1}]" if n > 1 else f"s{a}"

def srd(A, s, lo, hi, size):
    A(f"s_mov_b32 s{s}, s{lo}")
    A(f"s_mov_b32 s{s+1}, s{hi}")
    A(f"s_mov_b32 s{s+2}, {size}")
    A(f"s_mov_b32 s{s+3}, 0x20000")

def guard(A, o, tag):
    if o.guard:
        A("s_load_dword s3, s[0:1], 96")
        A("s_waitcnt lgkmcnt(0)")
        A("s_cmp_eq_u32 s3, 0x5eed1234")
        A(f"s_cbranch_scc0 L_{tag}_end")

def dpp_scan(A, v):
    for ctl in ("row_shr:1", "row_shr:2", "row_shr:4", "row_shr:8"):
        A(f"v_add_u32_dpp v{v}, v{v}, v{v} {ctl} row_mask:0xf bank_mask:0xf")
        A("s_nop 1")
    A(f"v_add_u32_dpp v{v}, v{v}, v{v} row_bcast:15 row_mask:0xa bank_mask:0xf")
    A("s_nop 1")
    A(f"v_add_u32_dpp v{v}, v{v}, v{v} row_bcast:31 row_mask:0xc bank_mask:0xf")

STAMP_OFF = 16 << 20
def stamp(A, o, idx, base=86):
    if o.stamps:
        A(f"s_memrealtime s[{base+2*idx}:{base+2*idx+1}]")
        A("s_waitcnt lgkmcnt(0)")
def stamp_out(A, o, n, base, lo, hi, srd0, slot_sgpr, region):
    if o.stamps and o.dbgstamps:
        lab = f"L_st_{region}"
        A(f"s_cmp_eq_u32 s{slot_sgpr}, {o.dbgstamps}")
        A(f"s_cbranch_scc0 {lab}")
        A(f"s_load_dwordx2 s[{srd0}:{srd0+1}], s[0:1], 80")
        A("s_waitcnt lgkmcnt(0)")
        if region:
            A(f"s_sub_u32 s{srd0}, s{srd0}, {512*(1+o.extra_pre)-32}")
            A(f"s_subb_u32 s{srd0+1}, s{srd0+1}, 0")
        A("s_mov_b64 exec, 1")
        A(f"s_mov_b32 s{srd0+2}, 32")
        A(f"s_mov_b32 s{srd0+3}, 0x20000")
        A("v_mov_b32 v1, 0")
        for i in range(n):
            A(f"v_mov_b32 v2, s{base+2*i}")
            A(f"buffer_store_dword v2, v1, s[{srd0}:{srd0+3}], 0 offen offset:{4*i}")
        A.label(lab)
    elif o.stamps:
        A("s_mov_b64 exec, 1")
        A(f"s_add_u32 s{srd0}, s{lo}, {STAMP_OFF+region}")
        A(f"s_addc_u32 s{srd0+1}, s{hi}, 0")
        A(f"s_mov_b32 s{srd0+2}, {1<<18}")
        A(f"s_mov_b32 s{srd0+3}, 0x20000")
        A(f"s_lshl_b32 s{slot_sgpr}, s{slot_sgpr}, 5")
        A("v_mov_b32 v1, 0")
        for i in range(n):
            A(f"v_mov_b32 v2, s{base+2*i}")
            A(f"buffer_store_dword v2, v1, s[{srd0}:{srd0+3}], s{slot_sgpr} offen offset:{4*i}")

K1_HIST, K1_BASE, K1_STG = 0, 1024, 2048
K1_LDS = K1_STG + CH * 16
K1_BLOCK = 832

def k1(o):
    A = Asm()
    guard(A, o, "k1")
    A("s_cmp_ge_u32 s2, 256")
    A("s_cbranch_scc1 L_k1_end")
    stamp(A, o, 0, 72)
    A("s_load_dwordx4 s[4:7], s[0:1], 0")
    A("s_load_dwordx4 s[8:11], s[0:1], 16")
    A("s_load_dwordx4 s[12:15], s[0:1], 32")
    A("s_load_dwordx4 s[16:19], s[0:1], 48")
    A("s_load_dwordx2 s[20:21], s[0:1], 88")
    A("s_and_b32 s22, s2, 7")
    A("s_lshl_b32 s22, s22, 5")
    A("s_lshr_b32 s23, s2, 3")
    A("s_add_u32 s22, s22, s23")
    A("v_lshlrev_b32 v1, 4, v0")
    A("v_mul_u32_u24 v2, 24, v0")
    A("v_lshlrev_b32 v3, 3, v0")
    A("s_lshl_b32 s60, s22, 2")
    A(f"s_add_u32 s60, s60, {TABOFF}")
    A("s_cmp_ge_u32 s22, 250")
    A("s_cbranch_scc1 L_k1_wprep")
    A(f"s_mul_i32 s56, s22, {CH*4}")
    A(f"s_mul_i32 s57, s22, {CH*6}")
    A(f"s_mul_i32 s58, s22, {CH*2}")
    A(f"s_mul_i32 s59, s22, {400*128}")
    A("v_cmp_gt_u32 vcc, 800, v0")
    A("s_and_b64 exec, exec, vcc")
    A("v_mov_b32 v44, 0")
    A("v_mov_b32 v45, 0")
    A("v_mov_b32 v46, 0")
    A("v_mov_b32 v47, 0")
    A("s_waitcnt lgkmcnt(0)")
    srd(A, 24, 12, 13, E * 4)
    srd(A, 28, 10, 11, E * 4)
    srd(A, 32, 6, 7, E * 6)
    srd(A, 36, 8, 9, E * 2)
    A("buffer_load_dwordx4 v[4:7], v1, s[24:27], s56 offen")
    A("buffer_load_dwordx4 v[8:11], v1, s[28:31], s56 offen")
    A("buffer_load_dwordx4 v[12:15], v2, s[32:35], s57 offen")
    A("buffer_load_dwordx2 v[16:17], v2, s[32:35], s57 offen offset:16")
    A("buffer_load_dwordx2 v[18:19], v3, s[36:39], s58 offen")
    npf = 0
    if o.k1_prefetch:
        srd(A, 40, 4, 5, XBYTES)
        A("v_lshlrev_b32 v48, 6, v0")
        A("buffer_load_dword v49, v48, s[40:43], s59 offen")
        npf = 1
    srd(A, 44, 20, 21, WS_USED)
    A("v_readfirstlane_b32 s61, v0")
    A("s_cmp_lt_u32 s61, 64")
    A("s_cbranch_scc0 L_k1_nz")
    A(f"ds_write_b128 v1, v[44:47] offset:{K1_HIST}")
    A("s_waitcnt lgkmcnt(0)")
    A.label("L_k1_nz")
    A("s_mov_b32 s62, 43980466")
    A("s_mov_b32 s63, 3125")
    A("s_mov_b32 s64, 0xe0000000")
    A("v_mov_b32 v50, 1")
    A("s_barrier")
    A(f"s_waitcnt vmcnt({4+npf})")
    stamp(A, o, 1, 72)
    for i in range(4):
        A(f"v_mul_hi_u32 v{52+i}, v{4+i}, s62")
    for i in range(4):
        A(f"v_lshlrev_b32 v{20+i}, 2, v{52+i}")
        A(f"ds_add_rtn_u32 v{24+i}, v{20+i}, v50 offset:{K1_HIST}")
    for i in range(4):
        A(f"v_mad_u32_u24 v{52+i}, v{52+i}, s63, 31")
    for i in range(4):
        A(f"v_lshrrev_b32 v{52+i}, 5, v{52+i}")
    for i in range(4):
        A(f"v_sub_u32 v{52+i}, v{4+i}, v{52+i}")
    A(f"s_waitcnt vmcnt({3+npf})")
    R = [28, 32, 36, 40]
    for i in range(4):
        A(f"v_mul_u32_u24 v{56+i}, 0x29f00, v{8+i}")
        A(f"v_lshl_or_b32 v{52+i}, v{52+i}, 19, v{8+i}")
        A(f"v_and_or_b32 v{R[i]+2}, v{56+i}, s64, v{52+i}")
    A(f"s_waitcnt vmcnt({npf})")
    src = [((18, 0), (12, 0), (12, 1), (13, 0)),
           ((18, 1), (13, 1), (14, 0), (14, 1)),
           ((19, 0), (15, 0), (15, 1), (16, 0)),
           ((19, 1), (16, 1), (17, 0), (17, 1))]
    for i in range(4):
        for k, (r, h) in enumerate(src[i]):
            if h == 0:
                A(f"v_lshlrev_b32 v{52+k}, 16, v{r}")
            else:
                A(f"v_and_b32 v{52+k}, 0xffff0000, v{r}")
        for k in range(1, 4):
            A(f"v_mul_f32 v{52+k}, v52, v{52+k}")
        A(f"v_cvt_pk_bf16_f32 v{R[i]}, v52, v53")
        A(f"v_cvt_pk_bf16_f32 v{R[i]+1}, v54, v55")
    A("s_waitcnt lgkmcnt(0)")
    stamp(A, o, 2, 72)
    A("s_barrier")
    A("s_cmp_lt_u32 s61, 64")
    A("s_cbranch_scc0 L_k1_ns")
    A(f"ds_read_b128 v[52:55], v1 offset:{K1_HIST}")
    A("v_lshlrev_b32 v60, 12, v0")
    A("s_waitcnt lgkmcnt(0)")
    A("v_add_u32 v56, v52, v53")
    A("v_add_u32 v57, v56, v54")
    A("v_add_u32 v58, v57, v55")
    A("v_mov_b32 v59, v58")
    A("s_nop 1")
    dpp_scan(A, 59)
    A("v_sub_u32 v44, v59, v58")
    A("v_add_u32 v45, v44, v52")
    A("v_add_u32 v46, v44, v56")
    A("v_add_u32 v47, v44, v57")
    A(f"ds_write_b128 v1, v[44:47] offset:{K1_BASE}")
    for i in range(4):
        A(f"v_lshl_or_b32 v{52+i}, v{52+i}, 16, v{44+i}")
        A(f"buffer_store_dword v{52+i}, v60, s[44:47], s60 offen offset:{1024*i}")
    A("s_waitcnt lgkmcnt(0)")
    A.label("L_k1_ns")
    A("s_barrier")
    stamp(A, o, 3, 72)
    for i in range(4):
        A(f"ds_read_b32 v{56+i}, v{20+i} offset:{K1_BASE}")
    A(f"s_mul_i32 s56, s22, {CHB}")
    A("s_add_u32 s57, s56, 9600")
    A("s_add_u32 s58, s56, 19200")
    A("s_add_u32 s59, s56, 28800")
    A("v_mul_u32_u24 v2, 12, v0")
    for i in range(4):
        A(f"s_waitcnt lgkmcnt(3)")
        A(f"v_add_lshl_u32 v{56+i}, v{56+i}, v{24+i}, 4")
        A(f"ds_write_b96 v{56+i}, {vr(R[i],3)} offset:{K1_STG}")
    A("s_waitcnt lgkmcnt(0)")
    A("s_barrier")
    stamp(A, o, 4, 72)
    for i in range(4):
        A(f"ds_read_b96 {vr(4+4*i,3)}, v1 offset:{K1_STG+12800*i}")
    for i in range(4):
        A(f"s_waitcnt lgkmcnt({3-i})")
        A(f"buffer_store_dwordx3 {vr(4+4*i,3)}, v2, s[44:47], s{56+i} offen")
    if o.stamps:
        stamp(A, o, 5, 72)
        A("s_waitcnt vmcnt(0)")
        stamp(A, o, 6, 72)
        A("s_lshr_b32 s61, s61, 6")
        A("s_lshl_b32 s62, s2, 4")
        A("s_add_u32 s61, s61, s62")
        stamp_out(A, o, 7, 72, 20, 21, 24, 61, 0)
    A("s_endpgm")

    A.label("L_k1_wprep")
    A("v_cmp_gt_u32 vcc, 512, v0")
    A("s_and_b64 exec, exec, vcc")
    A("s_cbranch_execz L_k1_end")
    A("s_sub_u32 s23, s22, 250")
    A("s_min_u32 s24, s23, 4")
    A("s_lshl_b32 s24, s24, 7")
    A("s_and_b32 s25, s23, 1")
    A("s_lshl_b32 s25, s25, 13")
    A("s_cmp_ge_u32 s23, 4")
    A("s_cselect_b32 s25, 16384, s25")
    A("s_cmp_eq_u32 s23, 5")
    A("s_cselect_b32 s26, 0x80000000, 0")
    A("s_lshl_b32 s27, s23, 13")
    A(f"s_add_u32 s27, s27, {WFOFF}")
    A("v_lshrrev_b32 v4, 6, v0")
    A("v_and_b32 v5, 63, v0")
    A("v_and_b32 v6, 31, v5")
    A("v_lshrrev_b32 v7, 5, v5")
    A("v_and_b32 v8, 1, v4")
    A("v_lshl_add_u32 v6, v6, 1, v8")
    A("v_bfe_u32 v8, v4, 1, 1")
    A("v_lshl_add_u32 v7, v8, 1, v7")
    A("v_lshrrev_b32 v8, 2, v4")
    A("v_lshlrev_b32 v8, 2, v8")
    A("v_lshl_add_u32 v7, v7, 4, v8")
    A("v_lshlrev_b32 v9, 1, v7")
    A("v_lshlrev_b32 v10, 6, v7")
    A("v_add_lshl_u32 v10, v10, v6, 1")
    A("v_mov_b32 v11, 0")
    A("v_lshlrev_b32 v30, 10, v0")
    A("s_waitcnt lgkmcnt(0)")
    srd(A, 44, 20, 21, WS_USED)
    srd(A, 32, 14, 15, 640)
    srd(A, 36, 16, 17, 128 * 128)
    srd(A, 40, 18, 19, 192 * 128)
    A("buffer_load_dwordx2 v[12:13], v9, s[32:35], s24 offen")
    A("buffer_load_dwordx2 v[14:15], v9, s[32:35], s24 offen offset:16")
    A("s_cmp_ge_u32 s23, 2")
    A("s_cbranch_scc1 L_k1_w1")
    for ii in range(8):
        A(f"buffer_load_ushort v{16+ii}, v10, s[36:39], s25 offen offset:{((ii>>2)*8+(ii&3))*128}")
    A("s_branch L_k1_w2")
    A.label("L_k1_w1")
    for ii in range(8):
        A(f"buffer_load_ushort v{16+ii}, v10, s[40:43], s25 offen offset:{((ii>>2)*8+(ii&3))*128}")
    A.label("L_k1_w2")
    A("v_cmp_gt_u32 vcc, 256, v0")
    A("s_and_saveexec_b64 s[28:29], vcc")
    A("s_cbranch_execz L_k1_w3")
    A("buffer_store_dword v11, v30, s[44:47], s60 offen")
    A.label("L_k1_w3")
    A("s_mov_b64 exec, s[28:29]")
    A("s_waitcnt vmcnt(0)")
    for ii in range(8):
        r = 12 + (ii >> 1)
        if ii & 1:
            A(f"v_and_b32 v24, 0xffff0000, v{r}")
        else:
            A(f"v_lshlrev_b32 v24, 16, v{r}")
        A(f"v_lshlrev_b32 v{16+ii}, 16, v{16+ii}")
        A(f"v_mul_f32 v{16+ii}, v24, v{16+ii}")
        A(f"v_xor_b32 v{16+ii}, s26, v{16+ii}")
    for k in range(4):
        A(f"v_cvt_pk_bf16_f32 v{24+k}, v{16+2*k}, v{17+2*k}")
    A("buffer_store_dwordx4 v[24:27], v1, s[44:47], s27 offen")
    A.label("L_k1_end")
    A("s_endpgm")
    return A, 64, (96 if o.stamps else 72)

L_NI, L_CNT, L_RG, L_FLAG = 0, 2048, 2304, 2432
L_NODE, L_OV, L_DUM, L_STR = 2560, 3072, 3840, 3968
STRB = 848
L_WF = 8192
L_TBL = L_WF + 6 * 8192
WREG = 26000
GCAP = 40
K2_LDS = L_TBL + 4 * WREG
NSLOT = 22
OVCAP = 24
BIG = 0x7ffffff0

S_X, S_WS, S_OUT = 4, 8, 12
S_W, S_BIN, S_NST, S_NN, S_WB, S_512, S_S, S_SEND = 16, 17, 18, 19, 20, 21, 22, 23
S_MASK = 24
S_VAL = 34
S_T0, S_T1, S_T2, S_T3 = 78, 79, 80, 81
S_MODE, S_B, S_NB, S_TAB = 82, 83, 84, 85
V_LANE, V_LOFF, V_HOFF, V_SP, V_Q, V_TP = 0, 1, 2, 3, 4, 5
V_SEL, V_A, V_C = 8, 12, 16
V_AD = 26
V_P = 28
V_S = 32
V_RING = 52

def acc(m):
    return ar(16 * m, 16) if m < 16 else vr(112 + 16 * (m - 16), 16)

def rec(u):
    return 44 if u == 0 else 112 + 6 * (u - 1)
def ent(u):
    return 240 + u
V_I = 6
V_LB = 7
V_PF = 31
V_TID = 35
V_EL = 39
V_MAX = 43
V_T = 50
V_E0 = V_T + 22

def k2(o):
    nph = o.nph
    ring = 112 - 20 * nph
    vS = V_S
    assert vS + 4 * nph <= ring
    A = Asm()
    guard(A, o, "k2")
    A("s_cmp_ge_u32 s2, 256")
    A("s_cbranch_scc1 L_k2_end")
    stamp(A, o, 0)
    A("s_load_dwordx2 s[4:5], s[0:1], 0")
    A("s_load_dwordx2 s[8:9], s[0:1], 88")
    A("s_load_dwordx2 s[12:13], s[0:1], 72")
    A(f"v_mov_b32 v{V_TID}, v0")
    A("v_lshrrev_b32 v1, 6, v0")
    A("v_and_b32 v0, 63, v0")
    A(f"v_readfirstlane_b32 s{S_W}, v1")
    A(f"s_and_b32 s{S_BIN}, s2, 7")
    A(f"s_lshl_b32 s{S_BIN}, s{S_BIN}, 5")
    A(f"s_lshr_b32 s{S_T0}, s2, 3")
    A(f"s_add_u32 s{S_BIN}, s{S_BIN}, s{S_T0}")
    A(f"s_mul_i32 s{S_NST}, s{S_BIN}, 3125")
    A(f"s_add_u32 s{S_NN}, s{S_NST}, {3125+31}")
    A(f"s_add_u32 s{S_NST}, s{S_NST}, 31")
    A(f"s_lshr_b32 s{S_NST}, s{S_NST}, 5")
    A(f"s_lshr_b32 s{S_NN}, s{S_NN}, 5")
    A(f"s_sub_u32 s{S_NN}, s{S_NN}, s{S_NST}")
    A(f"s_mul_i32 s{S_WB}, s{S_W}, {WREG}")
    A(f"s_add_u32 s{S_WB}, s{S_WB}, {L_TBL}")
    A(f"s_lshl_b32 s{S_TAB}, s{S_BIN}, 10")
    A(f"s_add_u32 s{S_TAB}, s{S_TAB}, {TABOFF}")
    A(f"s_mov_b32 s{S_512}, 512")
    A(f"s_mov_b32 s{S_MODE}, 0")
    A(f"s_mov_b32 s{S_B}, 0")
    A(f"s_mov_b32 s{S_NB}, 0")
    A(f"s_mov_b32 s6, {XBYTES}")
    A("s_mov_b32 s7, 0x20000")
    A(f"s_mov_b32 s10, {WS_USED}")
    A("s_mov_b32 s11, 0x20000")
    A(f"s_mov_b32 s14, {XBYTES}")
    A("s_mov_b32 s15, 0x20000")
    A(f"v_and_b32 v{V_I}, 15, v0")
    T = V_T
    A(f"v_lshrrev_b32 v{T}, 4, v{V_TID}")
    A(f"v_lshlrev_b32 v{T+1}, 6, v{T}")
    A(f"v_lshlrev_b32 v{T+2}, 2, v{V_TID}")
    A(f"s_mov_b32 s{S_T0}, {16*CHB}")
    A(f"v_mul_lo_u32 v{V_LB}, v{T}, s{S_T0}")
    A(f"v_mad_u32_u24 v{V_LB}, v{V_I}, 12, v{V_LB}")
    A("s_waitcnt lgkmcnt(0)")
    for k in range(4):
        A(f"buffer_load_dwordx4 {vr(ent(4*k),4)}, v{T+1}, s[8:11], s{S_TAB} offen offset:{16*k}")
    A(f"buffer_load_dword v{V_EL}, v{T+2}, s[8:11], s{S_TAB} offen")
    A(f"v_and_b32 v{V_LOFF}, 31, v0")
    A(f"v_lshrrev_b32 v{V_HOFF}, 5, v0")
    A(f"v_lshrrev_b32 v{T}, 3, v{V_LOFF}")
    A(f"v_mul_u32_u24 v{T}, 0x202, v{T}")
    A(f"v_add_u32 v{T}, 0x100, v{T}")
    A(f"v_or_b32 v{T+1}, 0x0c0c0000, v{T}")
    A(f"v_lshlrev_b32 v{T}, 16, v{T}")
    A(f"v_or_b32 v{T}, 0x0c0c, v{T}")
    A(f"v_and_b32 v{T+2}, 1, v0")
    A(f"v_cmp_eq_u32 vcc, 1, v{T+2}")
    A(f"v_bfe_u32 v{T+2}, v0, 1, 2")
    A(f"v_mov_b32 v{T+3}, 0x0c0c0c0c")
    A(f"v_cndmask_b32 v{T}, v{T+1}, v{T}, vcc")
    for r in range(4):
        A(f"v_cmp_eq_u32 vcc, {r}, v{T+2}")
        A(f"v_mov_b32 v{V_A+r}, 0")
        A("s_nop 0")
        A(f"v_cndmask_b32 v{V_SEL+r}, v{T+3}, v{T}, vcc")
    A(f"v_lshlrev_b32 v{V_LOFF}, 4, v{V_LOFF}")
    A(f"v_lshlrev_b32 v{V_HOFF}, 6, v{V_HOFF}")
    for m in range(16):
        A(f"v_mfma_f32_32x32x16_bf16 {acc(m)}, {vr(V_A,4)}, {vr(V_A,4)}, 0")

    A.label("L_batch")
    A(f"v_and_b32 v{T}, 3, v0")
    A(f"v_cmp_eq_u32 vcc, 3, v{T}")
    A(f"v_lshl_add_u32 v{T+1}, v0, 4, s{S_WB}")
    A(f"v_mov_b32 v{T+8}, 0")
    A(f"v_cndmask_b32 v{T+4}, 0, -1, vcc")
    A(f"v_mov_b32 v{T+5}, v{T+4}")
    A(f"v_mov_b32 v{T+6}, v{T+4}")
    A(f"v_mov_b32 v{T+7}, v{T+4}")
    A(f"v_mov_b32 v{T+9}, 0")
    A(f"v_mov_b32 v{T+10}, 0")
    A(f"v_mov_b32 v{T+11}, 0")
    A(f"v_lshlrev_b32 v{T+2}, 4, v{V_TID}")
    A(f"v_cmp_gt_u32 vcc, 160, v{V_TID}")
    A("s_and_saveexec_b64 s[78:79], vcc")
    A(f"ds_write_b128 v{T+2}, {vr(T+8,4)} offset:{L_NI}")
    A("s_mov_b64 exec, s[78:79]")
    A(f"s_mul_i32 s{S_T2}, s{S_W}, 192")
    A(f"s_mul_i32 s{S_T3}, s{S_W}, {STRB}")
    A(f"v_lshl_add_u32 v{T+2}, v0, 4, s{S_T2}")
    A(f"v_lshl_add_u32 v{T+3}, v0, 4, s{S_T3}")
    A(f"v_mov_b32 v{T+12}, {L_DUM}")
    A(f"v_mov_b32 v{T+13}, {L_DUM}")
    A(f"v_mov_b32 v{T+14}, {L_DUM}")
    A(f"v_mov_b32 v{T+15}, {L_DUM}")
    A(f"v_lshlrev_b32 v{T+16}, 4, v0")
    A(f"s_lshl_b32 s{S_T2}, s{S_W}, 7")
    A(f"v_lshl_add_u32 v{T+17}, v0, 2, s{S_T2}")
    A(f"v_mov_b32 v{T+18}, {BIG}")
    A("s_mov_b64 exec, 0xfff")
    A(f"ds_write_b128 v{T+2}, {vr(T+8,4)} offset:{L_OV}")
    A("s_mov_b32 exec_lo, -1")
    A("s_mov_b32 exec_hi, 0x1fffff")
    A(f"ds_write_b128 v{T+3}, {vr(T+12,4)} offset:{L_STR}")
    A("s_mov_b32 exec_hi, 0")
    A(f"ds_write_b32 v{T+17}, v{T+18} offset:{L_NODE}")
    A("s_mov_b32 exec_lo, 0xff")
    A(f"s_cmp_eq_u32 s{S_W}, 0")
    A("s_cbranch_scc0 L_nodum")
    A(f"ds_write_b128 v{T+16}, {vr(T+4,4)} offset:{L_DUM}")
    A.label("L_nodum")
    A("s_mov_b64 exec, -1")
    for k in range(25):
        A(f"ds_write_b128 v{T+1}, {vr(T+4,4)} offset:{1024*k}")
    A(f"v_mov_b32 v{V_MAX}, 0")
    A(f"s_cmp_eq_u32 s{S_MODE}, 0")
    A("s_cbranch_scc0 L_slow_entries")

    def load_rec(u, e, soff):
        m = S_VAL + 2 * u
        A(f"v_mad_u32_u16 v{V_AD+(u&1)}, v{e}, 12, v{V_LB}")
        A(f"v_cmpx_lt_u32_sdwa {sr(m,2)}, v{V_I}, v{e} src0_sel:DWORD src1_sel:WORD_1")
        A(f"buffer_load_dwordx3 {vr(rec(u),3)}, v{V_AD+(u&1)}, s[8:11], {soff} offen")
        A("s_mov_b64 exec, -1")
    A("s_waitcnt vmcnt(0)")
    stamp(A, o, 1)
    A(f"s_mov_b32 s{S_T0}, 0")
    for u in range(16):
        load_rec(u, ent(u), f"s{S_T0}")
        if u < 15:
            A(f"s_add_u32 s{S_T0}, s{S_T0}, {CHB}")
    A(f"v_lshrrev_b32 v{T}, 16, v{V_EL}")
    A(f"v_cmp_lt_u32 s[24:25], 16, v{T}")
    A(f"v_cmp_lt_u32 s[26:27], 32, v{T}")
    A(f"v_cmp_lt_u32 s[28:29], 48, v{T}")
    A(f"s_mov_b32 s{S_T0}, {CHB}")
    A(f"v_mul_lo_u32 v{T+1}, v{V_TID}, s{S_T0}")
    A(f"v_mad_u32_u16 v{T+2}, v{V_EL}, 12, v{T+1}")
    A(f"v_mbcnt_lo_u32_b32 v{T+6}, s24, 0")
    A(f"v_mbcnt_hi_u32_b32 v{T+6}, s25, v{T+6}")
    A(f"s_bcnt1_i32_b64 s{S_T0}, s[24:25]")
    A(f"s_bcnt1_i32_b64 s{S_T1}, s[26:27]")
    A(f"s_add_u32 s{S_T1}, s{S_T1}, s{S_T0}")
    A(f"s_mul_i32 s{S_T2}, s{S_W}, 192")
    A(f"v_mbcnt_lo_u32_b32 v{T+7}, s26, 0")
    A(f"v_mbcnt_hi_u32_b32 v{T+7}, s27, v{T+7}")
    A(f"v_add_u32 v{T+2}, 192, v{T+2}")
    A(f"v_add_u32 v{T+3}, -16, v{T}")
    A(f"v_add_u32 v{T+4}, 192, v{T+2}")
    A(f"v_add_u32 v{T+5}, -16, v{T+3}")
    A(f"v_add_u32 v{T+7}, s{S_T0}, v{T+7}")
    A(f"v_lshl_add_u32 v{T+6}, v{T+6}, 3, s{S_T2}")
    A(f"v_lshl_add_u32 v{T+7}, v{T+7}, 3, s{S_T2}")
    A(f"v_lshrrev_b32 v{T+8}, 4, v0")
    A(f"v_lshl_add_u32 v{T+8}, v{T+8}, 3, s{S_T2}")
    A(f"s_cmp_gt_u32 s{S_T1}, {OVCAP}")
    A("s_cbranch_scc1 L_ov_fail")
    A("s_cmp_lg_u64 s[28:29], 0")
    A("s_cbranch_scc1 L_ov_fail")
    A("s_mov_b64 exec, s[24:25]")
    A(f"ds_write_b64 v{T+6}, {vr(T+2,2)} offset:{L_OV}")
    A("s_mov_b64 exec, s[26:27]")
    A(f"ds_write_b64 v{T+7}, {vr(T+4,2)} offset:{L_OV}")
    A("s_mov_b64 exec, -1")
    A.label("L_ov_done")
    for k in range(6):
        A(f"ds_read_b64 {vr(T+10+2*k,2)}, v{T+8} offset:{L_OV+32*k}")
    for k in range(6):
        u = 16 + k
        m = S_VAL + 2 * u
        A(f"s_waitcnt lgkmcnt({5-k})")
        A(f"v_mad_u32_u24 v{V_AD+(u&1)}, v{V_I}, 12, v{T+10+2*k}")
        A(f"v_cmpx_lt_u32 {sr(m,2)}, v{V_I}, v{T+11+2*k}")
        A(f"buffer_load_dwordx3 {vr(rec(u),3)}, v{V_AD+(u&1)}, s[8:11], 0 offen")
        A("s_mov_b64 exec, -1")
    A(f"v_lshlrev_b32 v{T}, 4, v0")
    A(f"s_mul_i32 s{S_T0}, s{S_W}, 12288")
    A(f"s_add_u32 s{S_T1}, s{S_T0}, {WFOFF}")
    A(f"s_add_u32 s{S_T0}, s{S_T0}, {L_WF}")
    for k in range(3):
        A(f"s_mov_b32 m0, s{S_T0}")
        A(f"s_add_u32 s{S_T0}, s{S_T0}, 4096")
        for kk in range(4):
            A(f"buffer_load_dwordx4 v{T}, s[8:11], s{S_T1} offen offset:{1024*kk} lds")
        if k < 2:
            A(f"s_add_u32 s{S_T1}, s{S_T1}, 4096")
    npf = o.k2_prefetch
    if npf:
        A(f"s_and_b32 s{S_T0}, s{S_BIN}, 31")
        A(f"s_mul_i32 s{S_T0}, s{S_T0}, {npf*4*64*128}")
        A(f"v_lshlrev_b32 v{T+1}, 7, v{V_TID}")
        for k in range(npf):
            A(f"buffer_load_dword v{V_PF}, v{T+1}, s[4:7], s{S_T0} offen")
            if k < npf - 1:
                A(f"s_add_u32 s{S_T0}, s{S_T0}, {256*128}")
    A("s_waitcnt lgkmcnt(0)")
    A("s_barrier")
    def phase_a(u, younger):
        r = rec(u)
        A(f"s_mov_b64 exec, {sr(S_VAL+2*u,2)}")
        A(f"s_waitcnt vmcnt({younger})")
        A(f"v_lshrrev_b32 v{r+3}, 26, v{r+2}")
        A(f"v_bfe_u32 v{V_AD+(u&1)}, v{r+2}, 15, 11")
        A(f"v_lshlrev_b64 {vr(r+4,2)}, v{r+3}, 1")
        A(f"ds_add_rtn_u64 {vr(r+4,2)}, v{V_AD+(u&1)}, {vr(r+4,2)} offset:{L_NI}")
    for u in range(NSLOT):
        phase_a(u, NSLOT - 1 - u + 12 + npf)
    A.label("L_a_done")
    A("s_mov_b64 exec, -1")
    A("s_waitcnt lgkmcnt(0)")
    stamp(A, o, 2)
    A("s_barrier")
    A(f"s_cmp_eq_u32 s{S_W}, 0")
    A("s_cbranch_scc0 L_node_done")
    X = [T, T + 20]
    A(f"v_lshlrev_b32 v{T+40}, 4, v0")
    A(f"ds_read_b64 {vr(X[0],2)}, v{T+40} offset:{L_NI}")
    A(f"ds_read_b64 {vr(X[1],2)}, v{T+40} offset:{L_NI+1024}")
    A(f"v_mov_b32 v{X[0]+12}, v0")
    A(f"v_add_u32 v{X[1]+12}, 64, v0")
    A(f"s_mov_b32 s{S_T0}, 0x01010101")
    A(f"v_mov_b32 v{T+41}, 1")
    for k, x in enumerate(X):
        A(f"s_waitcnt lgkmcnt({1-k})")
        A(f"v_cmp_gt_u32 vcc, s{S_NN}, v{x+12}")
        A(f"v_sad_u8 v{x+13}, v{x}, 0, 0")
        A(f"v_sad_u8 v{x+2}, v{x+1}, 0, v{x+13}")
        A(f"v_add_u32 v{x+2}, 1, v{x+2}")
        A(f"v_lshrrev_b32 v{x+3}, 1, v{x+2}")
        A(f"v_min_u32 v{x+3}, {GCAP}, v{x+3}")
        A(f"v_sub_u32 v{x+4}, 62, v{x+3}")
        A(f"v_cndmask_b32 v{x+4}, 63, v{x+4}, vcc")
        A(f"v_lshlrev_b32 v{x+4}, 2, v{x+4}")
        A(f"v_add_u32 v{x+14}, s{S_NST}, v{x+12}")
        A(f"v_lshlrev_b32 v{x+14}, 9, v{x+14}")
        A(f"v_mov_b32 v{x+15}, {BIG}")
        A(f"v_cndmask_b32 v{x+15}, v{x+15}, v{x+14}, vcc")
        A(f"ds_add_rtn_u32 v{x+5}, v{x+4}, v{T+41} offset:{L_CNT}")
        A(f"v_lshlrev_b32 v{x+8}, 8, v{x}")
        A(f"v_lshl_or_b32 v{x+9}, v{x+1}, 8, v{x+13}")
        A(f"v_mul_lo_u32 v{x+8}, v{x+8}, s{S_T0}")
        A(f"v_mul_lo_u32 v{x+9}, v{x+9}, s{S_T0}")
    A(f"s_cmp_eq_u32 s{S_MODE}, 0")
    A("s_cbranch_scc1 L_sort")
    A("s_waitcnt lgkmcnt(0)")
    A(f"v_mov_b32 v{X[0]+5}, v{X[0]+12}")
    A(f"v_mov_b32 v{X[1]+5}, v{X[1]+12}")
    A("s_branch L_sorted")
    A.label("L_sort")
    A(f"v_lshlrev_b32 v{T+42}, 2, v0")
    A(f"ds_read_b32 v{T+43}, v{T+42} offset:{L_CNT}")
    A("s_waitcnt lgkmcnt(0)")
    A(f"v_mov_b32 v{T+44}, v{T+43}")
    A("s_nop 1")
    dpp_scan(A, T + 44)
    A(f"v_sub_u32 v{T+44}, v{T+44}, v{T+43}")
    A(f"ds_write_b32 v{T+42}, v{T+44} offset:{L_CNT}")
    A(f"ds_read_b32 v{X[0]+13}, v{X[0]+4} offset:{L_CNT}")
    A(f"ds_read_b32 v{X[1]+13}, v{X[1]+4} offset:{L_CNT}")
    A("s_waitcnt lgkmcnt(1)")
    A(f"v_add_u32 v{X[0]+5}, v{X[0]+5}, v{X[0]+13}")
    A("s_waitcnt lgkmcnt(0)")
    A(f"v_add_u32 v{X[1]+5}, v{X[1]+5}, v{X[1]+13}")
    A.label("L_sorted")
    for k, x in enumerate(X):
        A(f"v_cmp_gt_u32 vcc, 100, v{x+5}")
        A(f"v_mul_u32_u24 v{x+6}, 205, v{x+5}")
        A(f"v_lshrrev_b32 v{x+6}, 10, v{x+6}")
        A(f"v_mul_u32_u24 v{x+13}, 5, v{x+6}")
        A(f"v_sub_u32 v{x+5}, v{x+5}, v{x+13}")
        A(f"v_bfe_u32 v{x+13}, v{x+6}, 2, 1")
        A(f"v_mul_u32_u24 v{x+13}, 3, v{x+13}")
        A(f"v_and_b32 v{x+14}, 3, v{x+6}")
        A(f"v_xor_b32 v{x+13}, v{x+13}, v{x+14}")
        A(f"v_lshrrev_b32 v{x+6}, 2, v{x+6}")
        A(f"v_lshl_add_u32 v{x+7}, v{x+13}, 3, v{x+6}")
        A(f"v_lshlrev_b32 v{x+7}, 2, v{x+7}")
        A(f"v_mad_u32_u24 v{x+14}, v{x+6}, 5, v{x+5}")
        A(f"v_lshl_add_u32 v{x+14}, v{x+13}, 5, v{x+14}")
        A(f"v_lshlrev_b32 v{x+14}, 2, v{x+14}")
        A(f"s_mov_b64 exec, vcc")
        A(f"ds_max_u32 v{x+7}, v{x+3} offset:{L_RG}")
        A(f"ds_write_b32 v{x+14}, v{x+15} offset:{L_NODE}")
        A("s_mov_b64 exec, -1")
        A(f"v_mul_u32_u24 v{x+13}, {WREG}, v{x+13}")
        A(f"v_mul_u32_u24 v{x+6}, {GCAP*128}, v{x+6}")
        A(f"v_lshl_add_u32 v{x+10}, v{x+5}, 3, v{x+13}")
        A(f"v_add_u32 v{x+10}, v{x+10}, v{x+6}")
        A(f"v_add_u32 v{x+10}, {L_TBL}, v{x+10}")
        A(f"v_mul_u32_u24 v{x+5}, 6, v{x+5}")
        A(f"v_sub_u32 v{x+5}, 48, v{x+5}")
        A(f"v_cvt_f32_u32 v{x+3}, v{x+3}")
        A(f"v_rcp_f32 v{x+3}, v{x+3}")
    for k, x in enumerate(X):
        A(f"ds_read_b32 v{x+13}, v{x+7} offset:{L_RG}")
    A(f"s_mov_b32 s{S_T0}, 0xffffff")
    for k, x in enumerate(X):
        A(f"s_waitcnt lgkmcnt({1-k})")
        A(f"v_lshlrev_b32 v{x+13}, 15, v{x+13}")
        A(f"v_cvt_f32_u32 v{x+13}, v{x+13}")
        A(f"v_mul_f32 v{x+13}, v{x+13}, v{x+3}")
        A(f"v_cvt_u32_f32 v{x+13}, v{x+13}")
        A(f"v_max_u32 v{x+13}, 0x8000, v{x+13}")
        A(f"v_and_b32 v{x+13}, s{S_T0}, v{x+13}")
        A(f"v_lshl_or_b32 v{x+11}, v{x+5}, 24, v{x+13}")
        A(f"ds_write_b128 v{T+40}, {vr(x+8,4)} offset:{L_NI+1024*k}")
    A("s_waitcnt lgkmcnt(0)")
    A.label("L_node_done")
    stamp(A, o, 3)
    A("s_barrier")
    A(f"s_lshl_b32 s{S_T2}, s{S_W}, 5")
    A(f"v_mov_b32 v{T+40}, s{S_T2}")
    A(f"ds_read_b128 {vr(T+32,4)}, v{T+40} offset:{L_RG}")
    A(f"ds_read_b32 v{T+36}, v{T+40} offset:{L_RG+16}")
    DEP = 4
    NI = lambda u: T + 4 * (u % (DEP + 1))
    TX = T + 20
    def s_read(u):
        A(f"s_mov_b64 exec, {sr(S_VAL+2*u,2)}")
        A(f"v_bfe_u32 v{V_AD+(u&1)}, v{rec(u)+2}, 15, 11")
        A(f"ds_read_b128 {vr(NI(u),4)}, v{V_AD+(u&1)} offset:{L_NI}")
    def s_proc(u, cnt):
        r = rec(u); n = NI(u)
        a, b = TX + 2 * (u & 1), TX + 4 + 2 * (u & 1)
        A(f"s_mov_b64 exec, {sr(S_VAL+2*u,2)}")
        A(f"v_lshrrev_b64 {vr(r+4,2)}, v{r+3}, {vr(r+4,2)}")
        A(f"s_waitcnt lgkmcnt({cnt})")
        A(f"v_lshrrev_b64 {vr(n,2)}, v{r+3}, {vr(n,2)}")
        A(f"v_add_u32_sdwa v{a}, v{n}, v{r+4} dst_sel:DWORD dst_unused:UNUSED_PAD src0_sel:BYTE_0 src1_sel:BYTE_0")
        A(f"v_or_b32 v{a+1}, 1, v{a}")
        A(f"v_mul_u32_u24 v{a+1}, v{a+1}, v{n+3}")
        A(f"v_lshrrev_b32 v{a+1}, 15, v{a+1}")
        A(f"v_bfi_b32 v{a+1}, 1, v{a}, v{a+1}")
        A(f"v_lshl_add_u32 v{b}, v{a+1}, 6, v{n+2}")
        A(f"v_add_u32_sdwa v{b+1}, v{b}, v{n+3} dst_sel:DWORD dst_unused:UNUSED_PAD src0_sel:DWORD src1_sel:BYTE_3")
        A(f"v_max_u32 v{V_MAX}, v{V_MAX}, v{a}")
        A(f"ds_write_b64 v{b}, {vr(r,2)}")
        A(f"ds_write_b16 v{b+1}, v{r+2}")
    for u in range(DEP):
        s_read(u)
    for u in range(NSLOT):
        if u + DEP < NSLOT:
            s_read(u + DEP)
        after = min(u, DEP) * 2 + min(DEP, NSLOT - 1 - u)
        s_proc(u, after)
        if u == 0:
            A(f"s_cmp_eq_u32 s{S_MODE}, 0")
            A("s_cbranch_scc0 L_s_done")
    A.label("L_s_done")
    A("s_mov_b64 exec, -1")
    A(f"v_cmp_le_u32 vcc, {2*GCAP}, v{V_MAX}")
    A(f"v_mov_b32 v{T}, 1")
    A(f"v_mov_b32 v{T+1}, 0")
    A("s_cbranch_vccz L_deg_ok")
    A(f"ds_write_b32 v{T+1}, v{T} offset:{L_FLAG}")
    A.label("L_deg_ok")
    R0 = T + 32
    A("s_waitcnt lgkmcnt(0)")
    A(f"v_max3_u32 v{T}, v{R0}, v{R0+1}, v{R0+2}")
    A(f"v_max3_u32 v{R0}, v{T}, v{R0+3}, v{R0+4}")
    A(f"v_cvt_f32_u32 v{T+1}, v{R0}")
    A(f"v_readfirstlane_b32 s{S_SEND}, v{R0}")
    A(f"v_rcp_f32 v{T+1}, v{T+1}")
    A(f"v_cmp_gt_u32 vcc, v{R0}, v0")
    A(f"v_mul_f32 v{T+1}, 0x47800000, v{T+1}")
    for g in range(5):
        A(f"v_cvt_f32_u32 v{T+2+g}, v{R0+g}")
    for g in range(5):
        A(f"v_mul_f32 v{T+2+g}, v{T+2+g}, v{T+1}")
    for g in range(5):
        A(f"v_cvt_u32_f32 v{T+2+g}, v{T+2+g}")
    for g in range(5):
        A(f"v_add_u32 v{T+2+g}, 2, v{T+2+g}")
    A("s_mov_b64 exec, vcc")
    for g in range(5):
        A(f"v_mul_u32_u24 v{T+8+g}, v0, v{T+2+g}")
    for g in range(5):
        A(f"v_add_u32 v{T+2+g}, v{T+8+g}, v{T+2+g}")
    for g in range(5):
        A(f"v_lshrrev_b32 v{T+8+g}, 16, v{T+8+g}")
        A(f"v_lshrrev_b32 v{T+2+g}, 16, v{T+2+g}")
    for g in range(5):
        A(f"v_cmp_gt_u32 {sr(S_MASK+2*g,2)}, v{T+2+g}, v{T+8+g}")
    A("s_mov_b64 exec, -1")
    A(f"s_mul_i32 s{S_T3}, s{S_W}, {STRB}")
    A(f"v_mov_b32 v{T+1}, 0")
    for g in range(5):
        A(f"v_mbcnt_lo_u32_b32 v{T+1}, s{S_MASK+2*g}, v{T+1}")
        A(f"v_mbcnt_hi_u32_b32 v{T+1}, s{S_MASK+2*g+1}, v{T+1}")
    A(f"v_lshl_add_u32 v{T+1}, v{T+1}, 2, s{S_T3}")
    A(f"s_mov_b32 s{S_T2}, s{S_WB}")
    for g in range(5):
        A(f"v_lshl_add_u32 v{T+8+g}, v{T+8+g}, 7, s{S_T2}")
        A(f"s_mov_b64 exec, {sr(S_MASK+2*g,2)}")
        A(f"ds_write_b32 v{T+1}, v{T+8+g} offset:{L_STR}")
        A(f"v_add_u32 v{T+1}, 4, v{T+1}")
        A("s_mov_b64 exec, -1")
        if g < 4:
            A(f"s_add_u32 s{S_T2}, s{S_T2}, {GCAP*128}")
    A(f"v_mov_b32 v{V_SP}, s{S_T3}")
    A(f"s_min_u32 s{S_SEND}, s{S_SEND}, {GCAP}")
    A(f"s_waitcnt vmcnt({npf}) lgkmcnt(0)")
    A(f"s_cmp_eq_u32 s{S_MODE}, 0")
    A("s_cbranch_scc0 L_nozero")
    for m in range(16, 25):
        A(f"v_mfma_f32_32x32x16_bf16 {acc(m)}, {vr(V_A,4)}, {vr(V_A,4)}, 0")
    A.label("L_nozero")
    stamp(A, o, 4)
    A("s_barrier")
    assert nph in (2, 3)
    A(f"ds_read_b128 v[48:51], v{V_SP} offset:{L_STR}")
    A(f"ds_read_b32 v{V_Q}, v{V_SP} offset:{L_STR+4*(nph+1)}")
    A("v_mov_b32 v46, 0")
    A(f"ds_read_b32 v45, v46 offset:{L_FLAG}")
    A(f"s_mov_b32 s{S_S}, 0")
    A("s_waitcnt lgkmcnt(0)")
    A(f"v_readfirstlane_b32 s{S_T0}, v45")
    A(f"v_add_u32 v47, v48, v{V_HOFF}")
    for t in range(1, nph):
        A(f"v_add_u32 v{V_P+t}, v{48+t}, v{V_HOFF}")
    A(f"v_add_u32 v{V_P}, v{48+nph}, v{V_HOFF}")
    A(f"s_andn2_b32 s{S_T0}, s{S_T0}, s{S_MODE}")
    A(f"s_cmp_lg_u32 s{S_T0}, 0")
    A("s_cbranch_scc1 L_to_slow")
    A(f"s_cmp_eq_u32 s{S_SEND}, 0")
    A("s_cbranch_scc1 L_exit")
    first = [vS + 4, vS + 8, 44][:nph] if nph == 3 else [vS + 4, 44]
    ptrs = [47] + [V_P + t for t in range(1, nph)]
    for t in range(nph):
        A(f"ds_read_b96 {vr(first[t],3)}, v{ptrs[t]} offset:48")
    A(f"ds_read_b96 {vr(vS,3)}, v{V_P} offset:48")
    A(f"ds_read_b128 {vr(V_C,4)}, v47")
    A(f"ds_read_b128 {vr(V_C+4,4)}, v47 offset:16")
    A(f"ds_read_b64 {vr(V_C+8,2)}, v47 offset:32")
    def mad(dst, sreg, j):
        op = " op_sel:[1,0,0,0]" if j & 1 else ""
        A(f"v_mad_u32_u16 v{dst}, v{sreg + (j >> 1)}, s{S_512}, v{V_LOFF}{op}")
    for t in range(nph):
        A(f"s_waitcnt lgkmcnt({nph+3-t})")
        for j in range(5):
            mad(V_AD + (j & 1), first[t], j)
            A(f"buffer_load_dwordx4 {vr(ring+(5*t+j)*4,4)}, v{V_AD+(j&1)}, s[4:7], 0 offen")
    A("s_waitcnt lgkmcnt(0)")
    stamp(A, o, 5)
    NB = 5 * nph
    def blk(g, p):
        for b in range(NB):
            if b % 5 == g and b % nph == p:
                return b
    K = NB - 1
    stubs = []
    for b in range(NB):
        g, p = b % 5, b % nph
        pn = (p + 1) % nph
        A.label(f"L_blk{b}")
        A(f"s_waitcnt lgkmcnt(3)")
        A(f"v_add_u32 v{V_TP}, v{V_Q}, v{V_HOFF}")
        A(f"ds_read_b96 {vr(vS+4*pn,3)}, v{V_TP} offset:48")
        A(f"ds_read_b32 v{V_Q}, v{V_SP} offset:{L_STR+4*(p+2+nph)}")
        for j in range(5):
            m = 5 * g + j
            B = ring + (5 * p + j) * 4
            if j in (0, 2, 4):
                A(f"s_waitcnt vmcnt({K}) lgkmcnt(4)")
            else:
                A(f"s_waitcnt vmcnt({K})")
            c = V_C + 2 * j
            for r in range(4):
                A(f"v_perm_b32 v{V_A+r}, v{c+1}, v{c}, v{V_SEL+r}")
            mad(V_AD + (j & 1), vS + 4 * p, j)
            if j == 0:
                if g < 4:
                    A(f"s_bitcmp1_b64 {sr(S_MASK+2*(g+1),2)}, s{S_S}")
                else:
                    A(f"s_add_u32 s{S_S}, s{S_S}, 1")
            elif j == 1:
                A(f"ds_read_b128 {vr(V_C,4)}, v{V_P+pn}")
            elif j == 2:
                if g == 4:
                    A(f"s_cmp_lt_u32 s{S_S}, s{S_SEND}")
                elif p == nph - 1:
                    A(f"v_add_u32 v{V_SP}, {4*nph}, v{V_SP}")
                else:
                    A("s_nop 0")
            elif j == 3:
                A(f"ds_read_b128 {vr(V_C+4,4)}, v{V_P+pn} offset:16")
            else:
                A(f"ds_read_b64 {vr(V_C+8,2)}, v{V_P+pn} offset:32")
            A(f"v_mfma_f32_32x32x16_bf16 {acc(m)}, {vr(V_A,4)}, {vr(B,4)}, {acc(m)}")
            A(f"buffer_load_dwordx4 {vr(B,4)}, v{V_AD+(j&1)}, s[4:7], 0 offen")
        A(f"v_mov_b32 v{V_P+pn}, v{V_TP}")
        if g == 4 and p == nph - 1:
            A(f"v_add_u32 v{V_SP}, {4*nph}, v{V_SP}")
        if g < 4:
            A(f"s_cbranch_scc0 L_stub{b}")
            stubs.append(b)
        else:
            A("s_cbranch_scc0 L_exit")
        if b == NB - 1:
            A("s_branch L_blk0")
    for b in stubs:
        g, p = b % 5, b % nph
        pn = (p + 1) % nph
        A.label(f"L_stub{b}")
        for g2 in range(g + 2, 5):
            A(f"s_bitcmp1_b64 {sr(S_MASK+2*g2,2)}, s{S_S}")
            A(f"s_cbranch_scc1 L_blk{blk(g2,pn)}")
        A(f"s_add_u32 s{S_S}, s{S_S}, 1")
        A(f"s_cmp_lt_u32 s{S_S}, s{S_SEND}")
        A(f"s_cbranch_scc1 L_blk{blk(0,pn)}")
        if b != stubs[-1]:
            A("s_branch L_exit")
    A.label("L_exit")
    A("s_waitcnt vmcnt(0) lgkmcnt(0)")
    stamp(A, o, 6)
    A(f"s_cmp_eq_u32 s{S_MODE}, 0")
    A("s_cbranch_scc0 L_next_batch")
    A.label("L_epi")
    epilogue(A, o)
    if o.stamps:
        A("s_waitcnt vmcnt(0)")
        stamp(A, o, 7)
        A(f"s_lshl_b32 s{S_T0}, s2, 2")
        A(f"s_add_u32 s{S_T0}, s{S_T0}, s{S_W}")
        stamp_out(A, o, 8, 86, 8, 9, 24, S_T0, 1 << 18)
    A("s_endpgm")

    A.label("L_ov_fail")
    A(f"v_mov_b32 v{T}, 1")
    A(f"v_mov_b32 v{T+1}, 0")
    A(f"ds_write_b32 v{T+1}, v{T} offset:{L_FLAG}")
    A("s_branch L_ov_done")

    A.label("L_to_slow")
    A(f"v_lshrrev_b32 v{T}, 16, v{V_EL}")
    A(f"v_mov_b32 v{T+1}, 0")
    A(f"ds_max_u32 v{T+1}, v{T} offset:{L_FLAG+4}")
    A("s_waitcnt lgkmcnt(0)")
    A("s_barrier")
    A(f"ds_read_b32 v{T}, v{T+1} offset:{L_FLAG+4}")
    A("s_waitcnt lgkmcnt(0)")
    A(f"v_readfirstlane_b32 s{S_NB}, v{T}")
    A("s_barrier")
    A(f"s_min_u32 s{S_NB}, s{S_NB}, {CH}")
    A(f"s_add_u32 s{S_NB}, s{S_NB}, 15")
    A(f"s_lshr_b32 s{S_NB}, s{S_NB}, 4")
    A(f"s_lshl_b32 s{S_NB}, s{S_NB}, 6")
    A(f"s_mov_b32 s{S_MODE}, 1")
    A(f"s_mov_b32 s{S_B}, 0")
    A("s_branch L_batch")

    A.label("L_next_batch")
    A(f"s_add_u32 s{S_B}, s{S_B}, 1")
    A(f"s_cmp_lt_u32 s{S_B}, s{S_NB}")
    A("s_cbranch_scc1 L_batch")
    A("s_branch L_epi")

    A.label("L_slow_entries")
    A(f"s_and_b32 s{S_T0}, s{S_B}, 15")
    A(f"v_lshrrev_b32 v{T+20}, 4, v{V_TID}")
    A(f"v_lshlrev_b32 v{T+20}, 6, v{T+20}")
    A(f"s_lshl_b32 s{S_T1}, s{S_T0}, 2")
    A(f"v_add_u32 v{T+20}, s{S_T1}, v{T+20}")
    A(f"buffer_load_dword v{V_E0}, v{T+20}, s[8:11], s{S_TAB} offen")
    A(f"s_mul_i32 s{S_T0}, s{S_T0}, {CHB}")
    A(f"s_lshr_b32 s{S_T1}, s{S_B}, 6")
    A(f"s_lshl_b32 s{S_T1}, s{S_T1}, 4")
    A(f"s_bfe_u32 s{S_T2}, s{S_B}, 0x20004")
    A(f"s_cmp_eq_u32 s{S_T2}, s{S_W}")
    A(f"s_cselect_b32 s{S_T3}, -1, 0")
    A("s_waitcnt vmcnt(0)")
    A(f"v_lshrrev_b32 v{T+21}, 16, v{V_E0}")
    A(f"v_and_b32 v{V_E0}, 0xffff, v{V_E0}")
    A(f"v_add_u32 v{V_E0}, s{S_T1}, v{V_E0}")
    A(f"v_max_u32 v{T+21}, s{S_T1}, v{T+21}")
    A(f"v_subrev_u32 v{T+21}, s{S_T1}, v{T+21}")
    A(f"v_and_b32 v{T+21}, s{S_T3}, v{T+21}")
    A(f"v_lshl_or_b32 v{V_E0}, v{T+21}, 16, v{V_E0}")
    load_rec(0, V_E0, f"s{S_T0}")
    for u in range(1, 5):
        A(f"s_mov_b64 {sr(S_VAL+2*u,2)}, 0")
    A("s_waitcnt lgkmcnt(0)")
    A("s_barrier")
    phase_a(0, 0)
    A("s_branch L_a_done")
    A.label("L_k2_end")
    A("s_endpgm")
    return A, 512, 102

def epilogue(A, o):
    V_TW, V_TR, V_WR, V_N2 = 1, 2, 3, 4
    PK = lambda m, q: 112 + 8 * (m - 16) + 2 * q
    OUTB = [32, 48, 64, 80, 96, 184, 200, 216]
    OUT = lambda oo, t: OUTB[2 * oo + t]
    TF = [8, 12]
    WFR = [16, 20, 24, 28]
    TMP = 232
    NOD = 240
    A(f"v_and_b32 v5, 31, v0")
    A(f"v_lshrrev_b32 v6, 5, v0")
    A(f"v_lshlrev_b32 v{V_TW}, 3, v5")
    A(f"v_lshl_add_u32 v{V_TW}, v6, 8, v{V_TW}")
    A(f"v_add_u32 v{V_TW}, s{S_WB}, v{V_TW}")
    A(f"v_min_u32 v{V_TR}, 24, v5")
    A(f"v_mul_u32_u24 v{V_TR}, 1040, v{V_TR}")
    A(f"v_lshl_add_u32 v{V_TR}, v6, 4, v{V_TR}")
    A(f"v_add_u32 v{V_TR}, s{S_WB}, v{V_TR}")
    A(f"v_lshlrev_b32 v{V_WR}, 4, v0")
    A(f"v_lshlrev_b32 v{V_N2}, 2, v5")
    A(f"s_lshl_b32 s{S_T0}, s{S_W}, 7")
    A(f"v_lshl_add_u32 v7, v6, 4, s{S_T0}")
    for a in range(3):
        A(f"ds_read_b128 {vr(8+4*a,4)}, v7 offset:{L_NODE+32*a}")
    A(f"ds_read_b32 v20, v7 offset:{L_NODE+96}")
    A("s_nop 1")
    for m in range(16, 25):
        s = 112 + 16 * (m - 16)
        for k in range(8):
            A(f"v_cvt_pk_bf16_f32 v{PK(m,0)+k}, v{s+2*k}, v{s+2*k+1}")
    A("s_waitcnt lgkmcnt(0)")
    for i in range(13):
        A(f"v_add_u32 v{NOD+i}, v{8+i}, v{V_N2}")

    def conv_write(q, lst):
        out = []
        k = 0
        for m in range(25):
            off = m * 1040 + (q & 1) * 512
            if m < 16:
                t = TMP + 4 * (k & 1); k += 1
                for i in range(4):
                    out.append(f"v_accvgpr_read_b32 v{t+i}, a{16*m+4*q+i}")
                out.append(f"v_cvt_pk_bf16_f32 v{t}, v{t}, v{t+1}")
                out.append(f"v_cvt_pk_bf16_f32 v{t+1}, v{t+2}, v{t+3}")
                out.append(f"ds_write_b64 v{V_TW}, {vr(t,2)} offset:{off}")
            else:
                out.append(f"ds_write_b64 v{V_TW}, {vr(PK(m,q),2)} offset:{off}")
        return out

    plan = {0: [(0, 0, 0), (1, 3, 1), (2, 3, 2), (3, 3, 3)],
            1: [(0, 2, 1), (1, 1, 0), (2, 4, 3), (3, 5, 2)],
            2: [(0, 2, 2), (1, 5, 3), (2, 1, 0), (3, 4, 1)],
            3: [(3, 1, 0), (2, 5, 1), (1, 4, 2), (0, 2, 3)]}
    for ins in conv_write(0, None):
        A(ins)
    G = lambda t, i: 112 + 16 * t + i
    started = set()
    for q in range(4):
        steps = [(c, b, oo, s) for (c, b, oo) in plan[q] for s in range(4)]
        def reads(k):
            c, b, oo, s = steps[k]
            tf = TF[k & 1]; w0 = WFR[2 * (k & 1)]
            toff = (q & 1) * 512 + (s >> 1) * 256 + c * 64 + (s & 1) * 32
            return [f"ds_read_b128 {vr(tf,4)}, v{V_TR} offset:{toff}",
                    f"ds_read_b128 {vr(w0,4)}, v{V_WR} offset:{L_WF + b*8192 + (2*s)*1024}",
                    f"ds_read_b128 {vr(w0+4,4)}, v{V_WR} offset:{L_WF + b*8192 + (2*s+1)*1024}"]
        if q < 3:
            fill = conv_write(q + 1, None)
        else:
            fill = []
        per = -(-len(fill) // 16) if fill else 0
        A("s_waitcnt lgkmcnt(0)")
        for ins in reads(0):
            A(ins)
        post = []
        if q == 3:
            post = gate_and_store(OUT, G, NOD, TMP)
        for k in range(16):
            c, b, oo, s = steps[k]
            tf = TF[k & 1]; w0 = WFR[2 * (k & 1)]
            chunk = fill[k * per:(k + 1) * per]
            nds = sum(1 for x in chunk if x.startswith("ds_"))
            if k + 1 < 16:
                for ins in reads(k + 1):
                    A(ins)
                A("s_waitcnt lgkmcnt(3)")
            else:
                A("s_waitcnt lgkmcnt(0)")
            for t in range(2):
                d = vr(OUT(oo, t), 16)
                cc = d if (oo, t) in started else "0"
                started.add((oo, t))
                A(f"v_mfma_f32_32x32x16_bf16 {d}, {vr(tf,4)}, {vr(w0+4*t,4)}, {cc}")
                half = chunk[:len(chunk)//2] if t == 0 else chunk[len(chunk)//2:]
                for ins in half:
                    A(ins)
            if q == 3:
                blkdone = k // 4
                lst = post
                if k % 4 >= 1 and blkdone >= 1:
                    part = lst[blkdone - 1]
                    n = len(part)
                    i0 = (k % 4 - 1) * n // 3
                    i1 = (k % 4) * n // 3
                    for ins in part[i0:i1]:
                        A(ins)
        if q == 3:
            A("s_nop 15")
            for ins in post[3]:
                A(ins)

def gate_and_store(OUT, G, NOD, TMP):
    res = []
    p = []
    for t in range(2):
        for i in range(13):
            p.append(f"v_mul_f32 v{G(t,i)}, 0xbfb8aa3b, v{OUT(0,t)+i}")
        for i in range(13):
            p.append(f"v_exp_f32 v{G(t,i)}, v{G(t,i)}")
        for i in range(13):
            p.append(f"v_add_f32 v{G(t,i)}, 1.0, v{G(t,i)}")
        for i in range(13):
            p.append(f"v_rcp_f32 v{G(t,i)}, v{G(t,i)}")
    for i in range(13):
        r = TMP + (i & 7)
        p.append(f"v_cvt_pk_bf16_f32 v{r}, v{OUT(0,0)+i}, v{OUT(0,1)+i}")
        p.append(f"buffer_store_dword v{r}, v{NOD+i}, s[12:15], 0 offen")
    res.append(p)
    for oo in range(1, 4):
        p = []
        for i in range(13):
            r = TMP + (i & 7)
            p.append(f"v_mul_f32 v{OUT(oo,0)+i}, v{OUT(oo,0)+i}, v{G(0,i)}")
            p.append(f"v_mul_f32 v{OUT(oo,1)+i}, v{OUT(oo,1)+i}, v{G(1,i)}")
            p.append(f"v_cvt_pk_bf16_f32 v{r}, v{OUT(oo,0)+i}, v{OUT(oo,1)+i}")
            p.append(f"buffer_store_dword v{r}, v{NOD+i}, s[12:15], 0 offen offset:{128*oo}")
        res.append(p)
    return res

def descriptor(name, vg, sg):
    accum = min(256, (vg + 3) // 4 * 4)
    return f""".amdhsa_kernel {name}
  .amdhsa_next_free_vgpr {vg}
  .amdhsa_next_free_sgpr {sg}
  .amdhsa_accum_offset {accum}
  .amdhsa_group_segment_fixed_size 0
  .amdhsa_kernarg_size 96
  .amdhsa_user_sgpr_count 2
  .amdhsa_user_sgpr_kernarg_segment_ptr 1
  .amdhsa_system_sgpr_workgroup_id_x 1
  .amdhsa_float_denorm_mode_32 3
.end_amdhsa_kernel"""

HEADER = """; Equiformer-style tensor-product message passing, two launches:
"""

def build(o):
    a1, v1, s1 = k1(o)
    a2, v2, s2 = k2(o)
    n1, n2 = "sort_kernel", "main_kernel"
    t = HEADER
    t += "; @launch kernel=empty_kernel grid=(256,1,1) block=(64,1,1) lds=0\n" * o.extra_pre
    t += f"; @launch kernel={n1} grid=(256,1,1) block=({K1_BLOCK},1,1) lds={K1_LDS}\n"
    t += f"; @launch kernel={n2} grid=(256,1,1) block=(256,1,1) lds={K2_LDS}\n"
    t += "; @launch kernel=empty_kernel grid=(256,1,1) block=(64,1,1) lds=0\n" * o.extra_post
    extra = o.extra_pre + o.extra_post
    t += '.amdgcn_target "amdgcn-amd-amdhsa--gfx950"\n.text\n'
    for n, a in ((n1, a1), (n2, a2)):
        t += f".globl {n}\n.p2align 8\n.type {n},@function\n{n}:\n{a.text()}\n"
    if extra:
        t += ".globl empty_kernel\n.p2align 8\n.type empty_kernel,@function\nempty_kernel:\n    s_endpgm\n"
    t += '.section .rodata,"a"\n.p2align 6\n' + descriptor(n1, v1, s1) + "\n.p2align 6\n" + descriptor(n2, v2, s2) + "\n"
    if extra:
        t += ".p2align 6\n" + descriptor("empty_kernel", 8, 16) + "\n"
    return t, a1, a2

if __name__ == "__main__":
    o = Opt()
    t, a1, a2 = build(o)
    out = sys.argv[1] if len(sys.argv) > 1 else f"cdna_kernels/{NAME}.s"
    open(out, "w").write(t)
    print("wrote", out, len(a1.L), len(a2.L))
```

```python
import sys

NAME = "gather_scatter__tensor_product_equiv_equiformer__graph"
N = 25000
E = 800000
XBYTES = N * 512
NCH = 250
CH = 3200
RECB = 12
CHB = CH * RECB
REC_TOTAL = NCH * CHB
COFOFF = NCH * CH * 4
TABOFF = REC_TOTAL
WFOFF = TABOFF + 256 * 1024
WS_USED = WFOFF + 6 * 8192

class Opt:
    nph = 3
    k1_prefetch = False
    soa = True
    k2_pfmode = "mall"
    k2_pfstride = 128
    wglobal = False
    pk = False
    maskmix = True
    pfa = False
    pf = ()
    dma_early = False
    dma_late = False
    pfb = None
    xorasg = True
    k1x4 = True
    last_store = None
    diag = ""
    epi2 = True
    latepack = True
    gapmin = 24
    look = 30
    zmix = True
    nbk = 16
    init_a = 8
    k1_store = ""
    out_store = "sc1"
    k2_prefetch = 0
    stamps = False
    guard = False
    dbgstamps = False
    padto = 0
    padrel = None
    extra_pre = 0
    extra_post = 0

class Asm:
    def __init__(self):
        self.L = []
    def __call__(self, s):
        for line in s.strip().split("\n"):
            line = line.strip()
            if line:
                self.L.append(line)
    def label(self, s):
        self.L.append(s + ":")
    def text(self):
        out = []
        for l in self.L:
            out.append(l if l.endswith(":") else "    " + l)
        return "\n".join(out)

def vr(a, n):
    return f"v[{a}:{a+n-1}]" if n > 1 else f"v{a}"
def ar(a, n):
    return f"a[{a}:{a+n-1}]" if n > 1 else f"a{a}"
def sr(a, n):
    return f"s[{a}:{a+n-1}]" if n > 1 else f"s{a}"

def srd(A, s, lo, hi, size):
    A(f"s_mov_b32 s{s}, s{lo}")
    A(f"s_mov_b32 s{s+1}, s{hi}")
    A(f"s_mov_b32 s{s+2}, {size}")
    A(f"s_mov_b32 s{s+3}, 0x20000")

def guard(A, o, tag):
    if o.guard:
        A("s_load_dword s3, s[0:1], 96")
        A("s_waitcnt lgkmcnt(0)")
        A("s_cmp_eq_u32 s3, 0x5eed1234")
        A(f"s_cbranch_scc0 L_{tag}_end")

def dpp_scan(A, v):
    for ctl in ("row_shr:1", "row_shr:2", "row_shr:4", "row_shr:8"):
        A(f"v_add_u32_dpp v{v}, v{v}, v{v} {ctl} row_mask:0xf bank_mask:0xf")
        A("s_nop 1")
    A(f"v_add_u32_dpp v{v}, v{v}, v{v} row_bcast:15 row_mask:0xa bank_mask:0xf")
    A("s_nop 1")
    A(f"v_add_u32_dpp v{v}, v{v}, v{v} row_bcast:31 row_mask:0xc bank_mask:0xf")

STAMP_OFF = 16 << 20
def stamp(A, o, idx, base=86):
    if o.padrel and base == 86 and idx == o.padrel[0]:
        A("s_memrealtime s[98:99]")
        A("s_waitcnt lgkmcnt(0)")
    if o.stamps and (o.stamps != "lite" or (base, idx) in ((72, 0), (72, 6), (86, 0), (86, 8), (86, 9), (86, 13))):
        assert idx < 14
        A(f"s_memrealtime s[{base+14}:{base+15}]")
        A("s_waitcnt lgkmcnt(0)")
        A(f"s_mov_b32 s{base+idx}, s{base+14}")
def stamp_out(A, o, n, base, lo, hi, srd0, slot_sgpr, region):
    if o.stamps and o.dbgstamps:
        lab = f"L_st_{region}"
        A(f"s_cmp_eq_u32 s{slot_sgpr}, {o.dbgstamps}")
        A(f"s_cbranch_scc0 {lab}")
        A(f"s_load_dwordx2 s[{srd0}:{srd0+1}], s[0:1], 80")
        A("s_waitcnt lgkmcnt(0)")
        if not region:
            A(f"s_add_u32 s{srd0}, s{srd0}, 512")
            A(f"s_addc_u32 s{srd0+1}, s{srd0+1}, 0")
            sel = [0, 6]
            off = 0
        else:
            sel = list(range(14))
            off = 8
        A("s_mov_b64 exec, 1")
        A(f"s_mov_b32 s{srd0+2}, 64")
        A(f"s_mov_b32 s{srd0+3}, 0x20000")
        A("v_mov_b32 v1, 0")
        for k, i in enumerate(sel):
            A(f"v_mov_b32 v2, s{base+i}")
            A(f"buffer_store_dword v2, v1, s[{srd0}:{srd0+3}], 0 offen offset:{off+4*k}")
        A.label(lab)
    elif o.stamps:
        A("s_mov_b64 exec, 1")
        A(f"s_add_u32 s{srd0}, s{lo}, {STAMP_OFF+region}")
        A(f"s_addc_u32 s{srd0+1}, s{hi}, 0")
        A(f"s_mov_b32 s{srd0+2}, {1<<19}")
        A(f"s_mov_b32 s{srd0+3}, 0x20000")
        A(f"s_lshl_b32 s{slot_sgpr}, s{slot_sgpr}, 6")
        A("v_mov_b32 v1, 0")
        for i in range(n):
            A(f"v_mov_b32 v2, s{base+i}")
            A(f"buffer_store_dword v2, v1, s[{srd0}:{srd0+3}], s{slot_sgpr} offen offset:{4*i}")

K1_HIST, K1_BASE, K1_STG = 0, 1024, 2048
K1_LDS = K1_STG + CH * 16
K1_BLOCK = 832
K1_PFO = 48

def k1(o):
    A = Asm()
    guard(A, o, "k1")
    A("s_cmp_ge_u32 s2, 256")
    A("s_cbranch_scc1 L_k1_end")
    stamp(A, o, 0, 72)
    if o.padto:
        A("s_memrealtime s[66:67]")
    A("s_load_dwordx4 s[4:7], s[0:1], 0")
    A("s_load_dwordx4 s[8:11], s[0:1], 16")
    A("s_load_dwordx4 s[12:15], s[0:1], 32")
    A("s_load_dwordx4 s[16:19], s[0:1], 48")
    A("s_load_dwordx2 s[20:21], s[0:1], 88")
    A("s_and_b32 s22, s2, 7")
    A("s_lshl_b32 s22, s22, 5")
    A("s_lshr_b32 s23, s2, 3")
    A("s_add_u32 s22, s22, s23")
    A("v_lshlrev_b32 v1, 4, v0")
    A("v_mul_u32_u24 v2, 24, v0")
    A("v_lshlrev_b32 v3, 3, v0")
    A("s_lshl_b32 s60, s22, 2")
    A(f"s_add_u32 s60, s60, {TABOFF}")
    A("s_cmp_ge_u32 s22, 250")
    A("s_cbranch_scc1 L_k1_wprep")
    A(f"s_mul_i32 s56, s22, {CH*4}")
    A(f"s_mul_i32 s57, s22, {CH*6}")
    A(f"s_mul_i32 s58, s22, {CH*2}")
    A(f"s_mul_i32 s{K1_PFO}, s22, {400*128}")
    A("v_cmp_gt_u32 vcc, 800, v0")
    A("s_and_b64 exec, exec, vcc")
    A("v_mov_b32 v44, 0")
    A("v_mov_b32 v45, 0")
    A("v_mov_b32 v46, 0")
    A("v_mov_b32 v47, 0")
    A("v_readfirstlane_b32 s61, v0")
    A("s_cmp_lt_u32 s61, 64")
    A("s_cbranch_scc0 L_k1_nz")
    A(f"ds_write_b128 v1, v[44:47] offset:{K1_HIST}")
    A.label("L_k1_nz")
    A("s_mov_b32 s62, 43980466")
    A("s_mov_b32 s63, 3125")
    A("s_mov_b32 s64, 0xc0000000")
    A(f"s_mov_b32 s65, {0xc0000 if o.nbk == 16 else 0x40000}")
    A("v_mov_b32 v50, 1")
    A("v_lshlrev_b32 v60, 12, v0")
    A("s_waitcnt lgkmcnt(0)")
    srd(A, 24, 12, 13, E * 4)
    A("buffer_load_dwordx4 v[4:7], v1, s[24:27], s56 offen")
    srd(A, 28, 10, 11, E * 4)
    srd(A, 32, 6, 7, E * 6)
    srd(A, 36, 8, 9, E * 2)
    A("s_barrier")
    A("buffer_load_dwordx4 v[8:11], v1, s[28:31], s56 offen")
    A("buffer_load_dwordx4 v[12:15], v2, s[32:35], s57 offen")
    A("buffer_load_dwordx2 v[16:17], v2, s[32:35], s57 offen offset:16")
    A("buffer_load_dwordx2 v[18:19], v3, s[36:39], s58 offen")
    npf = 0
    if o.k1_prefetch:
        srd(A, 40, 4, 5, XBYTES)
        A("v_lshlrev_b32 v48, 6, v0")
    if o.k1_prefetch == "early":
        A(f"buffer_load_dword v49, v48, s[40:43], s{K1_PFO} offen")
        npf = 1
    srd(A, 44, 20, 21, WS_USED + (64 if o.padto else 0))
    if o.padto:
        A("s_cmp_eq_u32 s2, 0")
        A("s_cbranch_scc0 L_k1_nt")
        A(f"v_mov_b32 v61, s66")
        A(f"v_mov_b32 v62, {WS_USED}")
        A("buffer_store_dword v61, v62, s[44:47], 0 offen")
        A("s_waitcnt vmcnt(0)")
        A.label("L_k1_nt")
    A(f"s_waitcnt vmcnt({4+npf})")
    stamp(A, o, 1, 72)
    for i in range(4):
        A(f"v_mul_hi_u32 v{52+i}, v{4+i}, s62")
    for i in range(4):
        A(f"v_lshlrev_b32 v{20+i}, 2, v{52+i}")
        A(f"ds_add_rtn_u32 v{24+i}, v{20+i}, v50 offset:{K1_HIST}")
    for i in range(4):
        A(f"v_mad_u32_u24 v{52+i}, v{52+i}, s63, 31")
    for i in range(4):
        A(f"v_lshrrev_b32 v{52+i}, 5, v{52+i}")
    for i in range(4):
        A(f"v_sub_u32 v{4+i}, v{4+i}, v{52+i}")
    A("s_waitcnt lgkmcnt(0)")
    stamp(A, o, 2, 72)
    A("s_barrier")
    A("s_cmp_lt_u32 s61, 64")
    A("s_cbranch_scc0 L_k1_ns")
    A(f"ds_read_b128 v[52:55], v1 offset:{K1_HIST}")
    A("s_waitcnt lgkmcnt(0)")
    A("v_add_u32 v56, v52, v53")
    A("v_add_u32 v57, v56, v54")
    A("v_add_u32 v58, v57, v55")
    A("v_mov_b32 v59, v58")
    A("s_nop 1")
    dpp_scan(A, 59)
    A("v_sub_u32 v44, v59, v58")
    A("v_add_u32 v45, v44, v52")
    A("v_add_u32 v46, v44, v56")
    A("v_add_u32 v47, v44, v57")
    A(f"ds_write_b128 v1, v[44:47] offset:{K1_BASE}")
    for i in range(4):
        A(f"v_lshl_or_b32 v{64+i}, v{52+i}, 16, v{44+i}")
    A("s_waitcnt lgkmcnt(0)")
    A.label("L_k1_ns")
    A("s_barrier")
    stamp(A, o, 3, 72)
    for i in range(4):
        A(f"ds_read_b32 v{44+i}, v{20+i} offset:{K1_BASE}")
    if o.soa:
        A(f"s_mul_i32 s56, s22, {CH*4}")
        A("s_lshl_b32 s68, s56, 1")
        A(f"s_add_u32 s68, s68, {COFOFF}")
        for i in range(1, 4):
            A(f"s_add_u32 s{56+i}, s56, {3200*i}")
            A(f"s_add_u32 s{68+i}, s68, {6400*i}")
        A("v_lshlrev_b32 v2, 2, v0")
    else:
        A(f"s_mul_i32 s56, s22, {CHB}")
        A("s_add_u32 s57, s56, 9600")
        A("s_add_u32 s58, s56, 19200")
        A("s_add_u32 s59, s56, 28800")
        A("v_mul_u32_u24 v2, 12, v0")
    A(f"s_waitcnt vmcnt({3+npf})")
    R = [28, 32, 36, 40]
    b16 = o.nbk == 16
    for i in range(4):
        A(f"v_mul_u32_u24 v{56+i}, 0x29f00, v{8+i}")
        A(f"v_lshl_or_b32 v{52+i}, v{4+i}, {20 if b16 else 19}, v{8+i}")
    for i in range(4):
        A(f"v_and_or_b32 v{52+i}, v{56+i}, s64, v{52+i}")
        A(f"v_lshrrev_b32 v{56+i}, {10 if b16 else 11}, v{56+i}")
    for i in range(4):
        A(f"v_and_or_b32 v{R[i]+2}, v{56+i}, s65, v{52+i}")
    A("s_waitcnt lgkmcnt(0)")
    x4 = o.soa and o.k1x4
    for i in range(4):
        A(f"v_add_lshl_u32 v{44+i}, v{44+i}, v{24+i}, {2 if x4 else 4}")
        if x4:
            A(f"ds_write_b32 v{44+i}, v{R[i]+2} offset:{K1_STG+25600}")
            A(f"v_lshlrev_b32 v{44+i}, 1, v{44+i}")
    A(f"s_waitcnt vmcnt({npf})")
    src = [((18, 0), (12, 0), (12, 1), (13, 0)),
           ((18, 1), (13, 1), (14, 0), (14, 1)),
           ((19, 0), (15, 0), (15, 1), (16, 0)),
           ((19, 1), (16, 1), (17, 0), (17, 1))]
    for i in range(4):
        for k, (r, h) in enumerate(src[i]):
            if h == 0:
                A(f"v_lshlrev_b32 v{52+k}, 16, v{r}")
            else:
                A(f"v_and_b32 v{52+k}, 0xffff0000, v{r}")
        for k in range(1, 4):
            A(f"v_mul_f32 v{52+k}, v52, v{52+k}")
        A(f"v_cvt_pk_bf16_f32 v{R[i]}, v52, v53")
        A(f"v_cvt_pk_bf16_f32 v{R[i]+1}, v54, v55")
        if x4:
            A(f"ds_write_b64 v{44+i}, {vr(R[i],2)} offset:{K1_STG}")
        else:
            A(f"ds_write_b96 v{44+i}, {vr(R[i],3)} offset:{K1_STG}")
    if o.k1_prefetch == "late":
        A(f"buffer_load_dword v49, v48, s[40:43], s{K1_PFO} offen")
    A("s_waitcnt lgkmcnt(0)")
    A("s_barrier")
    stamp(A, o, 4, 72)
    if o.k1_prefetch == "pre_end":
        A(f"buffer_load_dword v49, v48, s[40:43], s{K1_PFO} offen")
    if x4:
        A(f"ds_read_b128 v[4:7], v1 offset:{K1_STG+25600}")
        A(f"ds_read_b128 v[8:11], v1 offset:{K1_STG}")
        A(f"ds_read_b128 v[12:15], v1 offset:{K1_STG+12800}")
        A("s_add_u32 s69, s68, 12800")
        A("s_waitcnt lgkmcnt(2)")
        A(f"buffer_store_dwordx4 v[4:7], v1, s[44:47], s56 offen {o.k1_store}")
        A("s_waitcnt lgkmcnt(1)")
        A(f"buffer_store_dwordx4 v[8:11], v1, s[44:47], s68 offen {o.k1_store}")
        A("s_waitcnt lgkmcnt(0)")
        A(f"buffer_store_dwordx4 v[12:15], v1, s[44:47], s69 offen {o.k1_store}")
    else:
        for i in range(4):
            A(f"ds_read_b96 {vr(4+4*i,3)}, v1 offset:{K1_STG+12800*i}")
        for i in range(4):
            A(f"s_waitcnt lgkmcnt({3-i})")
            if o.soa:
                A(f"buffer_store_dword v{6+4*i}, v2, s[44:47], s{56+i} offen {o.k1_store}")
                A(f"buffer_store_dwordx2 {vr(4+4*i,2)}, v3, s[44:47], s{68+i} offen {o.k1_store}")
            else:
                A(f"buffer_store_dwordx3 {vr(4+4*i,3)}, v2, s[44:47], s{56+i} offen {o.k1_store}")
    A("s_cmp_lt_u32 s61, 64")
    A("s_cbranch_scc0 L_k1_notab")
    for i in range(4):
        A(f"buffer_store_dword v{64+i}, v60, s[44:47], s60 offen offset:{1024*i} {o.k1_store}")
    A.label("L_k1_notab")
    if o.k1_prefetch == "end":
        A(f"buffer_load_dword v49, v48, s[40:43], s{K1_PFO} offen")
    if o.stamps:
        stamp(A, o, 5, 72)
        A("s_waitcnt vmcnt(0)")
        stamp(A, o, 6, 72)
        A("s_lshr_b32 s61, s61, 6")
        A("s_lshl_b32 s62, s2, 4")
        A("s_add_u32 s61, s61, s62")
        stamp_out(A, o, 7, 72, 20, 21, 24, 61, 0)
    A("s_endpgm")

    A.label("L_k1_wprep")
    A("v_cmp_gt_u32 vcc, 512, v0")
    A("s_and_b64 exec, exec, vcc")
    A("s_cbranch_execz L_k1_end")
    A("s_sub_u32 s23, s22, 250")
    A("s_min_u32 s24, s23, 4")
    A("s_lshl_b32 s24, s24, 7")
    A("s_and_b32 s25, s23, 1")
    A("s_lshl_b32 s25, s25, 13")
    A("s_cmp_ge_u32 s23, 4")
    A("s_cselect_b32 s25, 16384, s25")
    A("s_cmp_eq_u32 s23, 5")
    A("s_cselect_b32 s26, 0x80000000, 0")
    A("s_lshl_b32 s27, s23, 13")
    A(f"s_add_u32 s27, s27, {WFOFF}")
    A("v_lshrrev_b32 v4, 6, v0")
    A("v_and_b32 v5, 63, v0")
    A("v_and_b32 v6, 31, v5")
    A("v_lshrrev_b32 v7, 5, v5")
    A("v_and_b32 v8, 1, v4")
    A("v_lshl_add_u32 v6, v6, 1, v8")
    A("v_bfe_u32 v8, v4, 1, 1")
    A("v_lshl_add_u32 v7, v8, 1, v7")
    A("v_lshrrev_b32 v8, 2, v4")
    A("v_lshlrev_b32 v8, 2, v8")
    A("v_lshl_add_u32 v7, v7, 4, v8")
    A("v_lshlrev_b32 v9, 1, v7")
    A("v_lshlrev_b32 v10, 6, v7")
    A("v_add_lshl_u32 v10, v10, v6, 1")
    A("v_mov_b32 v11, 0")
    A("v_lshlrev_b32 v30, 10, v0")
    A("s_waitcnt lgkmcnt(0)")
    srd(A, 44, 20, 21, WS_USED)
    srd(A, 32, 14, 15, 640)
    srd(A, 36, 16, 17, 128 * 128)
    srd(A, 40, 18, 19, 192 * 128)
    A("buffer_load_dwordx2 v[12:13], v9, s[32:35], s24 offen")
    A("buffer_load_dwordx2 v[14:15], v9, s[32:35], s24 offen offset:16")
    A("s_cmp_ge_u32 s23, 2")
    A("s_cbranch_scc1 L_k1_w1")
    for ii in range(8):
        A(f"buffer_load_ushort v{16+ii}, v10, s[36:39], s25 offen offset:{((ii>>2)*8+(ii&3))*128}")
    A("s_branch L_k1_w2")
    A.label("L_k1_w1")
    for ii in range(8):
        A(f"buffer_load_ushort v{16+ii}, v10, s[40:43], s25 offen offset:{((ii>>2)*8+(ii&3))*128}")
    A.label("L_k1_w2")
    A("v_cmp_gt_u32 vcc, 256, v0")
    A("s_and_saveexec_b64 s[28:29], vcc")
    A("s_cbranch_execz L_k1_w3")
    A("buffer_store_dword v11, v30, s[44:47], s60 offen")
    A.label("L_k1_w3")
    A("s_mov_b64 exec, s[28:29]")
    A("s_waitcnt vmcnt(0)")
    for ii in range(8):
        r = 12 + (ii >> 1)
        if ii & 1:
            A(f"v_and_b32 v24, 0xffff0000, v{r}")
        else:
            A(f"v_lshlrev_b32 v24, 16, v{r}")
        A(f"v_lshlrev_b32 v{16+ii}, 16, v{16+ii}")
        A(f"v_mul_f32 v{16+ii}, v24, v{16+ii}")
        A(f"v_xor_b32 v{16+ii}, s26, v{16+ii}")
    for k in range(4):
        A(f"v_cvt_pk_bf16_f32 v{24+k}, v{16+2*k}, v{17+2*k}")
    A("buffer_store_dwordx4 v[24:27], v1, s[44:47], s27 offen")
    A.label("L_k1_end")
    A("s_endpgm")
    return A, 72, (96 if o.stamps else 72)

L_NI, L_CNT, L_RG, L_FLAG = 0, 4096, 4352, 4480
L_NODE, L_OV, L_DUM, L_STR = 4608, 5120, 5888, 6016
STRB = 848
L_WF = 9472
L_TBL = L_WF + 6 * 8192
WREG = 26064
GSTR = 40 * 128 + 16
GCAP = 40
K2_LDS = L_TBL + 4 * WREG
NSLOT = 22
OVCAP = 24
BIG = 0x7ffffff0

S_X, S_WS, S_OUT = 4, 8, 12
S_W, S_BIN, S_NST, S_NN, S_WB, S_512, S_S, S_SEND = 16, 17, 18, 19, 20, 21, 22, 23
S_MASK = 24
S_VAL = 34
S_T0, S_T1, S_T2, S_T3 = 78, 79, 80, 81
S_MODE, S_B, S_NB, S_TAB = 82, 83, 84, 85
V_LANE, V_LOFF, V_HOFF, V_SP, V_Q, V_TP = 0, 1, 2, 3, 4, 5
V_SEL, V_A, V_C = 8, 12, 16
V_AD = 26
V_P = 28
V_S = 32
V_RING = 52

def acc(m):
    return ar(16 * m, 16) if m < 16 else vr(112 + 16 * (m - 16), 16)

def rec(u):
    return 44 if u == 0 else 112 + 6 * (u - 1)
def ent(u):
    return 240 + u
V_I = 6
V_LB = 7
V_PF = 31
V_TID = 35
V_EL = 39
V_MAX = 43
V_T = 50
V_E0 = V_T + 22
V_ONE = V_T + 30

def k2(o):
    nph = o.nph
    ring = 112 - 20 * nph
    vS = V_S
    assert vS + 4 * nph <= ring
    A = Asm()
    guard(A, o, "k2")
    A("s_cmp_ge_u32 s2, 256")
    A("s_cbranch_scc1 L_k2_end")
    stamp(A, o, 0)
    A("s_load_dwordx2 s[4:5], s[0:1], 0")
    A("s_load_dwordx2 s[8:9], s[0:1], 88")
    A("s_load_dwordx2 s[12:13], s[0:1], 72")
    A(f"v_mov_b32 v{V_TID}, v0")
    A("v_lshrrev_b32 v1, 6, v0")
    A("v_and_b32 v0, 63, v0")
    A(f"v_readfirstlane_b32 s{S_W}, v1")
    A(f"s_and_b32 s{S_BIN}, s2, 7")
    A(f"s_lshl_b32 s{S_BIN}, s{S_BIN}, 5")
    A(f"s_lshr_b32 s{S_T0}, s2, 3")
    A(f"s_add_u32 s{S_BIN}, s{S_BIN}, s{S_T0}")
    A(f"s_mul_i32 s{S_NST}, s{S_BIN}, 3125")
    A(f"s_add_u32 s{S_NN}, s{S_NST}, {3125+31}")
    A(f"s_add_u32 s{S_NST}, s{S_NST}, 31")
    A(f"s_lshr_b32 s{S_NST}, s{S_NST}, 5")
    A(f"s_lshr_b32 s{S_NN}, s{S_NN}, 5")
    A(f"s_sub_u32 s{S_NN}, s{S_NN}, s{S_NST}")
    A(f"s_mul_i32 s{S_WB}, s{S_W}, {WREG}")
    A(f"s_add_u32 s{S_WB}, s{S_WB}, {L_TBL}")
    A(f"s_lshl_b32 s{S_TAB}, s{S_BIN}, 10")
    A(f"s_add_u32 s{S_TAB}, s{S_TAB}, {TABOFF}")
    A(f"s_mov_b32 s{S_512}, 512")
    A(f"s_mov_b32 s{S_MODE}, 0")
    A(f"s_mov_b32 s{S_B}, 0")
    A(f"s_mov_b32 s{S_NB}, 0")
    A(f"s_mov_b32 s6, {XBYTES}")
    A("s_mov_b32 s7, 0x20000")
    A(f"s_mov_b32 s10, {WS_USED}")
    A("s_mov_b32 s11, 0x20000")
    A(f"s_mov_b32 s14, {XBYTES}")
    A("s_mov_b32 s15, 0x20000")
    T = V_T
    def init_small():
        A(f"v_and_b32 v{T}, 3, v0")
        A(f"v_cmp_eq_u32 vcc, 3, v{T}")
        A(f"v_mov_b32 v{T+8}, 0")
        A(f"v_mov_b32 v{T+9}, 0")
        A(f"v_cndmask_b32 v{T+4}, 0, -1, vcc")
        A(f"v_mov_b32 v{T+5}, v{T+4}")
        A(f"v_mov_b32 v{T+6}, v{T+4}")
        A(f"v_mov_b32 v{T+7}, v{T+4}")
        A(f"v_lshl_add_u32 v{T+1}, v0, 4, s{S_WB}")
        A(f"v_mov_b32 v{T+10}, 0")
        A(f"v_mov_b32 v{T+11}, 0")
        A(f"v_lshlrev_b32 v{T+2}, 4, v{V_TID}")
        A(f"ds_write_b128 v{T+2}, {vr(T+8,4)} offset:{L_NI}")
        A(f"v_cmp_gt_u32 vcc, 32, v{V_TID}")
        A("s_and_saveexec_b64 s[78:79], vcc")
        A(f"ds_write_b128 v{T+2}, {vr(T+8,4)} offset:{L_CNT}")
        A("s_mov_b64 exec, s[78:79]")
        A(f"s_mul_i32 s{S_T2}, s{S_W}, 192")
        A(f"s_mul_i32 s{S_T3}, s{S_W}, {STRB}")
        A(f"v_lshl_add_u32 v{T+2}, v0, 4, s{S_T2}")
        A(f"v_lshl_add_u32 v{T+3}, v0, 4, s{S_T3}")
        for k in range(4):
            A(f"v_mov_b32 v{T+12+k}, {L_DUM}")
        A(f"v_lshlrev_b32 v{T+16}, 4, v0")
        A(f"s_lshl_b32 s{S_T2}, s{S_W}, 7")
        A(f"v_lshl_add_u32 v{T+17}, v0, 2, s{S_T2}")
        A(f"v_mov_b32 v{T+18}, {BIG}")
        A(f"v_mov_b32 v{V_MAX}, 0")
        A("s_mov_b64 exec, 0xfff")
        A(f"ds_write_b128 v{T+2}, {vr(T+8,4)} offset:{L_OV}")
        A("s_mov_b32 exec_lo, -1")
        A("s_mov_b32 exec_hi, 0x1fffff")
        A(f"ds_write_b128 v{T+3}, {vr(T+12,4)} offset:{L_STR}")
        A("s_mov_b32 exec_hi, 0")
        A(f"ds_write_b32 v{T+17}, v{T+18} offset:{L_NODE}")
        A("s_mov_b32 exec_lo, 0xff")
        A(f"ds_write_b128 v{T+16}, {vr(T+4,4)} offset:{L_DUM}")
        A("s_mov_b64 exec, -1")
    def tbl_write(k):
        A(f"ds_write_b128 v{T+1}, {vr(T+4,4)} offset:{GSTR*(k//5) + 1024*(k%5)}")
    init_small()
    for k in range(o.init_a):
        tbl_write(k)
    A(f"v_and_b32 v{V_I}, 15, v0")
    A(f"v_lshrrev_b32 v{T}, 4, v{V_TID}")
    A(f"v_lshlrev_b32 v{T+20}, 6, v{T}")
    A(f"v_lshlrev_b32 v{T+21}, 2, v{V_TID}")
    RB = 4 if o.soa else 12
    CB = CH * RB
    A(f"s_mov_b32 s{S_T0}, {16*CB}")
    A(f"v_mul_lo_u32 v{V_LB}, v{T}, s{S_T0}")
    A(f"v_mad_u32_u24 v{V_LB}, v{V_I}, {RB}, v{V_LB}")
    for r in range(4):
        A(f"v_mov_b32 v{V_A+r}, 0")
    A("s_waitcnt lgkmcnt(0)")
    for k in range(4):
        A(f"buffer_load_dwordx4 {vr(ent(4*k),4)}, v{T+20}, s[8:11], s{S_TAB} offen offset:{16*k}")
    A(f"buffer_load_dword v{V_EL}, v{T+21}, s[8:11], s{S_TAB} offen")
    if o.dma_early:
        A(f"v_lshlrev_b32 v{T+22}, 4, v0")
        A(f"s_mul_i32 s{S_T0}, s{S_W}, 12288")
        A(f"s_add_u32 s{S_T1}, s{S_T0}, {WFOFF}")
        A(f"s_add_u32 s{S_T0}, s{S_T0}, {L_WF}")
        for k in range(3):
            A(f"s_mov_b32 m0, s{S_T0}")
            A(f"s_add_u32 s{S_T0}, s{S_T0}, 4096")
            for kk in range(4):
                A(f"buffer_load_dwordx4 v{T+22}, s[8:11], s{S_T1} offen offset:{1024*kk} lds")
            if k < 2:
                A(f"s_add_u32 s{S_T1}, s{S_T1}, 4096")
    zm = list(range(16))
    for k in range(o.init_a, 25):
        tbl_write(k)
        if zm:
            m = zm.pop()
            A(f"v_mfma_f32_32x32x16_bf16 {acc(m)}, {vr(V_A,4)}, {vr(V_A,4)}, 0")
    C = T + 20
    A(f"v_and_b32 v{V_LOFF}, 31, v0")
    A(f"v_lshrrev_b32 v{V_HOFF}, 5, v0")
    A(f"v_lshrrev_b32 v{C}, 3, v{V_LOFF}")
    A(f"v_mul_u32_u24 v{C}, 0x202, v{C}")
    A(f"v_add_u32 v{C}, 0x100, v{C}")
    A(f"v_or_b32 v{C+1}, 0x0c0c0000, v{C}")
    A(f"v_lshlrev_b32 v{C}, 16, v{C}")
    A(f"v_or_b32 v{C}, 0x0c0c, v{C}")
    A(f"v_and_b32 v{C+2}, 1, v0")
    A(f"v_cmp_eq_u32 vcc, 1, v{C+2}")
    A(f"v_bfe_u32 v{C+2}, v0, 1, 2")
    A(f"v_mov_b32 v{C+3}, 0x0c0c0c0c")
    A(f"v_cndmask_b32 v{C}, v{C+1}, v{C}, vcc")
    for r in range(4):
        A(f"v_cmp_eq_u32 {sr(24+2*r,2)}, {r}, v{C+2}")
    A(f"v_lshlrev_b32 v{V_LOFF}, 4, v{V_LOFF}")
    A(f"v_lshlrev_b32 v{V_HOFF}, 6, v{V_HOFF}")
    for r in range(4):
        A(f"v_cndmask_b32 v{V_SEL+r}, v{C+3}, v{C}, {sr(24+2*r,2)}")
    for m in zm:
        A(f"v_mfma_f32_32x32x16_bf16 {acc(m)}, {vr(V_A,4)}, {vr(V_A,4)}, 0")
    A("s_waitcnt lgkmcnt(0)")
    A("s_barrier")

    def rec_load(u, ad, soff):
        if o.soa:
            A(f"buffer_load_dword v{rec(u)+2}, v{ad}, s[8:11], {soff} offen")
        else:
            A(f"buffer_load_dwordx3 {vr(rec(u),3)}, v{ad}, s[8:11], {soff} offen")
        A("s_mov_b64 exec, -1")
    AD = lambda u: rec(u) + 5 if o.soa else V_AD + (u & 1)
    def load_rec(u, e, soff):
        m = S_VAL + 2 * u
        A(f"v_mad_u32_u16 v{AD(u)}, v{e}, {RB}, v{V_LB}")
        A(f"v_cmpx_lt_u32_sdwa {sr(m,2)}, v{V_I}, v{e} src0_sel:DWORD src1_sel:WORD_1")
        rec_load(u, AD(u), soff)
    A(f"s_waitcnt vmcnt({12 if o.dma_early else 0})")
    stamp(A, o, 1)
    A(f"s_mov_b32 s{S_T0}, 0")
    for u in range(16):
        load_rec(u, ent(u), f"s{S_T0}")
        if u < 15:
            A(f"s_add_u32 s{S_T0}, s{S_T0}, {CB}")
    A(f"v_lshrrev_b32 v{T}, 16, v{V_EL}")
    A(f"v_cmp_lt_u32 s[24:25], 16, v{T}")
    A(f"v_cmp_lt_u32 s[26:27], 32, v{T}")
    A(f"v_cmp_lt_u32 s[28:29], 48, v{T}")
    A(f"s_mov_b32 s{S_T0}, {CB}")
    A(f"v_mul_lo_u32 v{T+1}, v{V_TID}, s{S_T0}")
    A(f"v_mad_u32_u16 v{T+2}, v{V_EL}, {RB}, v{T+1}")
    A(f"v_mbcnt_lo_u32_b32 v{T+6}, s24, 0")
    A(f"v_mbcnt_hi_u32_b32 v{T+6}, s25, v{T+6}")
    A(f"s_bcnt1_i32_b64 s{S_T0}, s[24:25]")
    A(f"s_bcnt1_i32_b64 s{S_T1}, s[26:27]")
    A(f"s_add_u32 s{S_T1}, s{S_T1}, s{S_T0}")
    A(f"s_mul_i32 s{S_T2}, s{S_W}, 192")
    A(f"v_mbcnt_lo_u32_b32 v{T+7}, s26, 0")
    A(f"v_mbcnt_hi_u32_b32 v{T+7}, s27, v{T+7}")
    A(f"v_add_u32 v{T+2}, {16*RB}, v{T+2}")
    A(f"v_add_u32 v{T+3}, -16, v{T}")
    A(f"v_add_u32 v{T+4}, {16*RB}, v{T+2}")
    A(f"v_add_u32 v{T+5}, -16, v{T+3}")
    A(f"v_add_u32 v{T+7}, s{S_T0}, v{T+7}")
    A(f"v_lshl_add_u32 v{T+6}, v{T+6}, 3, s{S_T2}")
    A(f"v_lshl_add_u32 v{T+7}, v{T+7}, 3, s{S_T2}")
    A(f"v_lshrrev_b32 v{T+8}, 4, v0")
    A(f"v_lshl_add_u32 v{T+8}, v{T+8}, 3, s{S_T2}")
    A(f"s_cmp_gt_u32 s{S_T1}, {OVCAP}")
    A("s_cbranch_scc1 L_ov_fail")
    A("s_cmp_lg_u64 s[28:29], 0")
    A("s_cbranch_scc1 L_ov_fail")
    A("s_mov_b64 exec, s[24:25]")
    A(f"ds_write_b64 v{T+6}, {vr(T+2,2)} offset:{L_OV}")
    A("s_mov_b64 exec, s[26:27]")
    A(f"ds_write_b64 v{T+7}, {vr(T+4,2)} offset:{L_OV}")
    A("s_mov_b64 exec, -1")
    A.label("L_ov_done")
    for k in range(6):
        A(f"ds_read_b64 {vr(T+10+2*k,2)}, v{T+8} offset:{L_OV+32*k}")
    for k in range(6):
        u = 16 + k
        m = S_VAL + 2 * u
        A(f"s_waitcnt lgkmcnt({5-k})")
        A(f"v_mad_u32_u24 v{AD(u)}, v{V_I}, {RB}, v{T+10+2*k}")
        A(f"v_cmpx_lt_u32 {sr(m,2)}, v{V_I}, v{T+11+2*k}")
        rec_load(u, AD(u), "0")
    stamp(A, o, 2)
    npf = o.k2_prefetch
    def phase_a(u, younger, soff):
        r = rec(u)
        A(f"s_mov_b64 exec, {sr(S_VAL+2*u,2)}")
        A(f"s_waitcnt vmcnt({younger})")
        A(f"v_lshrrev_b32 v{r+3}, 27, v{r+2}")
        A(f"v_bfe_u32 v{V_AD+(u&1)}, v{r+2}, 15, {12 if o.nbk == 16 else 11}")
        A(f"v_lshlrev_b32 v{r+4}, v{r+3}, v{V_ONE}")
        if o.soa:
            A(f"v_lshlrev_b32 v{r+5}, 1, v{r+5}")
        A(f"ds_add_rtn_u32 v{r+4}, v{V_AD+(u&1)}, v{r+4} offset:{L_NI}")
        if o.soa:
            A(f"buffer_load_dwordx2 {vr(r,2)}, v{r+5}, s[8:11], {soff} offen")
    A(f"v_mov_b32 v{V_ONE}, 1")
    A(f"s_mov_b32 s{S_T0}, {COFOFF}")
    A(f"s_mov_b32 s{S_T1}, {COFOFF}")
    for u in range(NSLOT):
        phase_a(u, NSLOT - 1 if o.soa else NSLOT - 1 - u, f"s{S_T0}" if u < 16 else f"s{S_T1}")
        if o.soa and u < 15:
            A(f"s_add_u32 s{S_T0}, s{S_T0}, {CH*8}")
    A.label("L_a_done")
    A("s_mov_b64 exec, -1")
    A("s_waitcnt lgkmcnt(0)")
    stamp(A, o, 4)
    A("s_barrier")
    A(f"s_cmp_eq_u32 s{S_W}, 0")
    A("s_cbranch_scc1 L_node")
    A(f"s_cmp_eq_u32 s{S_MODE}, 0")
    A("s_cbranch_scc0 L_node_wait")
    A(f"s_sub_u32 s{S_T2}, s{S_W}, 1")
    ndma = 0 if (o.wglobal or o.dma_late or o.dma_early) else 16
    if ndma:
        A(f"v_lshlrev_b32 v{T}, 4, v0")
        A(f"s_lshl_b32 s{S_T0}, s{S_T2}, 14")
        A(f"s_add_u32 s{S_T1}, s{S_T0}, {WFOFF}")
        A(f"s_add_u32 s{S_T0}, s{S_T0}, {L_WF}")
        for k in range(4):
            A(f"s_mov_b32 m0, s{S_T0}")
            A(f"s_add_u32 s{S_T0}, s{S_T0}, 4096")
            for kk in range(4):
                A(f"buffer_load_dwordx4 v{T}, s[8:11], s{S_T1} offen offset:{1024*kk} lds")
            if k < 3:
                A(f"s_add_u32 s{S_T1}, s{S_T1}, 4096")
    if npf:
        if o.k2_pfmode == "l2":
            A(f"s_and_b32 s{S_T0}, s{S_BIN}, 31")
            stride = 128
        else:
            A(f"s_mov_b32 s{S_T0}, s{S_BIN}")
            stride = o.k2_pfstride
        A(f"s_mul_i32 s{S_T0}, s{S_T0}, 3")
        A(f"s_add_u32 s{S_T0}, s{S_T0}, s{S_T2}")
        if o.k2_pfmode == "l2":
            A(f"s_mul_i32 s{S_T0}, s{S_T0}, {npf*64*128}")
            A(f"v_mul_u32_u24 v{T+1}, {stride}, v0")
        else:
            per = -(-XBYTES // 768 // 128) * 128
            assert npf * 64 * stride >= per
            A(f"s_mul_i32 s{S_T0}, s{S_T0}, {per}")
            A(f"v_mul_u32_u24 v{T+1}, {stride}, v0")
            A(f"v_add_u32 v{T+1}, s{S_T0}, v{T+1}")
            A(f"s_mov_b32 s{S_T0}, 0")
        for k in range(npf):
            if o.k2_pfmode == "l2":
                A(f"buffer_load_dword v{V_PF}, v{T+1}, s[4:7], s{S_T0} offen")
                if k < npf - 1:
                    A(f"s_add_u32 s{S_T0}, s{S_T0}, {64*128}")
            else:
                if (k + 1) * 64 * stride > per:
                    A(f"s_mov_b32 exec_lo, {hex((1 << min(32, (per - k*64*stride)//stride)) - 1)}")
                    A(f"s_mov_b32 exec_hi, {hex((1 << max(0, (per - k*64*stride)//stride - 32)) - 1)}")
                A(f"buffer_load_dword v{V_PF}, v{T+1}, s[4:7], 0 offen")
                A("s_mov_b64 exec, -1")
                if k < npf - 1:
                    A(f"v_add_u32 v{T+1}, {64*stride}, v{T+1}")
    if o.pfa:
        A(f"s_mul_i32 s{S_T0}, s{S_BIN}, 3")
        A(f"s_add_u32 s{S_T0}, s{S_T0}, s{S_T2}")
        A(f"s_lshl_b32 s{S_T0}, s{S_T0}, 13")
        A(f"v_lshlrev_b32 v{T+1}, 7, v0")
        A(f"buffer_load_dword v{V_PF}, v{T+1}, s[4:7], s{S_T0} offen")
        npf += 1
    if o.soa:
        A(f"s_waitcnt vmcnt({ndma+npf})")
    A("s_branch L_node_done")
    A.label("L_node")
    nw = o.nbk // 4
    X = [T, T + 26]
    SH = T + 52
    A(f"v_lshlrev_b32 v{SH}, {5 if nw == 4 else 4}, v0")
    for k, x in enumerate(X):
        for h in range(nw // 2):
            A(f"ds_read_b128 {vr(x+4*h,4)}, v{SH} offset:{L_NI+k*nw*512+16*h}")
    A(f"v_mov_b32 v{X[0]+20}, v0")
    A(f"v_add_u32 v{X[1]+20}, 64, v0")
    A(f"s_mov_b32 s{S_T0}, 0x01010101")
    A(f"v_mov_b32 v{SH+1}, 1")
    A(f"v_mov_b32 v{SH+5}, 0x3dc")
    for k, x in enumerate(X):
        A(f"v_add_u32 v{x+22}, s{S_NST}, v{x+20}")
        A(f"v_cmp_gt_u32 {sr(24+2*k,2)}, s{S_NN}, v{x+20}")
        A(f"v_lshlrev_b32 v{x+22}, 9, v{x+22}")
        A(f"v_mov_b32 v{x+23}, {BIG}")
        A(f"v_cndmask_b32 v{x+23}, v{x+23}, v{x+22}, {sr(24+2*k,2)}")
    for k, x in enumerate(X):
        A(f"s_waitcnt lgkmcnt({(1-k)*(nw//2)})")
        if nw == 4:
            A(f"v_add3_u32 v{x+21}, v{x}, v{x+2}, v{x+4}")
            A(f"v_add_u32 v{x+21}, v{x+21}, v{x+6}")
        else:
            A(f"v_add_u32 v{x+21}, v{x}, v{x+2}")
        A(f"v_sad_u8 v{x+24}, v{x+21}, 0, 1")
        A(f"v_lshrrev_b32 v{x+24}, 1, v{x+24}")
        A(f"v_min_u32 v{x+24}, {GCAP}, v{x+24}")
        A(f"v_sub_u32 v{x+16}, 62, v{x+24}")
        A(f"v_cndmask_b32 v{x+16}, 63, v{x+16}, {sr(24+2*k,2)}")
        A(f"v_lshlrev_b32 v{x+16}, 2, v{x+16}")
        A(f"ds_add_rtn_u32 v{x+17}, v{x+16}, v{SH+1} offset:{L_CNT}")
    A(f"v_lshlrev_b32 v{SH+2}, 2, v0")
    A(f"ds_read_b32 v{SH+3}, v{SH+2} offset:{L_CNT}")
    for k, x in enumerate(X):
        A(f"v_lshlrev_b32 v{x+8}, 8, v{x+21}")
        A(f"v_mul_lo_u32 v{x+8}, v{x+8}, s{S_T0}")
        for h in range(1, nw):
            A(f"v_add_u32 v{x+8+2*h}, v{x+6+2*h}, v{x+2*h-2}")
    A(f"s_cmp_eq_u32 s{S_MODE}, 0")
    A("s_cbranch_scc1 L_sort")
    A("s_waitcnt lgkmcnt(0)")
    A(f"v_mov_b32 v{X[0]+17}, v{X[0]+20}")
    A(f"v_mov_b32 v{X[1]+17}, v{X[1]+20}")
    A("s_branch L_sorted")
    A.label("L_sort")
    A("s_waitcnt lgkmcnt(0)")
    A(f"v_mov_b32 v{SH+4}, v{SH+3}")
    A("s_nop 1")
    dpp_scan(A, SH + 4)
    A(f"v_sub_u32 v{SH+4}, v{SH+4}, v{SH+3}")
    A(f"ds_bpermute_b32 v{X[0]+21}, v{X[0]+16}, v{SH+4}")
    A(f"ds_bpermute_b32 v{X[1]+21}, v{X[1]+16}, v{SH+4}")
    A("s_waitcnt lgkmcnt(1)")
    A(f"v_add_u32 v{X[0]+17}, v{X[0]+17}, v{X[0]+21}")
    A("s_waitcnt lgkmcnt(0)")
    A(f"v_add_u32 v{X[1]+17}, v{X[1]+17}, v{X[1]+21}")
    A.label("L_sorted")
    for k, x in enumerate(X):
        A(f"v_cmp_gt_u32 vcc, 100, v{x+17}")
        A(f"v_mul_u32_u24 v{x+18}, 205, v{x+17}")
        A(f"v_lshrrev_b32 v{x+18}, 10, v{x+18}")
        A(f"v_mul_u32_u24 v{x+21}, 5, v{x+18}")
        A(f"v_sub_u32 v{x+17}, v{x+17}, v{x+21}")
        if o.xorasg:
            A(f"v_lshrrev_b32 v{x+22}, 1, v{x+18}")
            A(f"v_and_b32 v{x+22}, 14, v{x+22}")
            A(f"v_lshrrev_b32 v{x+22}, v{x+22}, v{SH+5}")
            A(f"v_xor_b32 v{x+21}, v{x+22}, v{x+18}")
            A(f"v_and_b32 v{x+21}, 3, v{x+21}")
        else:
            A(f"v_bfe_u32 v{x+21}, v{x+18}, 2, 1")
            A(f"v_mul_u32_u24 v{x+21}, 3, v{x+21}")
            A(f"v_and_b32 v{x+22}, 3, v{x+18}")
            A(f"v_xor_b32 v{x+21}, v{x+21}, v{x+22}")
        A(f"v_lshrrev_b32 v{x+18}, 2, v{x+18}")
        A(f"v_lshl_add_u32 v{x+19}, v{x+21}, 3, v{x+18}")
        A(f"v_lshlrev_b32 v{x+19}, 2, v{x+19}")
        A(f"v_mad_u32_u24 v{x+22}, v{x+18}, 5, v{x+17}")
        A(f"v_lshl_add_u32 v{x+22}, v{x+21}, 5, v{x+22}")
        A(f"v_lshlrev_b32 v{x+22}, 2, v{x+22}")
        A(f"s_mov_b64 exec, vcc")
        A(f"ds_max_u32 v{x+19}, v{x+24} offset:{L_RG}")
        A(f"ds_write_b32 v{x+22}, v{x+23} offset:{L_NODE}")
        A("s_mov_b64 exec, -1")
        A(f"v_mul_u32_u24 v{x+21}, {WREG}, v{x+21}")
        A(f"v_mul_u32_u24 v{x+18}, {GSTR}, v{x+18}")
        A(f"v_lshl_add_u32 v{x+9}, v{x+17}, 3, v{x+21}")
        A(f"v_mul_u32_u24 v{x+17}, 6, v{x+17}")
        A(f"v_add_u32 v{x+9}, v{x+9}, v{x+18}")
        A(f"v_add_u32 v{x+9}, {L_TBL}, v{x+9}")
        A(f"v_lshl_or_b32 v{x+9}, v{x+17}, 24, v{x+9}")
        for h in range(1, nw):
            A(f"v_mov_b32 v{x+9+2*h}, v{x+9}")
        for h in range(nw // 2):
            A(f"ds_write_b128 v{SH}, {vr(x+8+4*h,4)} offset:{L_NI+k*nw*512+16*h}")
    A.label("L_node_wait")
    A("s_waitcnt vmcnt(0) lgkmcnt(0)")
    A.label("L_node_done")
    stamp(A, o, 5)
    A("s_barrier")
    if o.dma_late and not o.wglobal:
        A(f"s_cmp_eq_u32 s{S_MODE}, 0")
        A("s_cbranch_scc0 L_nodma")
        A(f"v_lshlrev_b32 v{T+60}, 4, v0")
        A(f"s_mul_i32 s{S_T0}, s{S_W}, 12288")
        A(f"s_add_u32 s{S_T1}, s{S_T0}, {WFOFF}")
        A(f"s_add_u32 s{S_T0}, s{S_T0}, {L_WF}")
        for k in range(3):
            A(f"s_mov_b32 m0, s{S_T0}")
            A(f"s_add_u32 s{S_T0}, s{S_T0}, 4096")
            for kk in range(4):
                A(f"buffer_load_dwordx4 v{T+60}, s[8:11], s{S_T1} offen offset:{1024*kk} lds")
            if k < 2:
                A(f"s_add_u32 s{S_T1}, s{S_T1}, 4096")
        A.label("L_nodma")
    A(f"s_lshl_b32 s{S_T2}, s{S_W}, 5")
    A(f"v_mov_b32 v{T+40}, s{S_T2}")
    A(f"ds_read_b128 {vr(T+32,4)}, v{T+40} offset:{L_RG}")
    A(f"ds_read_b32 v{T+36}, v{T+40} offset:{L_RG+16}")
    DEP = 4
    NI = lambda u: T + 2 * (u % (DEP + 1))
    TX = T + 20
    lds = []
    rpos = {}
    def issue(ins):
        A(ins)
        if ins.startswith("ds_"):
            lds.append(ins)
    def s_read(u):
        A(f"s_mov_b64 exec, {sr(S_VAL+2*u,2)}")
        A(f"v_bfe_u32 v{V_AD+(u&1)}, v{rec(u)+2}, 15, {12 if o.nbk == 16 else 11}")
        issue(f"ds_read_b64 {vr(NI(u),2)}, v{V_AD+(u&1)} offset:{L_NI}")
        rpos[u] = len(lds)
    def s_proc(u):
        r = rec(u); n = NI(u)
        a, b = TX + 2 * (u & 1), TX + 4 + 2 * (u & 1)
        A(f"s_mov_b64 exec, {sr(S_VAL+2*u,2)}")
        cnt = min(15, len(lds) - rpos[u])
        A(f"s_waitcnt lgkmcnt({cnt})")
        A(f"v_add_u32 v{a}, v{n}, v{r+4}")
        A(f"v_bfe_u32 v{a}, v{a}, v{r+3}, 8")
        A(f"v_lshl_add_u32 v{b}, v{a}, 6, v{n+1}")
        A(f"v_max_u32 v{V_MAX}, v{V_MAX}, v{a}")
        A(f"v_and_b32 v{b}, 0xffffff, v{b}")
        A(f"v_sub_u32_sdwa v{b+1}, v{b}, v{n+1} dst_sel:DWORD dst_unused:UNUSED_PAD src0_sel:DWORD src1_sel:BYTE_3")
        issue(f"ds_write_b64 v{b}, {vr(r,2)}")
        issue(f"ds_write_b16 v{b+1}, v{r+2} offset:48")
    R0 = T + 32
    M = T + 40
    def mask_atoms():
        at = []
        at.append([f"v_max3_u32 v{M}, v{R0}, v{R0+1}, v{R0+2}",
                   f"v_max3_u32 v{R0}, v{M}, v{R0+3}, v{R0+4}",
                   f"v_cvt_f32_u32 v{M+1}, v{R0}",
                   f"v_readfirstlane_b32 s{S_SEND}, v{R0}",
                   f"v_rcp_f32 v{M+1}, v{M+1}",
                   f"s_min_u32 s{S_SEND}, s{S_SEND}, {GCAP}"])
        at.append([f"v_mul_f32 v{M+1}, 0x47800000, v{M+1}",
                   f"v_cvt_u32_f32 v{M+1}, v{M+1}",
                   f"v_add_u32 v{M+1}, 2, v{M+1}",
                   f"s_bfm_b64 {sr(S_T0,2)}, s{S_SEND}, 0"])
        at.append([f"v_mul_u32_u24 v{M+2+g}, v{R0+g}, v{M+1}" for g in range(5)])
        at.append([f"v_mul_u32_u24 v{M+8+g}, v0, v{M+2+g}" for g in range(5)])
        at.append([f"v_add_u32 v{M+2+g}, v{M+8+g}, v{M+2+g}" for g in range(5)])
        at.append([f"v_lshrrev_b32 v{M+8+g}, 16, v{M+8+g}" for g in range(5)])
        at.append([f"v_lshrrev_b32 v{M+2+g}, 16, v{M+2+g}" for g in range(5)])
        at.append([f"v_cmp_gt_u32 {sr(S_MASK+2*g,2)}, v{M+2+g}, v{M+8+g}" for g in range(5)] +
                  [f"s_mul_i32 s{S_T3}, s{S_W}, {STRB}", f"s_mov_b32 s{S_T2}, s{S_WB}"])
        at.append([f"s_and_b64 {sr(S_MASK+2*g,2)}, {sr(S_MASK+2*g,2)}, {sr(S_T0,2)}" for g in range(5)] +
                  [f"v_mov_b32 v{M+1}, 0", f"v_mov_b32 v{V_SP}, s{S_T3}"])
        for gs in ((0, 1, 2), (3, 4)):
            x = []
            for g in gs:
                x += [f"v_mbcnt_lo_u32_b32 v{M+1}, s{S_MASK+2*g}, v{M+1}", f"v_mbcnt_hi_u32_b32 v{M+1}, s{S_MASK+2*g+1}, v{M+1}"]
            at.append(x)
        at[-1].append(f"v_lshl_add_u32 v{M+1}, v{M+1}, 2, s{S_T3}")
        for g in range(5):
            x = [f"v_lshl_add_u32 v{M+8+g}, v{M+8+g}, 7, s{S_T2}",
                 f"s_mov_b64 exec, {sr(S_MASK+2*g,2)}",
                 f"ds_write_b32 v{M+1}, v{M+8+g} offset:{L_STR}",
                 f"v_add_u32 v{M+1}, 4, v{M+1}"]
            if g < 4:
                x.append(f"s_add_u32 s{S_T2}, s{S_T2}, {GSTR}")
            at.append(x)
        return at
    def atom(x):
        A("s_mov_b64 exec, -1")
        for ins in x:
            issue(ins)
    def pf_at(slot):
        n = 0
        for (sl, first, per) in o.pf:
            if sl != slot:
                continue
            assert per <= 64
            A(f"s_lshl_b32 s3, s{S_BIN}, 2")
            A(f"s_add_u32 s3, s3, s{S_W}")
            A(f"s_mul_i32 s3, s3, {per*128}")
            A(f"s_add_u32 s3, s3, {first*128}")
            A("s_mov_b64 exec, -1")
            A(f"v_lshlrev_b32 v{T+60}, 7, v0")
            A(f"v_add_u32 v{T+60}, s3, v{T+60}")
            if per < 64:
                A(f"s_mov_b32 exec_lo, {hex((1 << min(32, per)) - 1)}")
                A(f"s_mov_b32 exec_hi, {hex((1 << max(0, per - 32)) - 1)}")
            A(f"buffer_load_dword v{V_PF}, v{T+60}, s[4:7], 0 offen")
            n += 1
        return n
    npf += pf_at(-1)
    for u in range(DEP):
        s_read(u)
    atoms = mask_atoms() if o.maskmix else []
    zat = {1: 24}
    for i in range(8):
        zat[min(NSLOT - 1, (15 + 16 * i) // 6 + 1)] = 16 + i
    for u in range(NSLOT):
        if u + DEP < NSLOT:
            s_read(u + DEP)
        s_proc(u)
        if u == 0:
            A(f"s_cmp_eq_u32 s{S_MODE}, 0")
            A("s_cbranch_scc0 L_s_slow")
        if u >= 1 and atoms:
            atom(atoms.pop(0))
        npf += pf_at(u)
        if o.zmix and u in zat:
            A("s_mov_b64 exec, -1")
            A(f"v_mfma_f32_32x32x16_bf16 {acc(zat[u])}, {vr(V_A,4)}, {vr(V_A,4)}, 0")
    while atoms:
        atom(atoms.pop(0))
    if not o.maskmix:
        A.label("L_s_slow")
        stamp(A, o, 6)
        A("s_waitcnt lgkmcnt(0)")
        for x in mask_atoms():
            atom(x)
    A.label("L_s_done")
    A("s_mov_b64 exec, -1")
    if o.maskmix:
        stamp(A, o, 6)
    A(f"v_cmp_le_u32 vcc, {2*GCAP}, v{V_MAX}")
    A(f"v_mov_b32 v{T+20}, 1")
    A(f"v_mov_b32 v{T+21}, 0")
    A("s_cbranch_vccz L_deg_ok")
    A(f"ds_write_b32 v{T+21}, v{T+20} offset:{L_FLAG}")
    A.label("L_deg_ok")
    nb4 = npf
    assert nph in (2, 3)
    A(f"ds_read_b128 v[48:51], v{V_SP} offset:{L_STR}")
    A(f"ds_read_b32 v{V_Q}, v{V_SP} offset:{L_STR+4*(nph+1)}")
    A(f"s_mov_b32 s{S_S}, 0")
    A(f"s_waitcnt vmcnt({nb4}) lgkmcnt(0)")
    A(f"v_add_u32 v47, v48, v{V_HOFF}")
    for t in range(1, nph):
        A(f"v_add_u32 v{V_P+t}, v{48+t}, v{V_HOFF}")
    A(f"v_add_u32 v{V_P}, v{48+nph}, v{V_HOFF}")
    A("v_mov_b32 v49, 0")
    if not o.zmix:
        A(f"s_cmp_eq_u32 s{S_MODE}, 0")
        A("s_cbranch_scc0 L_nozero")
        for m in range(16, 25):
            A(f"v_mfma_f32_32x32x16_bf16 {acc(m)}, {vr(V_A,4)}, {vr(V_A,4)}, 0")
        A.label("L_nozero")
    stamp(A, o, 7)
    A("s_barrier")
    first = [vS + 4, vS + 8, 44][:nph] if nph == 3 else [vS + 4, 44]
    ptrs = [47] + [V_P + t for t in range(1, nph)]
    A(f"ds_read_b32 v48, v49 offset:{L_FLAG}")
    for t in range(nph):
        A(f"ds_read_b96 {vr(first[t],3)}, v{ptrs[t]} offset:48")
    A(f"ds_read_b96 {vr(vS,3)}, v{V_P} offset:48")
    A(f"ds_read_b128 {vr(V_C,4)}, v47")
    A(f"ds_read_b128 {vr(V_C+4,4)}, v47 offset:16")
    A(f"ds_read_b64 {vr(V_C+8,2)}, v47 offset:32")
    A(f"s_waitcnt lgkmcnt({nph+4})")
    A(f"v_readfirstlane_b32 s{S_T0}, v48")
    A(f"s_andn2_b32 s{S_T0}, s{S_T0}, s{S_MODE}")
    A(f"s_cmp_lg_u32 s{S_T0}, 0")
    A("s_cbranch_scc1 L_to_slow")
    A(f"s_cmp_eq_u32 s{S_SEND}, 0")
    A("s_cbranch_scc1 L_nomain" if o.epi2 else "s_cbranch_scc1 L_exit")
    def mad(dst, sreg, j):
        op = " op_sel:[1,0,0,0]" if j & 1 else ""
        A(f"v_mad_u32_u16 v{dst}, v{sreg + (j >> 1)}, s{S_512}, v{V_LOFF}{op}")
    for t in range(nph):
        A(f"s_waitcnt lgkmcnt({nph+3-t})")
        for j in range(5):
            mad(V_AD + (j & 1), first[t], j)
            A(f"buffer_load_dwordx4 {vr(ring+(5*t+j)*4,4)}, v{V_AD+(j&1)}, s[4:7], 0 offen")
    A("s_waitcnt lgkmcnt(0)")
    if o.epi2:
        epi_setup(A)
    stamp(A, o, 8)
    NB = 5 * nph
    def blk(g, p):
        for b in range(NB):
            if b % 5 == g and b % nph == p:
                return b
    K = NB - 1
    stubs = []
    for b in range(NB):
        g, p = b % 5, b % nph
        pn = (p + 1) % nph
        A.label(f"L_blk{b}")
        A(f"s_waitcnt lgkmcnt(3)")
        A(f"v_add_u32 v{V_TP}, v{V_Q}, v{V_HOFF}")
        A(f"ds_read_b96 {vr(vS+4*pn,3)}, v{V_TP} offset:48")
        A(f"ds_read_b32 v{V_Q}, v{V_SP} offset:{L_STR+4*(p+2+nph)}")
        for j in range(5):
            m = 5 * g + j
            B = ring + (5 * p + j) * 4
            if j in (0, 2, 4):
                A(f"s_waitcnt vmcnt({K}) lgkmcnt(4)")
            else:
                A(f"s_waitcnt vmcnt({K})")
            c = V_C + 2 * j
            for r in range(4):
                A(f"v_perm_b32 v{V_A+r}, v{c+1}, v{c}, v{V_SEL+r}")
            mad(V_AD + (j & 1), vS + 4 * p, j)
            if j == 0:
                if g < 4:
                    A(f"s_bitcmp1_b64 {sr(S_MASK+2*(g+1),2)}, s{S_S}")
                else:
                    A(f"s_add_u32 s{S_S}, s{S_S}, 1")
            elif j == 1:
                A(f"ds_read_b128 {vr(V_C,4)}, v{V_P+pn}")
            elif j == 2:
                if g == 4:
                    A(f"s_cmp_lt_u32 s{S_S}, s{S_SEND}")
                elif p == nph - 1:
                    A(f"v_add_u32 v{V_SP}, {4*nph}, v{V_SP}")
                else:
                    A("s_nop 0")
            elif j == 3:
                A(f"ds_read_b128 {vr(V_C+4,4)}, v{V_P+pn} offset:16")
            else:
                A(f"ds_read_b64 {vr(V_C+8,2)}, v{V_P+pn} offset:32")
            A(f"v_mfma_f32_32x32x16_bf16 {acc(m)}, {vr(V_A,4)}, {vr(B,4)}, {acc(m)}")
            A(f"buffer_load_dwordx4 {vr(B,4)}, v{V_AD+(j&1)}, s[4:7], 0 offen")
        A(f"v_mov_b32 v{V_P+pn}, v{V_TP}")
        if g == 4 and p == nph - 1:
            A(f"v_add_u32 v{V_SP}, {4*nph}, v{V_SP}")
        if g < 4:
            A(f"s_cbranch_scc0 L_stub{b}")
            stubs.append(b)
        else:
            A("s_cbranch_scc0 L_exit")
        if b == NB - 1:
            A("s_branch L_blk0")
    for b in stubs:
        g, p = b % 5, b % nph
        pn = (p + 1) % nph
        A.label(f"L_stub{b}")
        for g2 in range(g + 2, 5):
            A(f"s_bitcmp1_b64 {sr(S_MASK+2*g2,2)}, s{S_S}")
            A(f"s_cbranch_scc1 L_blk{blk(g2,pn)}")
        A(f"s_add_u32 s{S_S}, s{S_S}, 1")
        A(f"s_cmp_lt_u32 s{S_S}, s{S_SEND}")
        A(f"s_cbranch_scc1 L_blk{blk(0,pn)}")
        if b != stubs[-1]:
            A("s_branch L_exit")
    A.label("L_exit")
    A("s_waitcnt lgkmcnt(0)" if o.epi2 else "s_waitcnt vmcnt(0) lgkmcnt(0)")
    stamp(A, o, 9)
    A(f"s_cmp_eq_u32 s{S_MODE}, 0")
    A("s_cbranch_scc0 L_next_batch")
    A.label("L_epi")
    (epilogue2 if o.epi2 else epilogue)(A, o)
    if o.padto:
        A(f"s_mov_b32 s10, {WS_USED+64}")
        A(f"v_mov_b32 v1, {WS_USED}")
        A("buffer_load_dword v2, v1, s[8:11], 0 offen")
        A("s_waitcnt vmcnt(0)")
        A("v_readfirstlane_b32 s24, v2")
        A("s_mov_b32 s25, 0")
        A.label("L_pad")
        A("s_memrealtime s[26:27]")
        A("s_waitcnt lgkmcnt(0)")
        A("s_sub_u32 s26, s26, s24")
        A(f"s_cmp_ge_u32 s26, {o.padto}")
        A("s_cbranch_scc1 L_pad_done")
        A("s_add_u32 s25, s25, 1")
        A("s_cmp_lt_u32 s25, 4000")
        A("s_cbranch_scc1 L_pad")
        A.label("L_pad_done")
    if o.padrel:
        A("s_mov_b32 s25, 0")
        A.label("L_padr")
        A("s_memrealtime s[26:27]")
        A("s_waitcnt lgkmcnt(0)")
        A("s_sub_u32 s26, s26, s98")
        A(f"s_cmp_ge_u32 s26, {o.padrel[1]}")
        A("s_cbranch_scc1 L_padr_done")
        A("s_add_u32 s25, s25, 1")
        A("s_cmp_lt_u32 s25, 4000")
        A("s_cbranch_scc1 L_padr")
        A.label("L_padr_done")
    if o.stamps:
        A("s_waitcnt vmcnt(0)")
        stamp(A, o, 13)
        A(f"s_lshl_b32 s{S_T0}, s2, 2")
        A(f"s_add_u32 s{S_T0}, s{S_T0}, s{S_W}")
        stamp_out(A, o, 14, 86, 8, 9, 24, S_T0, 1 << 19)
    A("s_endpgm")

    A.label("L_ov_fail")
    A(f"v_mov_b32 v{T}, 1")
    A(f"v_mov_b32 v{T+1}, 0")
    A(f"ds_write_b32 v{T+1}, v{T} offset:{L_FLAG}")
    A("s_branch L_ov_done")

    if o.maskmix:
        A.label("L_s_slow")
        A("s_waitcnt lgkmcnt(0)")
        for x in mask_atoms():
            atom(x)
        A("s_branch L_s_done")

    A.label("L_to_slow")
    A("s_waitcnt lgkmcnt(0)")
    A(f"v_lshrrev_b32 v{T}, 16, v{V_EL}")
    A(f"v_mov_b32 v{T+1}, 0")
    A(f"ds_max_u32 v{T+1}, v{T} offset:{L_FLAG+4}")
    A("s_waitcnt lgkmcnt(0)")
    A("s_barrier")
    A(f"ds_read_b32 v{T}, v{T+1} offset:{L_FLAG+4}")
    A("s_waitcnt lgkmcnt(0)")
    A(f"v_readfirstlane_b32 s{S_NB}, v{T}")
    A("s_barrier")
    A(f"s_min_u32 s{S_NB}, s{S_NB}, {CH}")
    A(f"s_add_u32 s{S_NB}, s{S_NB}, 15")
    A(f"s_lshr_b32 s{S_NB}, s{S_NB}, 4")
    A(f"s_lshl_b32 s{S_NB}, s{S_NB}, 6")
    A(f"s_mov_b32 s{S_MODE}, 1")
    A(f"s_mov_b32 s{S_B}, 0")
    A("s_branch L_batch")

    if o.epi2:
        A.label("L_nomain")
        A("s_waitcnt lgkmcnt(0)")
        epi_setup(A)
        A("s_branch L_exit")

    A.label("L_next_batch")
    A("s_waitcnt vmcnt(0)")
    A(f"s_add_u32 s{S_B}, s{S_B}, 1")
    A(f"s_cmp_lt_u32 s{S_B}, s{S_NB}")
    A("s_cbranch_scc0 L_epi")

    A.label("L_batch")
    init_small()
    for k in range(25):
        tbl_write(k)
    A(f"v_mov_b32 v{V_ONE}, 1")
    A(f"s_and_b32 s{S_T0}, s{S_B}, 15")
    A(f"v_lshrrev_b32 v{T+20}, 4, v{V_TID}")
    A(f"v_lshlrev_b32 v{T+20}, 6, v{T+20}")
    A(f"s_lshl_b32 s{S_T1}, s{S_T0}, 2")
    A(f"v_add_u32 v{T+20}, s{S_T1}, v{T+20}")
    A(f"buffer_load_dword v{V_E0}, v{T+20}, s[8:11], s{S_TAB} offen")
    A(f"s_mul_i32 s{S_T0}, s{S_T0}, {CB}")
    A(f"s_lshr_b32 s{S_T1}, s{S_B}, 6")
    A(f"s_lshl_b32 s{S_T1}, s{S_T1}, 4")
    A(f"s_bfe_u32 s{S_T2}, s{S_B}, 0x20004")
    A(f"s_cmp_eq_u32 s{S_T2}, s{S_W}")
    A(f"s_cselect_b32 s{S_T3}, -1, 0")
    A("s_waitcnt vmcnt(0)")
    A(f"v_lshrrev_b32 v{T+21}, 16, v{V_E0}")
    A(f"v_and_b32 v{V_E0}, 0xffff, v{V_E0}")
    A(f"v_add_u32 v{V_E0}, s{S_T1}, v{V_E0}")
    A(f"v_max_u32 v{T+21}, s{S_T1}, v{T+21}")
    A(f"v_subrev_u32 v{T+21}, s{S_T1}, v{T+21}")
    A(f"v_and_b32 v{T+21}, s{S_T3}, v{T+21}")
    A(f"v_lshl_or_b32 v{V_E0}, v{T+21}, 16, v{V_E0}")
    load_rec(0, V_E0, f"s{S_T0}")
    for u in range(1, 5):
        A(f"s_mov_b64 {sr(S_VAL+2*u,2)}, 0")
    A("s_waitcnt lgkmcnt(0)")
    A("s_barrier")
    A(f"s_lshl_b32 s{S_T0}, s{S_T0}, 1")
    A(f"s_add_u32 s{S_T0}, s{S_T0}, {COFOFF}")
    phase_a(0, 0, f"s{S_T0}")
    A("s_branch L_a_done")
    A.label("L_k2_end")
    A("s_endpgm")
    return A, 512, 102

def epilogue(A, o):
    V_TW, V_TR, V_WR, V_N2 = 1, 2, 3, 4
    PK = lambda m, q: 112 + 8 * (m - 16) + 2 * q
    OUTB = [32, 48, 64, 80, 96, 184, 200, 216]
    OUT = lambda oo, t: OUTB[2 * oo + t]
    TF = [8, 12, 16]
    TMP = 232
    NOD = 240
    A(f"v_and_b32 v5, 31, v0")
    A(f"v_lshrrev_b32 v6, 5, v0")
    A(f"v_lshlrev_b32 v{V_TW}, 3, v5")
    A(f"v_lshl_add_u32 v{V_TW}, v6, 8, v{V_TW}")
    A(f"v_add_u32 v{V_TW}, s{S_WB}, v{V_TW}")
    A(f"v_min_u32 v{V_TR}, 24, v5")
    A(f"v_mul_u32_u24 v{V_TR}, 1040, v{V_TR}")
    A(f"v_lshl_add_u32 v{V_TR}, v6, 4, v{V_TR}")
    A(f"v_add_u32 v{V_TR}, s{S_WB}, v{V_TR}")
    A(f"v_lshlrev_b32 v{V_WR}, 4, v0")
    A(f"v_lshlrev_b32 v{V_N2}, 2, v5")
    A(f"s_lshl_b32 s{S_T0}, s{S_W}, 7")
    A(f"v_lshl_add_u32 v7, v6, 4, s{S_T0}")
    for a in range(3):
        A(f"ds_read_b128 {vr(8+4*a,4)}, v7 offset:{L_NODE+32*a}")
    A(f"ds_read_b32 v20, v7 offset:{L_NODE+96}")
    A("s_nop 1")
    for m in range(16, 25):
        s = 112 + 16 * (m - 16)
        for k in range(8):
            A(f"v_cvt_pk_bf16_f32 v{PK(m,0)+k}, v{s+2*k}, v{s+2*k+1}")
    A("s_waitcnt lgkmcnt(0)")
    for i in range(13):
        A(f"v_add_u32 v{NOD+i}, v{8+i}, v{V_N2}")

    def conv_write(q, lst):
        out = []
        k = 0
        for m in range(25):
            off = m * 1040 + (q & 1) * 512
            if m < 16:
                t = TMP + 4 * (k & 1); k += 1
                for i in range(4):
                    out.append(f"v_accvgpr_read_b32 v{t+i}, a{16*m+4*q+i}")
                out.append(f"v_cvt_pk_bf16_f32 v{t}, v{t}, v{t+1}")
                out.append(f"v_cvt_pk_bf16_f32 v{t+1}, v{t+2}, v{t+3}")
                out.append(f"ds_write_b64 v{V_TW}, {vr(t,2)} offset:{off}")
            else:
                out.append(f"ds_write_b64 v{V_TW}, {vr(PK(m,q),2)} offset:{off}")
        return out

    plan = {0: [(0, 0, 0), (1, 3, 1), (2, 3, 2), (3, 3, 3)],
            1: [(0, 2, 1), (1, 1, 0), (2, 4, 3), (3, 5, 2)],
            2: [(0, 2, 2), (1, 5, 3), (2, 1, 0), (3, 4, 1)],
            3: [(3, 1, 0), (2, 5, 1), (1, 4, 2), (0, 2, 3)]}
    hole = lambda h: 16 * (h & 15) + 4 * (h >> 4)
    if o.wglobal:
        wbase = {0: 0, 3: 8, 2: 0, 1: 16, 4: 24, 5: 8}
    else:
        wbase = {0: 0, 3: 8, 2: 16, 1: 24, 4: 0, 5: 8}
    steps = []
    for q in range(4):
        steps += [(q, c, b, oo, s) for (c, b, oo) in plan[q] for s in range(4)]
    loaded = set()
    lds = []
    vm = []
    need = {}
    wpos = {}
    def issue(ins):
        A(ins)
        if ins.startswith("ds_"):
            lds.append(ins)
        if ins.startswith("buffer_"):
            vm.append(ins)
    def wload(b, f):
        sreg = 24 + 2 * b + (f >> 2)
        issue(f"buffer_load_dwordx4 {ar(hole(wbase[b]+f),4)}, v{V_WR}, s[8:11], s{sreg} offen offset:{(f & 3)*1024}")
        wpos[(b, f)] = len(vm)
    def reads(k):
        q, c, b, oo, s = steps[k]
        toff = (q & 1) * 512 + (s >> 1) * 256 + c * 64 + (s & 1) * 32
        issue(f"ds_read_b128 {vr(TF[k % 3],4)}, v{V_TR} offset:{toff}")
        if (b, s) not in loaded and not o.wglobal:
            loaded.add((b, s))
            for t in range(2):
                issue(f"ds_read_b128 {ar(hole(wbase[b]+2*s+t),4)}, v{V_WR} offset:{L_WF + b*8192 + (2*s+t)*1024}")
        need[k] = len(lds)
    if o.wglobal:
        for b in range(6):
            for h in range(2):
                A(f"s_mov_b32 s{24+2*b+h}, {WFOFF + b*8192 + h*4096}")
    first = conv_write(0, None)
    nconv = 0
    for ins in first:
        issue(ins)
        if o.wglobal and ins.startswith("v_accvgpr_read") and ins.split("a")[-1].isdigit() and int(ins.split(", a")[1]) % 16 == 3:
            wload(0 if nconv < 8 else 3, nconv & 7)
            nconv += 1
    stamp(A, o, 10)
    G = lambda t, i: 112 + 16 * t + i
    post = gate_and_store(o, OUT, G, NOD, TMP)
    if o.pk:
        A("s_mov_b32 s40, 0xbfb8aa3b")
        A("s_mov_b32 s41, 0xbfb8aa3b")
        A("s_mov_b32 s42, 1.0")
        A("s_mov_b32 s43, 1.0")
    later = {}
    if o.wglobal:
        for f in range(8):
            later.setdefault(5 + f // 2, []).append((2, f))
            later.setdefault(9 + f // 2, []).append((1, f))
            later.setdefault(14 + f // 2, []).append((4, f))
            later.setdefault(18 + f // 2, []).append((5, f))
    started = set()
    waited = 0
    reads(0); reads(1)
    for k in range(64):
        q, c, b, oo, s = steps[k]
        kk = k % 16
        if kk == 0:
            fill = conv_write(q + 1, None) if q < 3 else []
        n = len(fill)
        chunk = fill[min(kk, 14) * n // 14:min(kk + 1, 14) * n // 14]
        if k + 2 < 64:
            reads(k + 2)
        cnt = len(lds) - need[k]
        assert cnt <= 15
        w = f"s_waitcnt lgkmcnt({cnt})"
        if o.wglobal and wpos[(b, 2 * s + 1)] > waited:
            waited = wpos[(b, 2 * s + 1)]
            w = f"s_waitcnt vmcnt({len(vm) - waited}) lgkmcnt({cnt})"
        A(w)
        for t in range(2):
            d = vr(OUT(oo, t), 16)
            cc = d if (oo, t) in started else "0"
            started.add((oo, t))
            if "m" not in o.diag or cc == "0":
                A(f"v_mfma_f32_32x32x16_bf16 {d}, {vr(TF[k % 3],4)}, {ar(hole(wbase[b]+2*s+t),4)}, {cc}")
            for ins in (chunk[:len(chunk)//2] if t == 0 else chunk[len(chunk)//2:]):
                if "w" in o.diag and ins.startswith("ds_"): continue
                if "v" in o.diag and ins.startswith("v_"): continue
                issue(ins)
            if k in later:
                wload(*later[k][t])
        if q == 3 and kk >= 6:
            pos = kk - 6
            j, part = pos // 4, pos % 4
            if j < 3:
                p = post[j]
                nparts = 4 if j < 2 else 2
                for ins in p[part * len(p) // nparts:(part + 1) * len(p) // nparts]:
                    A(ins)
        if k == 47:
            stamp(A, o, 11)
    stamp(A, o, 12)
    A("s_nop 11")
    for ins in post[3]:
        A(ins)

E_TW, E_TR, E_WR, E_N2, E_ND = 44, 45, 46, 47, 48
def epi_setup(A):
    A(f"v_and_b32 v49, 31, v0")
    A(f"v_lshrrev_b32 v50, 5, v0")
    A(f"v_lshlrev_b32 v{E_TW}, 3, v49")
    A(f"v_lshl_add_u32 v{E_TW}, v50, 8, v{E_TW}")
    A(f"v_add_u32 v{E_TW}, s{S_WB}, v{E_TW}")
    A(f"v_min_u32 v{E_TR}, 24, v49")
    A(f"v_mul_u32_u24 v{E_TR}, 1040, v{E_TR}")
    A(f"v_lshl_add_u32 v{E_TR}, v50, 4, v{E_TR}")
    A(f"v_add_u32 v{E_TR}, s{S_WB}, v{E_TR}")
    A(f"v_lshlrev_b32 v{E_WR}, 4, v0")
    A(f"v_lshlrev_b32 v{E_N2}, 2, v49")
    A(f"s_lshl_b32 s{S_T0}, s{S_W}, 7")
    A(f"v_lshl_add_u32 v{E_ND}, v50, 4, s{S_T0}")

def epilogue2(A, o):
    V_TW, V_TR, V_WR, V_N2, V_ND = 1, 2, 3, 4, 5
    PK = lambda m, q: 112 + 8 * (m - 16) + 2 * q
    OUTB = [32, 48, 64, 80, 96, 184, 200, 216]
    OUT = lambda oo, t: OUTB[2 * oo + t]
    TF = [8, 12, 16]
    TMP = 232
    NOD = 240
    G = lambda t, i: 112 + 16 * t + i
    for k, r in enumerate((E_TW, E_TR, E_WR, E_N2, E_ND)):
        A(f"v_mov_b32 v{1+k}, v{r}")
    A("s_nop 3")
    def pack(m, qs):
        s0 = 112 + 16 * (m - 16)
        return [f"v_cvt_pk_bf16_f32 v{PK(m,q)+h}, v{s0+4*q+2*h}, v{s0+4*q+2*h+1}" for q in qs for h in range(2)]
    def conv(q, nodes):
        out = []
        for m in nodes:
            off = m * 1040 + (q & 1) * 512
            if m < 16:
                t = TMP + 4 * (m & 1)
                out += [f"v_accvgpr_read_b32 v{t+i}, a{16*m+4*q+i}" for i in range(4)]
                out.append(f"v_cvt_pk_bf16_f32 v{t}, v{t}, v{t+1}")
                out.append(f"v_cvt_pk_bf16_f32 v{t+1}, v{t+2}, v{t+3}")
                out.append(f"ds_write_b64 v{V_TW}, {vr(t,2)} offset:{off}")
            else:
                out.append(f"ds_write_b64 v{V_TW}, {vr(PK(m,q),2)} offset:{off}")
        return out
    lds = []
    def issue(ins):
        A(ins)
        if ins.startswith("ds_"):
            lds.append(ins)
    late = []
    if o.latepack:
        for m in range(16, 25):
            t = 20 + 2 * ((m - 16) % 6)
            s0 = 112 + 16 * (m - 16)
            A(f"v_cvt_pk_bf16_f32 v{t}, v{s0}, v{s0+1}")
            A(f"v_cvt_pk_bf16_f32 v{t+1}, v{s0+2}, v{s0+3}")
            issue(f"ds_write_b64 v{V_TW}, {vr(t,2)} offset:{m*1040}")
        for m in (23, 24):
            pass
        CT = [20, 24]
    else:
        for m in range(16, 25):
            for ins in pack(m, range(4)):
                A(ins)
        CT = [TMP, TMP + 4]
    def conv0(q, nodes, ct):
        return [x.replace(f"v{TMP}", f"v{TMP}") for x in conv(q, nodes)]
    if o.latepack:
        for m in range(16):
            t = CT[m & 1]
            for i in range(4):
                A(f"v_accvgpr_read_b32 v{t+i}, a{16*m+i}")
            A(f"v_cvt_pk_bf16_f32 v{t}, v{t}, v{t+1}")
            A(f"v_cvt_pk_bf16_f32 v{t+1}, v{t+2}, v{t+3}")
            issue(f"ds_write_b64 v{V_TW}, {vr(t,2)} offset:{m*1040}")
        late = [x for m in range(16, 25) for x in pack(m, (1, 2, 3))]
    else:
        for ins in conv(0, list(range(16, 25)) + list(range(16))):
            issue(ins)
    stamp(A, o, 10)
    blocks = [(0, 0, 0, 0), (0, 1, 3, 1), (0, 2, 3, 2), (0, 3, 3, 3),
              (1, 0, 2, 1), (1, 1, 1, 0), (1, 2, 4, 3), (1, 3, 5, 2),
              (2, 2, 1, 0), (2, 0, 2, 2), (3, 3, 1, 0), (2, 3, 4, 1),
              (3, 2, 5, 1), (3, 1, 4, 2), (2, 1, 5, 3), (3, 0, 2, 3)]
    steps = [b + (s,) for b in blocks for s in range(4)]
    hole = lambda h: 16 * (h & 15) + 4 * (h >> 4)
    wbase = {0: 0, 3: 8, 2: 16, 1: 24, 4: 0, 5: 8}
    firstq = {q: min(k for k, st in enumerate(steps) if st[0] == q) for q in range(4)}
    lastq = {q: max(k for k, st in enumerate(steps) if st[0] == q) for q in range(4)}
    lasto = {oo: max(k for k, st in enumerate(steps) if st[3] == oo) for oo in range(4)}
    loaded = set(); need = {}
    def read_list(k):
        q, c, b, oo, s = steps[k]
        toff = (q & 1) * 512 + (s >> 1) * 256 + c * 64 + (s & 1) * 32
        r = [f"ds_read_b128 {vr(TF[k % 3],4)}, v{V_TR} offset:{toff}"]
        if (b, s) not in loaded:
            loaded.add((b, s))
            for t in range(2):
                r.append(f"ds_read_b128 {ar(hole(wbase[b]+2*s+t),4)}, v{V_WR} offset:{L_WF + b*8192 + (2*s+t)*1024}")
        return r
    def cost(ins):
        if ins.startswith("ds_write"): return 7
        if ins.startswith(("v_exp", "v_rcp")): return 8
        if ins.startswith("s_"): return 4
        return 5 if ins.startswith(("ds_", "buffer_", "v_cvt")) else 4.5
    post = gate_and_store(o, OUT, G, NOD, TMP)
    nodj = [f"ds_read_b128 {vr(NOD+4*a,4)}, v{V_ND} offset:{L_NODE+32*a}" for a in range(3)]
    nodj += [f"ds_read_b32 v{NOD+12}, v{V_ND} offset:{L_NODE+96}", "s_waitcnt lgkmcnt(0)"]
    nodj += [f"v_add_u32 v{NOD+i}, v{NOD+i}, v{V_N2}" for i in range(13)]
    NG = 128
    jobs = []
    if late:
        jobs.append([0, 2 * 7 + 1, late])
    for q in (1, 2, 3):
        rel = 0 if q == 1 else 2 * (lastq[q - 2] - 2) + 1
        jobs.append([rel, 2 * (firstq[q] - 2) - 1, conv(q, list(range(16)) + list(range(16, 25)))])
    jobs.append([2 * (firstq[3] - 2), 2 * (lasto[0] + 1), nodj])
    for oo in range(4):
        rel = 2 * (lasto[oo] + 1) + 1
        jobs.append([rel, NG - 1 if oo < 3 else 10**6, post[oo], oo, False])
    rls = [read_list(k) for k in range(64)]
    fixedc = [sum(cost(x) for x in rls[g // 2 + 2]) if (g % 2 == 0 and g // 2 + 2 < 64) else (4 if g % 2 else 0) for g in range(NG)]
    for ins in rls[0]: issue(ins)
    need[0] = len(lds)
    for ins in rls[1]: issue(ins)
    need[1] = len(lds)
    started = set()
    done_at = {}
    def emit_gap(g, fixed):
        budget = o.gapmin
        for j in jobs:
            if j[2] and g <= j[1] < NG and j[0] <= g + o.look:
                tot = sum(cost(x) for jj in jobs if jj[1] <= j[1] for x in jj[2]) + sum(fixedc[g:j[1] + 1])
                budget = max(budget, tot / (j[1] - g + 1))
        used = fixed
        for j in sorted(jobs, key=lambda j: (j[1], j[0])):
            if j[0] > g:
                continue
            while j[2] and (used + cost(j[2][0]) / 2 <= budget or j[1] <= g):
                if len(j) > 3 and not j[4]:
                    d = len(A.L) - done_at[j[3]]
                    if d < 12:
                        A(f"s_nop {11 - d}")
                    j[4] = True
                ins = j[2].pop(0)
                if ins.startswith("s_waitcnt lgkmcnt(0)"):
                    A(ins)
                else:
                    issue(ins)
                used += cost(ins)
            if j[2]:
                break
    for k in range(64):
        q, c, b, oo, s = steps[k]
        cnt = min(15, len(lds) - need[k])
        A(f"s_waitcnt vmcnt(0) lgkmcnt({cnt})" if k == 0 else f"s_waitcnt lgkmcnt({cnt})")
        for t in range(2):
            d = vr(OUT(oo, t), 16)
            cc = d if (oo, t) in started else "0"
            started.add((oo, t))
            A(f"v_mfma_f32_32x32x16_bf16 {d}, {vr(TF[k % 3],4)}, {ar(hole(wbase[b]+2*s+t),4)}, {cc}")
            done_at[oo] = len(A.L)
            fixed = 0
            if t == 0 and k + 2 < 64:
                rl = rls[k + 2]
                for ins in rl:
                    issue(ins)
                need[k + 2] = len(lds)
                fixed += sum(cost(x) for x in rl)
            if t == 1:
                fixed += 4
            emit_gap(2 * k + t, fixed)
        if k == 47:
            stamp(A, o, 11)
    stamp(A, o, 12)
    A("s_nop 11")
    for j in jobs:
        for ins in j[2]:
            A(ins)

def gate_and_store(o, OUT, G, NOD, TMP):
    res = []
    p = []
    for t in range(2):
        if o.pk:
            for i in range(0, 13, 2):
                p.append(f"v_pk_mul_f32 {vr(G(t,i),2)}, {vr(OUT(0,t)+i,2)}, s[40:41]")
        else:
            for i in range(13):
                p.append(f"v_mul_f32 v{G(t,i)}, 0xbfb8aa3b, v{OUT(0,t)+i}")
        for i in range(13):
            p.append(f"v_exp_f32 v{G(t,i)}, v{G(t,i)}")
        if o.pk:
            for i in range(0, 13, 2):
                p.append(f"v_pk_add_f32 {vr(G(t,i),2)}, {vr(G(t,i),2)}, s[42:43]")
        else:
            for i in range(13):
                p.append(f"v_add_f32 v{G(t,i)}, 1.0, v{G(t,i)}")
        for i in range(13):
            p.append(f"v_rcp_f32 v{G(t,i)}, v{G(t,i)}")
    for i in range(13):
        r = TMP + (i & 7)
        p.append(f"v_cvt_pk_bf16_f32 v{r}, v{OUT(0,0)+i}, v{OUT(0,1)+i}")
        p.append(f"buffer_store_dword v{r}, v{NOD+i}, s[12:15], 0 offen {o.out_store}")
    res.append(p)
    for oo in range(1, 4):
        p = []
        for i in range(13):
            r = TMP + (i & 7)
            if o.pk:
                if i % 2 == 0:
                    p.append(f"v_pk_mul_f32 {vr(OUT(oo,0)+i,2)}, {vr(OUT(oo,0)+i,2)}, {vr(G(0,i),2)}")
                    p.append(f"v_pk_mul_f32 {vr(OUT(oo,1)+i,2)}, {vr(OUT(oo,1)+i,2)}, {vr(G(1,i),2)}")
            else:
                p.append(f"v_mul_f32 v{OUT(oo,0)+i}, v{OUT(oo,0)+i}, v{G(0,i)}")
                p.append(f"v_mul_f32 v{OUT(oo,1)+i}, v{OUT(oo,1)+i}, v{G(1,i)}")
            p.append(f"v_cvt_pk_bf16_f32 v{r}, v{OUT(oo,0)+i}, v{OUT(oo,1)+i}")
            pol = o.last_store if (oo == 3 and o.last_store is not None) else o.out_store
            p.append(f"buffer_store_dword v{r}, v{NOD+i}, s[12:15], 0 offen offset:{128*oo} {pol}")
        res.append(p)
    return res

def descriptor(name, vg, sg):
    accum = min(256, (vg + 3) // 4 * 4)
    return f""".amdhsa_kernel {name}
  .amdhsa_next_free_vgpr {vg}
  .amdhsa_next_free_sgpr {sg}
  .amdhsa_accum_offset {accum}
  .amdhsa_group_segment_fixed_size 0
  .amdhsa_kernarg_size 96
  .amdhsa_user_sgpr_count 2
  .amdhsa_user_sgpr_kernarg_segment_ptr 1
  .amdhsa_system_sgpr_workgroup_id_x 1
  .amdhsa_float_denorm_mode_32 3
.end_amdhsa_kernel"""

HEADER = """; Equiformer-style tensor-product message passing, two launches:
"""

def build(o):
    a1, v1, s1 = k1(o)
    a2, v2, s2 = k2(o)
    n1, n2 = "sort_kernel", "main_kernel"
    t = HEADER
    t += "; @launch kernel=empty_kernel grid=(256,1,1) block=(64,1,1) lds=0\n" * o.extra_pre
    t += f"; @launch kernel={n1} grid=(256,1,1) block=({K1_BLOCK},1,1) lds={K1_LDS}\n"
    t += f"; @launch kernel={n2} grid=(256,1,1) block=(256,1,1) lds={K2_LDS}\n"
    t += "; @launch kernel=empty_kernel grid=(256,1,1) block=(64,1,1) lds=0\n" * o.extra_post
    extra = o.extra_pre + o.extra_post
    t += '.amdgcn_target "amdgcn-amd-amdhsa--gfx950"\n.text\n'
    for n, a in ((n1, a1), (n2, a2)):
        t += f".globl {n}\n.p2align 8\n.type {n},@function\n{n}:\n{a.text()}\n"
    if extra:
        t += ".globl empty_kernel\n.p2align 8\n.type empty_kernel,@function\nempty_kernel:\n    s_endpgm\n"
    t += '.section .rodata,"a"\n.p2align 6\n' + descriptor(n1, v1, s1) + "\n.p2align 6\n" + descriptor(n2, v2, s2) + "\n"
    if extra:
        t += ".p2align 6\n" + descriptor("empty_kernel", 8, 16) + "\n"
    return t, a1, a2

if __name__ == "__main__":
    o = Opt()
    t, a1, a2 = build(o)
    out = sys.argv[1] if len(sys.argv) > 1 else f"cdna_kernels/{NAME}.s"
    open(out, "w").write(t)
    print("wrote", out, len(a1.L), len(a2.L))
```

```python
import re, collections
import numpy as np
U32 = np.uint32
LANES = np.arange(64, dtype=np.int64)

class EmuError(Exception):
    pass

VCC, EXEC, M0 = 106, 126, 124
SPECIAL = {"vcc": (VCC, 2), "vcc_lo": (VCC, 1), "vcc_hi": (VCC + 1, 1), "exec": (EXEC, 2),
           "exec_lo": (EXEC, 1), "exec_hi": (EXEC + 1, 1), "m0": (M0, 1)}

def f32(u): return np.asarray(u, dtype=U32).view(np.float32)
def u32(f): return np.asarray(f, dtype=np.float32).view(U32)
def bf16_rne(f):
    u = u32(f).astype(np.uint64)
    r = ((u + 0x7FFF + ((u >> 16) & 1)) >> 16).astype(U32) & 0xFFFF
    nan = np.isnan(np.asarray(f, dtype=np.float32))
    return np.where(nan, U32(0x7FC0), r).astype(U32)

class Op:
    __slots__ = ("kind", "idx", "n", "val")
    def __init__(self, kind, idx=0, n=1, val=0):
        self.kind, self.idx, self.n, self.val = kind, idx, n, val

def parse_operand(t):
    t = t.strip()
    if t in SPECIAL:
        i, n = SPECIAL[t]; return Op("s", i, n)
    m = re.fullmatch(r"([vsa])(\d+)", t)
    if m:
        k = m.group(1); i = int(m.group(2))
        return Op("v", i + 256, 1) if k == "a" else Op(k, i, 1)
    m = re.fullmatch(r"([vsa])\[(\d+):(\d+)\]", t)
    if m:
        k = m.group(1); i = int(m.group(2)); n = int(m.group(3)) - i + 1
        if k in "va" and n > 1 and i % 2: raise EmuError("unaligned tuple " + t)
        if k == "s" and n == 2 and i % 2: raise EmuError("unaligned sgpr pair " + t)
        if k == "s" and n >= 4 and i % 4: raise EmuError("unaligned sgpr quad " + t)
        return Op("v", i + 256, n) if k == "a" else Op(k, i, n)
    if re.fullmatch(r"-?(0x[0-9a-fA-F]+|\d+)", t):
        v = int(t, 0)
        return Op("c", val=v)
    if re.fullmatch(r"-?\d+\.\d+", t):
        return Op("c", val=int(u32(float(t))))
    return Op("l", val=t)

class Ins:
    pass

def parse(lines):
    prog = []; labels = {}
    for l in lines:
        if l.endswith(":"):
            labels[l[:-1]] = len(prog); continue
        I = Ins(); I.text = l
        parts = l.split(None, 1)
        I.mn = parts[0]
        rest = parts[1] if len(parts) > 1 else ""
        I.mods = {}
        if I.mn == "s_waitcnt":
            I.vm = I.lg = None
            m = re.search(r"vmcnt\((\d+)\)", rest); I.vm = int(m.group(1)) if m else None
            m = re.search(r"lgkmcnt\((\d+)\)", rest); I.lg = int(m.group(1)) if m else None
            assert I.vm is None or I.vm < 64
            assert I.lg is None or I.lg < 16
            I.ops = []
        else:
            toks = []
            depth = 0; cur = ""
            for ch in rest:
                if ch == "[": depth += 1
                if ch == "]": depth -= 1
                if ch == "," and depth == 0:
                    toks.append(cur); cur = ""
                else:
                    cur += ch
            toks.append(cur)
            last = toks[-1].strip().split()
            ops = [t.strip() for t in toks[:-1]]
            if last:
                ops.append(last[0])
                for md in last[1:]:
                    if ":" in md:
                        k, v = md.split(":", 1); I.mods[k] = v
                    else:
                        I.mods[md] = True
            I.ops = [parse_operand(t) for t in ops if t]
        classify(I)
        prog.append(I)
    return prog, labels

TRANS = ("v_exp_f32", "v_rcp_f32", "v_log_f32", "v_rsq_f32", "v_sqrt_f32")
def regs(o):
    return [(o.kind, o.idx + i) for i in range(o.n)] if o.kind in "vs" else []

def classify(I):
    mn = I.mn; ops = I.ops
    I.valu = mn.startswith("v_") and not mn.startswith("v_mfma")
    I.mfma = mn.startswith("v_mfma")
    I.vmem = mn.startswith("buffer_")
    I.ds = mn.startswith("ds_")
    I.salu = mn.startswith("s_")
    I.trans = mn in TRANS
    I.dpp = mn.endswith("_dpp")
    w, r = [], []
    if I.valu or I.mfma:
        w = regs(ops[0])
        for o in ops[1:]: r += regs(o)
        if mn.startswith("v_cmpx"): w += [("s", EXEC), ("s", EXEC + 1)]
        if I.dpp: r += regs(ops[0])
    elif I.ds:
        if mn.startswith("ds_read"):
            w = regs(ops[0]); r = regs(ops[1])
        elif mn == "ds_bpermute_b32":
            w = regs(ops[0]); r = regs(ops[1]) + regs(ops[2])
        elif "_rtn_" in mn:
            w = regs(ops[0]); r = regs(ops[1]) + regs(ops[2])
        else:
            for o in ops: r += regs(o)
    elif I.vmem:
        if "lds" in I.mods:
            for o in ops: r += regs(o)
            r += [("s", M0)]
        elif "load" in mn:
            w = regs(ops[0])
            for o in ops[1:]: r += regs(o)
        else:
            for o in ops: r += regs(o)
    elif I.salu:
        if mn.startswith(("s_cmp", "s_bitcmp")):
            for o in ops: r += regs(o)
        elif mn.startswith(("s_cbranch", "s_branch", "s_nop", "s_barrier", "s_endpgm", "s_waitcnt", "s_setprio", "s_sleep")):
            pass
        else:
            w = regs(ops[0])
            for o in ops[1:]: r += regs(o)
            if "saveexec" in mn: w += [("s", EXEC), ("s", EXEC + 1)]
    I.w = set(w); I.r = set(r)
    I.states = (ops[0].val + 1) if mn == "s_nop" else 1

class Mem:
    def __init__(self):
        self.bufs = []
        self.next = 0x7f0000000000
    def add(self, name, arr, writable=False):
        arr = np.ascontiguousarray(arr).view(np.uint8).reshape(-1)
        base = self.next
        self.next += (len(arr) + (1 << 21)) // 4096 * 4096 + 4096
        self.bufs.append((base, arr, name, writable))
        return base
    def find(self, base):
        for b, arr, name, wr in self.bufs:
            if b <= base <= b + len(arr):
                return b, arr, name, wr
        raise EmuError(f"SRD base {base:#x} in no buffer")

class WG:
    def __init__(self, prog, labels, mem, kernarg, wgid, nthreads, ldsbytes, maxsteps=5_000_000, nvgpr=512, nsgpr=102):
        self.prog, self.labels, self.mem = prog, labels, mem
        self.kernarg = kernarg
        self.lds = np.random.default_rng(wgid).integers(0, 256, ldsbytes, dtype=np.uint8)
        self.ldsn = ldsbytes
        self.lw_epoch = np.full(ldsbytes, -1, dtype=np.int32); self.lw_wave = np.full(ldsbytes, -1, dtype=np.int16)
        self.lr_epoch = np.full(ldsbytes, -1, dtype=np.int32); self.lr_wave = np.full(ldsbytes, -1, dtype=np.int16)
        self.lw_atomic = np.zeros(ldsbytes, dtype=bool)
        self.dma_pending = np.zeros(ldsbytes, dtype=np.int16)
        self.epoch = 0
        self.waves = [Wave(self, w, wgid, nthreads, nvgpr, nsgpr) for w in range((nthreads + 63) // 64)]
        self.maxsteps = maxsteps
        self.race_ignore = []
    def run(self):
        while True:
            states = []
            for w in self.waves:
                if not w.done:
                    states.append(w.run())
            alive = [w for w in self.waves if not w.done]
            if not alive: break
            self.epoch += 1
        return self

class Wave:
    def __init__(self, wg, wid, wgid, nthreads, nvgpr, nsgpr):
        self.wg, self.wid = wg, wid
        rng = np.random.default_rng(1000 * wgid + wid)
        self.v = rng.integers(0, 2**32, (512, 64), dtype=np.uint64).astype(U32)
        self.vinit = np.zeros(512, dtype=bool)
        self.s = rng.integers(0, 2**32, 128, dtype=np.uint64).astype(U32)
        self.sinit = np.zeros(128, dtype=bool)
        self.nvgpr, self.nsgpr = nvgpr, nsgpr
        self.s[0] = 0x1000; self.s[1] = 0; self.s[2] = wgid
        self.sinit[[0, 1, 2, EXEC, EXEC + 1]] = True
        tid = wid * 64 + LANES
        self.v[0] = tid.astype(U32); self.vinit[0] = True
        self.setmask(EXEC, tid < nthreads)
        self.scc = 0; self.pc = 0; self.done = False
        self.vmq = collections.deque(); self.lgq = collections.deque()
        self.pend = collections.Counter(); self.pendq = {}
        self.hist = collections.deque(maxlen=24)
        self.steps = 0
        self.count = collections.Counter()
    def setmask(self, i, m):
        x = int(np.packbits(m.astype(np.uint8), bitorder="little").view(np.uint64)[0])
        self.s[i] = x & 0xFFFFFFFF; self.s[i + 1] = x >> 32; self.sinit[i] = self.sinit[i + 1] = True
    def getmask(self, i):
        x = np.array([int(self.s[i]) | (int(self.s[i + 1]) << 32)], dtype=np.uint64)
        return np.unpackbits(x.view(np.uint8), bitorder="little").astype(bool)
    @property
    def exec(self): return self.getmask(EXEC)
    def err(self, I, msg):
        raise EmuError(f"wave {self.wid} pc {self.pc}: {I.text}: {msg}")
    def sget(self, o):
        if o.kind == "c": return o.val & 0xFFFFFFFF
        assert o.kind == "s"
        return int(self.s[o.idx])
    def sget64(self, o):
        if o.kind == "c": return o.val & 0xFFFFFFFFFFFFFFFF
        return int(self.s[o.idx]) | (int(self.s[o.idx + 1]) << 32)
    def sset(self, o, val):
        self.s[o.idx] = val & 0xFFFFFFFF; self.sinit[o.idx] = True
        if o.n == 2:
            self.s[o.idx + 1] = (val >> 32) & 0xFFFFFFFF; self.sinit[o.idx + 1] = True
    def src(self, o, k=0):
        if o.kind == "v": return self.v[o.idx + k]
        if o.kind == "s": return np.full(64, self.s[o.idx + k], dtype=U32)
        if o.kind == "c":
            val = o.val & 0xFFFFFFFF if k == 0 else (0xFFFFFFFF if o.val < 0 else 0)
            return np.full(64, val, dtype=U32)
        raise EmuError("bad src")
    def src64(self, o):
        return self.src(o, 0).astype(np.uint64) | (self.src(o, 1).astype(np.uint64) << np.uint64(32))
    def vset(self, o, val, k=0, mask=None):
        m = self.exec if mask is None else mask
        self.v[o.idx + k] = np.where(m, np.asarray(val).astype(U32), self.v[o.idx + k])
        self.vinit[o.idx + k] = True
    def check(self, I):
        for r in I.r:
            if self.pend[r]: self.err(I, f"reads {r} with a load pending")
            if r[0] == "v" and not self.vinit[r[1]]: self.err(I, f"reads unwritten {r}")
            if r[0] == "s" and not self.sinit[r[1]]: self.err(I, f"reads unwritten {r}")
        for r in I.w:
            if self.pend[r]:
                same = (I.vmem and self.pendq[r] is self.vmq) or (I.ds and self.pendq[r] is self.lgq)
                if not same: self.err(I, f"writes {r} with a load pending")
        for r in I.r | I.w:
            if r[0] == "v" and r[1] >= self.nvgpr: self.err(I, "vgpr out of range")
            if r[0] == "s" and self.nsgpr <= r[1] < 102: self.err(I, "sgpr out of range")
        d = 0
        for P in reversed(self.hist):
            need = self.hazard(P, I)
            if d < need: self.err(I, f"hazard: needs {need} wait states after '{P.text}', has {d}")
            d += P.states
            if d >= 20: break
    def pend_vm_ok(self, I):
        return I.w
    def hazard(self, P, I):
        need = 0
        vw = {r for r in P.w if r[0] == "v"}; sw = {r for r in P.w if r[0] == "s"}
        ex = {("s", EXEC), ("s", EXEC + 1)}
        if P.valu:
            if I.mfma and vw & I.r: need = max(need, 2)
            if I.valu and (sw - ex) & I.r: need = max(need, 2)
            if I.vmem and sw & I.r: need = max(need, 5)
            if I.mn.startswith(("v_readlane", "v_readfirstlane")) and vw & I.r: need = max(need, 1)
            if I.dpp and vw & I.r: need = max(need, 2)
            if sw & ex:
                if I.dpp: need = max(need, 5)
                if I.mn.startswith(("v_readlane", "v_readfirstlane", "v_writelane")) or I.mfma: need = max(need, 4)
                if I.valu and ex & I.r: need = max(need, 2)
            if P.trans and I.valu and not I.trans and vw & I.r: need = max(need, 1)
        if P.mfma:
            D = vw
            if I.mfma:
                c = set(regs(I.ops[3]));  ab = set(regs(I.ops[1])) | set(regs(I.ops[2]))
                if D & ab: need = max(need, 12)
                if D & c and D != c: need = max(need, 10)
                if I.w & D and not (D == c): need = max(need, 10)
            elif (I.valu or I.vmem or I.ds) and D & (I.r | I.w): need = max(need, 12)
            pc = set(regs(P.ops[3]))
            if I.valu and pc & I.w: need = max(need, 7)
        if P.vmem and P.mn in ("buffer_store_dwordx3", "buffer_store_dwordx4"):
            if set(regs(P.ops[0])) & I.w: need = max(need, 2 if I.valu else 1)
        if P.salu and ("s", M0) in P.w and I.vmem and "lds" in I.mods: need = max(need, 1)
        return need
    def lds_idx(self, I, addr, nb, mask):
        a = addr.astype(np.int64) + int(I.mods.get("offset", 0))
        ok = mask & (a >= 0) & (a + nb <= self.wg.ldsn)
        if nb >= 8 and np.any(a[mask] % (16 if nb > 8 else 8)): self.err(I, "misaligned LDS access")
        if nb == 4 and np.any(a[mask] % 4): self.err(I, "misaligned LDS access")
        return a, ok
    def lds_read_track(self, I, idx):
        g = self.wg
        if np.any(g.dma_pending[idx]): self.err(I, "reads LDS bytes with a DMA pending")
        bad = (g.lw_epoch[idx] == g.epoch) & (g.lw_wave[idx] != self.wid)
        if np.any(bad) and not any(lo <= idx[bad][0] < hi for lo, hi in g.race_ignore):
            self.err(I, f"LDS RAW race at {idx[bad][0]} (writer wave {g.lw_wave[idx][bad][0]})")
        multi = (g.lr_epoch[idx] == g.epoch) & (g.lr_wave[idx] != self.wid)
        g.lr_epoch[idx] = g.epoch
        g.lr_wave[idx] = np.where(multi, -2, self.wid)
    def lds_write_track(self, I, idx, data, atomic=False):
        g = self.wg
        same_epoch = (g.lw_epoch[idx] == g.epoch) & (g.lw_wave[idx] != self.wid)
        if atomic:
            bad = same_epoch & ~g.lw_atomic[idx]
            if np.any(bad) and not (g.allow_garbage and g.epoch <= 5): self.err(I, f"LDS atomic/plain race at {idx[bad][0]}")
            changed = np.ones(len(idx), dtype=bool)
        else:
            changed = g.lds[idx] != data
            bad = changed & same_epoch
            if np.any(bad) and not (g.allow_garbage and g.epoch <= 5): self.err(I, f"LDS WAW race at {idx[bad][0]}")
        bad = changed & (g.lr_epoch[idx] == g.epoch) & (g.lr_wave[idx] != self.wid)
        if np.any(bad) and not any(lo <= idx[bad][0] < hi for lo, hi in g.race_ignore) and not (g.allow_garbage and g.epoch <= 5):
            self.err(I, f"LDS WAR race at {idx[bad][0]}")
        ch = idx[changed]
        g.lw_wave[ch] = np.where(same_epoch[changed] & atomic, -2, self.wid)
        g.lw_epoch[ch] = g.epoch
        g.lw_atomic[ch] = atomic
    def push(self, q, dst, data, kind):
        for r in dst:
            self.pend[r] += 1; self.pendq[r] = q
        q.append((dst, data, kind))
    def retire(self, q, n):
        while len(q) > n:
            dst, data, kind = q.popleft()
            for r in dst: self.pend[r] -= 1
            if data is not None: data()
    def buf(self, I, srd, voff, soff, nb, mask):
        s = srd.idx
        base = int(self.s[s]) | ((int(self.s[s + 1]) & 0xFFFF) << 32)
        if int(self.s[s + 1]) >> 16: self.err(I, "stride bits set")
        if int(self.s[s + 3]) != 0x20000: self.err(I, "bad SRD word 3")
        num = int(self.s[s + 2])
        b, arr, name, wr = self.wg.mem.find(base)
        if base - b + num > len(arr): self.err(I, f"SRD range exceeds buffer {name}")
        so = self.sget(soff)
        off = voff.astype(np.int64) + int(I.mods.get("offset", 0))
        tot = off + so
        inr = tot + nb <= num
        amb = mask & ~inr & (off + nb <= num)
        if np.any(amb): self.err(I, "out of range only through soffset")
        part = mask & ~inr & (tot < num)
        if np.any(part): self.err(I, "partially out of range")
        if np.any(tot[mask] % min(nb, 4)): self.err(I, "misaligned buffer access")
        return arr, (base - b) + tot, mask & inr, wr
    def run(self):
        g = self.wg; prog = g.prog
        while True:
            I = prog[self.pc]
            self.steps += 1
            if self.steps > g.maxsteps: self.err(I, "too many steps")
            self.check(I)
            self.count[I.mn] += 1
            nxt = self.pc + 1
            mn = I.mn; ops = I.ops
            if I.valu: self.valu(I)
            elif I.mfma: self.do_mfma(I)
            elif I.ds: self.do_ds(I)
            elif I.vmem: self.do_vmem(I)
            elif mn == "s_waitcnt":
                if I.vm is not None: self.retire(self.vmq, I.vm)
                if I.lg is not None:
                    if any(k == "smem" for _, _, k in self.lgq) and I.lg != 0: self.err(I, "counted lgkm wait with SMEM outstanding")
                    self.retire(self.lgq, I.lg)
            elif mn == "s_endpgm":
                self.retire(self.vmq, 0); self.retire(self.lgq, 0)
                self.done = True; return
            elif mn == "s_barrier":
                if any(k == "w" for _, _, k in self.lgq): self.err(I, "barrier with LDS writes outstanding")
                self.hist.append(I); self.pc = nxt; return
            elif mn == "s_branch": nxt = g.labels[ops[0].val]
            elif mn == "s_cbranch_scc0":
                if not self.scc: nxt = g.labels[ops[0].val]
            elif mn == "s_cbranch_scc1":
                if self.scc: nxt = g.labels[ops[0].val]
            elif mn == "s_cbranch_execz":
                if not self.exec.any(): nxt = g.labels[ops[0].val]
            elif mn == "s_cbranch_vccz":
                if not self.getmask(VCC).any(): nxt = g.labels[ops[0].val]
            elif mn in ("s_nop", "s_setprio"): pass
            else: self.salu(I)
            self.hist.append(I)
            self.pc = nxt
    def salu(self, I):
        mn = I.mn; o = I.ops; M = 0xFFFFFFFF
        if mn.startswith("s_load_dword"):
            n = o[0].n
            addr = self.sget64(o[1]); assert addr == 0x1000
            vals = [self.wg.kernarg[(o[2].val // 4) + i] for i in range(n)]
            def ap(o0=o[0], vals=vals):
                for i, x in enumerate(vals): self.s[o0.idx + i] = x; self.sinit[o0.idx + i] = True
            self.push(self.lgq, regs(o[0]), ap, "smem"); return
        if mn == "s_memrealtime":
            def ap(o0=o[0]): self.sset(o0, 12345)
            self.push(self.lgq, regs(o[0]), ap, "smem"); return
        if mn == "s_mov_b32": self.sset(o[0], self.sget(o[1])); return
        if mn == "s_mov_b64": self.sset(o[0], self.sget64(o[1])); return
        if mn == "s_and_saveexec_b64":
            e = self.sget64(Op("s", EXEC, 2)); x = self.sget64(o[1])
            self.sset(o[0], e); self.sset(Op("s", EXEC, 2), e & x); self.scc = int((e & x) != 0); return
        if mn == "s_and_b64":
            x = self.sget64(o[1]) & self.sget64(o[2]); self.sset(o[0], x); self.scc = int(x != 0); return
        if mn == "s_bcnt1_i32_b64":
            x = bin(self.sget64(o[1])).count("1"); self.sset(o[0], x); self.scc = int(x != 0); return
        if mn == "s_bitcmp1_b64":
            self.scc = (self.sget64(o[0]) >> (self.sget(o[1]) & 63)) & 1; return
        if mn == "s_cmp_lg_u64": self.scc = int(self.sget64(o[0]) != self.sget64(o[1])); return
        if mn.startswith("s_cmp_"):
            a, b = self.sget(o[0]), self.sget(o[1])
            self.scc = int({"eq": a == b, "lg": a != b, "lt": a < b, "gt": a > b, "ge": a >= b, "le": a <= b}[mn.split("_")[2]]); return
        a = self.sget(o[1]); b = self.sget(o[2])
        if mn == "s_add_u32": x = a + b; self.scc = int(x > M)
        elif mn == "s_addc_u32": x = a + b + self.scc; self.scc = int(x > M)
        elif mn == "s_sub_u32": x = a - b; self.scc = int(x < 0)
        elif mn == "s_mul_i32": x = a * b
        elif mn == "s_lshl_b32": x = (a << (b & 31)) & M; self.scc = int(x != 0)
        elif mn == "s_lshr_b32": x = a >> (b & 31); self.scc = int(x != 0)
        elif mn == "s_and_b32": x = a & b; self.scc = int(x != 0)
        elif mn == "s_or_b32": x = a | b; self.scc = int(x != 0)
        elif mn == "s_andn2_b32": x = a & ~b & M; self.scc = int(x != 0)
        elif mn == "s_min_u32": x = min(a, b); self.scc = int(a < b)
        elif mn == "s_max_u32": x = max(a, b); self.scc = int(a > b)
        elif mn == "s_bfm_b64":
            self.sset(o[0], (((1 << (a & 63)) - 1) << (b & 63)) & 0xFFFFFFFFFFFFFFFF); return
        elif mn == "s_cselect_b32": x = a if self.scc else b
        elif mn == "s_bfe_u32": x = (a >> (b & 31)) & ((1 << ((b >> 16) & 0x7f)) - 1); self.scc = int(x != 0)
        else: self.err(I, "unknown salu")
        self.sset(o[0], x & M)
    def sel(self, x, s):
        if s in (None, "DWORD"): return x
        if s.startswith("WORD_"): return (x >> U32(16 * int(s[5]))) & U32(0xFFFF)
        return (x >> U32(8 * int(s[5]))) & U32(0xFF)
    def valu(self, I):
        mn = I.mn; o = I.ops
        with np.errstate(all="ignore"):
            self._valu(I, mn, o)
    def _valu(self, I, mn, o):
        q = lambda x: x.astype(np.uint64)
        if mn == "v_readfirstlane_b32":
            e = self.exec; l = int(np.argmax(e)) if e.any() else 0
            self.sset(o[0], int(self.v[o[1].idx][l])); return
        if mn == "v_readlane_b32":
            self.sset(o[0], int(self.v[o[1].idx][self.sget(o[2]) & 63])); return
        if mn.startswith("v_cmp"):
            base = mn.replace("_sdwa", "").split("_")
            a = self.sel(self.src(o[1]), I.mods.get("src0_sel")); b = self.sel(self.src(o[2]), I.mods.get("src1_sel"))
            assert base[3] == "u32"
            r = {"eq": a == b, "lt": a < b, "gt": a > b, "le": a <= b, "ge": a >= b, "ne": a != b}[base[2]] & self.exec
            self.setmask(o[0].idx, r)
            if base[1] == "cmpx": self.setmask(EXEC, r)
            return
        if I.dpp:
            ctl = [k for k in I.mods if k.startswith(("row_shr", "row_bcast"))][0]; n = int(I.mods[ctl])
            rm = int(I.mods["row_mask"], 0)
            x = self.src(o[1])
            if ctl == "row_shr":
                srcl = LANES - n; valid = (LANES % 16) >= n
            elif n == 15:
                srcl = (LANES // 16) * 16 - 1; valid = LANES >= 16
            else:
                srcl = np.full(64, 31); valid = LANES >= 32
            valid = valid & (((rm >> (LANES // 16)) & 1) == 1) & self.exec[np.clip(srcl, 0, 63)]
            y = x[np.clip(srcl, 0, 63)]
            assert mn == "v_add_u32_dpp"
            self.vset(o[0], y + self.src(o[2]), mask=self.exec & valid); return
        if mn == "v_cndmask_b32":
            m = self.getmask(VCC if len(o) == 3 else o[3].idx)
            self.vset(o[0], np.where(m, self.src(o[2]), self.src(o[1]))); return
        if mn in ("v_pk_mul_f32", "v_pk_add_f32"):
            rs = []
            for k in range(2):
                a_, b_ = f32(self.src(o[1], k)), f32(self.src(o[2], k))
                rs.append(u32(a_ * b_ if "mul" in mn else a_ + b_))
            for k in range(2): self.vset(o[0], rs[k], k)
            return
        if mn in ("v_lshlrev_b64", "v_lshrrev_b64"):
            sh = q(self.src(o[1]) & U32(63)); x = self.src64(o[2])
            r = (x << sh) if "shl" in mn else (x >> sh)
            self.vset(o[0], r & np.uint64(0xFFFFFFFF), 0); self.vset(o[0], r >> np.uint64(32), 1); return
        if mn == "v_mov_b32" or mn == "v_accvgpr_read_b32" or mn == "v_accvgpr_write_b32":
            self.vset(o[0], self.src(o[1])); return
        a = self.src(o[1]); b = self.src(o[2]) if len(o) > 2 else None; c = self.src(o[3]) if len(o) > 3 else None
        if mn.endswith("_sdwa"):
            a = self.sel(a, I.mods.get("src0_sel")); b = self.sel(b, I.mods.get("src1_sel")); mn = mn[:-5]
            assert I.mods["dst_sel"] == "DWORD"
        u24 = lambda x: q(x & U32(0xFFFFFF))
        if mn == "v_add_u32": r = a + b
        elif mn == "v_sub_u32": r = a - b
        elif mn == "v_subrev_u32": r = b - a
        elif mn == "v_lshlrev_b32": r = b << (a & U32(31))
        elif mn == "v_lshrrev_b32": r = b >> (a & U32(31))
        elif mn == "v_and_b32": r = a & b
        elif mn == "v_or_b32": r = a | b
        elif mn == "v_xor_b32": r = a ^ b
        elif mn == "v_min_u32": r = np.minimum(a, b)
        elif mn == "v_max_u32": r = np.maximum(a, b)
        elif mn == "v_add3_u32": r = a + b + c
        elif mn == "v_max3_u32": r = np.maximum(np.maximum(a, b), c)
        elif mn == "v_mul_u32_u24": r = (u24(a) * u24(b)) & np.uint64(0xFFFFFFFF)
        elif mn == "v_mad_u32_u24": r = (u24(a) * u24(b) + q(c)) & np.uint64(0xFFFFFFFF)
        elif mn == "v_mul_lo_u32": r = (q(a) * q(b)) & np.uint64(0xFFFFFFFF)
        elif mn == "v_mul_hi_u32": r = (q(a) * q(b)) >> np.uint64(32)
        elif mn == "v_mad_u32_u16":
            os_ = eval(I.mods.get("op_sel", "[0,0,0,0]"))
            aa = (a >> U32(16 * os_[0])) & U32(0xFFFF); bb = (b >> U32(16 * os_[1])) & U32(0xFFFF)
            r = (q(aa) * q(bb) + q(c)) & np.uint64(0xFFFFFFFF)
        elif mn == "v_lshl_add_u32": r = (a << (b & U32(31))) + c
        elif mn == "v_add_lshl_u32": r = (a + b) << (c & U32(31))
        elif mn == "v_lshl_or_b32": r = (a << (b & U32(31))) | c
        elif mn == "v_and_or_b32": r = (a & b) | c
        elif mn == "v_bfi_b32": r = (a & b) | (~a & c)
        elif mn == "v_bfe_u32": r = (a >> (b & U32(31))) & ((U32(1) << (c & U32(31))) - U32(1))
        elif mn == "v_perm_b32":
            src = q(b) | (q(a) << np.uint64(32)); r = np.zeros(64, dtype=np.uint64)
            for k in range(4):
                s = (c >> U32(8 * k)) & U32(0xFF)
                assert np.all((s < 8) | (s == 0x0c))
                byte = np.where(s < 8, (src >> (q(s & U32(7)) * np.uint64(8))) & np.uint64(0xFF), np.uint64(0))
                r |= byte << np.uint64(8 * k)
        elif mn == "v_sad_u8":
            r = c.copy()
            for k in range(4):
                x = ((a >> U32(8 * k)) & U32(0xFF)).astype(np.int64); y = ((b >> U32(8 * k)) & U32(0xFF)).astype(np.int64)
                r = r + np.abs(x - y).astype(U32)
        elif mn in ("v_mbcnt_lo_u32_b32", "v_mbcnt_hi_u32_b32"):
            m = int(a[0]); lo = "lo" in mn
            bits = np.array([(m >> i) & 1 for i in range(32)]); cum = np.concatenate([[0], np.cumsum(bits)])
            idx = np.clip(LANES, 0, 32) if lo else np.clip(LANES - 32, 0, 32)
            r = cum[idx].astype(U32) + b
        elif mn == "v_mul_f32": r = u32(f32(a) * f32(b))
        elif mn == "v_add_f32": r = u32(f32(a) + f32(b))
        elif mn == "v_exp_f32": r = u32(np.exp2(f32(a)))
        elif mn == "v_rcp_f32": r = u32(np.float32(1) / f32(a) * np.float32(1 + self.wg.rcp_bias))
        elif mn == "v_cvt_f32_u32": r = u32(a.astype(np.float32))
        elif mn == "v_cvt_u32_f32":
            f = f32(a).astype(np.float64); f = np.where(np.isnan(f), 0, f); r = np.clip(np.trunc(f), 0, 4294967295).astype(np.uint64)
        elif mn == "v_cvt_pk_bf16_f32": r = bf16_rne(f32(a)) | (bf16_rne(f32(b)) << U32(16))
        else: self.err(I, "unknown valu")
        self.vset(o[0], r)
    def do_mfma(self, I):
        o = I.ops
        def frag(op):
            x = self.v[op.idx:op.idx + 4]
            e = np.empty((64, 8), dtype=U32)
            e[:, 0::2] = (x.T << U32(16)); e[:, 1::2] = (x.T & U32(0xFFFF0000))
            f = e.view(np.float32)
            m = np.empty((32, 16), dtype=np.float32)
            m[:, :8] = f[:32]; m[:, 8:] = f[32:]
            return m
        with np.errstate(all="ignore"):
            D = frag(o[1]).astype(np.float64) @ frag(o[2]).astype(np.float64).T
        i = np.arange(16)
        rows = ((i >> 2) * 8 + (i & 3))[:, None] + (LANES >> 5)[None, :] * 4
        val = D[rows, (LANES & 31)[None, :]]
        if o[3].kind == "v": val = val + self.v[o[3].idx:o[3].idx + 16].view(np.float32)
        else: assert o[3].val == 0
        with np.errstate(all="ignore"):
            self.v[o[0].idx:o[0].idx + 16] = val.astype(np.float32).view(U32)
        self.vinit[o[0].idx:o[0].idx + 16] = True
    def do_ds(self, I):
        mn = I.mn; o = I.ops; g = self.wg; e = self.exec
        size = {"b16": 2, "b32": 4, "u32": 4, "b64": 8, "u64": 8, "b96": 12, "b128": 16}[mn.split("_")[-1]]
        if mn == "ds_bpermute_b32":
            srcl = ((self.src(o[1]) >> U32(2)) & U32(63)).astype(np.int64)
            val = np.where(e[srcl], self.src(o[2])[srcl], U32(0))
            def ap(o0=o[0], val=val, e=e): self.vset(o0, val, 0, e)
            self.push(self.lgq, regs(o[0]), ap, "r"); return
        if mn.startswith("ds_read"):
            a, ok = self.lds_idx(I, self.src(o[1]), size, e)
            idx = (a[ok][:, None] + np.arange(size)[None, :])
            self.lds_read_track(I, idx.reshape(-1))
            data = np.zeros((64, size), dtype=np.uint8); data[ok] = g.lds[idx]
            words = data.view(U32)
            def ap(o0=o[0], words=words, e=e):
                for k in range(o0.n): self.vset(o0, words[:, k], k, e)
            self.push(self.lgq, regs(o[0]), ap, "r"); return
        if mn.startswith("ds_write"):
            a, ok = self.lds_idx(I, self.src(o[0]), size, e)
            words = np.stack([self.src(o[1], k) for k in range(max(1, size // 4))], axis=1)
            data = np.ascontiguousarray(words).view(np.uint8)[:, :size]
            idx = (a[ok][:, None] + np.arange(size)[None, :])
            if np.any(g.dma_pending[idx]): self.err(I, "write to DMA-pending LDS")
            self.lds_write_track(I, idx.reshape(-1), data[ok].reshape(-1))
            g.lds[idx] = data[ok]
            self.push(self.lgq, [], None, "w"); return
        rtn = "_rtn_" in mn
        ao, do = (o[1], o[2]) if rtn else (o[0], o[1])
        a, ok = self.lds_idx(I, self.src(ao), size, e)
        if size == 8: d = self.src64(do)
        else: d = self.src(do).astype(np.uint64)
        old = np.zeros(64, dtype=np.uint64)
        order = np.nonzero(ok)[0]
        if g.shuffle_atomics: order = np.random.default_rng(self.steps).permutation(order)
        dt = np.uint64 if size == 8 else U32
        for l in order:
            view = g.lds[a[l]:a[l] + size].view(dt)
            x = int(view[0]); old[l] = x
            if "add" in mn: y = (x + int(d[l])) & ((1 << (8 * size)) - 1)
            elif "max" in mn: y = max(x, int(d[l]))
            elif "_or_" in mn: y = x | int(d[l])
            else: self.err(I, "unknown ds")
            view[0] = y
        idx = (a[ok][:, None] + np.arange(size)[None, :]).reshape(-1)
        self.lds_write_track(I, idx, g.lds[idx], atomic=True)
        if rtn:
            def ap(o0=o[0], old=old, e=e):
                self.vset(o0, old & np.uint64(0xFFFFFFFF), 0, e)
                if o0.n == 2: self.vset(o0, old >> np.uint64(32), 1, e)
            self.push(self.lgq, regs(o[0]), ap, "r")
        else:
            self.push(self.lgq, [], None, "w")
    def do_vmem(self, I):
        mn = I.mn; o = I.ops; g = self.wg; e = self.exec
        size = {"ushort": 2, "dword": 4, "dwordx2": 8, "dwordx3": 12, "dwordx4": 16}[mn.split("_")[-1]]
        if len(self.vmq) >= 63: self.retire(self.vmq, 62)
        if "lds" in I.mods:
            arr, a, ok, wr = self.buf(I, o[1], self.src(o[0]), o[2], size, e)
            la = int(self.s[M0]) + int(I.mods.get("offset", 0)) + LANES * 16
            if la.max() + 16 > g.ldsn: self.err(I, "DMA beyond LDS")
            data = np.zeros((64, size), dtype=np.uint8); data[ok] = arr[a[ok][:, None] + np.arange(size)[None, :]]
            idx = (la[e][:, None] + np.arange(size)[None, :])
            g.dma_pending[idx] += 1
            def ap(idx=idx, data=data[e]):
                g.dma_pending[idx] -= 1; g.lds[idx] = data
                g.lw_epoch[idx] = g.epoch; g.lw_wave[idx] = self.wid
            self.push(self.vmq, [], ap, "dma"); return
        arr, a, ok, wr = self.buf(I, o[2], self.src(o[1]), o[3], size, e)
        idx = a[ok][:, None] + np.arange(size)[None, :]
        if "load" in mn:
            data = np.zeros((64, max(size, 4)), dtype=np.uint8); data[ok, :size] = arr[idx]
            words = data.view(U32)
            g.stats["loads"] += 1
            def ap(o0=o[0], words=words, e=e):
                for k in range(o0.n): self.vset(o0, words[:, k], k, e)
            self.push(self.vmq, regs(o[0]), ap, "r")
        else:
            if not wr: self.err(I, "store to read-only buffer")
            words = np.stack([self.src(o[0], k) for k in range(size // 4)], axis=1)
            arr[idx] = np.ascontiguousarray(words).view(np.uint8)[ok]
            self.push(self.vmq, [], None, "w")

def run_wg(prog, labels, mem, kernarg, wgid, nthreads, lds, nvgpr, nsgpr, rcp_bias=0.0, shuffle=True, race_ignore=(), allow_garbage=False, maxsteps=5_000_000):
    g = WG(prog, labels, mem, kernarg, wgid, nthreads, lds, nvgpr=nvgpr, nsgpr=nsgpr, maxsteps=maxsteps)
    g.rcp_bias = rcp_bias; g.shuffle_atomics = shuffle; g.race_ignore = list(race_ignore); g.allow_garbage = allow_garbage
    g.stats = collections.Counter()
    g.run()
    return g
```

```python
import sys

NAME = "gather_scatter__tensor_product_equiv_equiformer__graph"
N = 25000
E = 800000
XBYTES = N * 512
NCH = 250
CH = 3200
RECB = 12
CHB = CH * RECB
REC_TOTAL = NCH * CHB
COFOFF = NCH * CH * 4
TABOFF = REC_TOTAL
WFOFF = TABOFF + 256 * 1024
WS_USED = WFOFF + 6 * 8192

class Opt:
    nph = 3
    k1_prefetch = False
    soa = True
    k2_pfmode = "mall"
    k2_pfstride = 128
    wglobal = False
    pk = False
    maskmix = True
    pfa = False
    pf = (("a15", 12), ("a21", 12), (-1, 12), (2, 12), (5, 12), (8, 12), (11, 12), (14, 13))
    rot = True
    k1pf = 0
    k1pf_at = "b3"
    dma_early = False
    dma_late = False
    pfb = None
    xorasg = True
    k1x4 = True
    last_store = None
    diag = ""
    epi2 = True
    latepack = True
    gapmin = 24
    tdist = 2
    stagger = True
    look = 30
    zmix = True
    whyb = False
    pad_k2 = 0
    pad_main = None
    pad_epi = 0
    nbk = 16
    init_b = 25
    init_a = 8
    tab_early = None
    w_store = ""
    k1_cstore2 = None
    k1_cfirst = True
    k1_tstore = ""
    k1_cstore = "sc1"
    k1_store = "sc1"
    out_store = "sc1"
    k2_prefetch = 0
    stamps = False
    guard = False
    dbgstamps = False
    padto = 0
    padrel = None
    extra_pre = 0
    extra_post = 0

class Asm:
    def __init__(self):
        self.L = []
    def __call__(self, s):
        for line in s.strip().split("\n"):
            line = line.strip()
            if line:
                self.L.append(line)
    def label(self, s):
        self.L.append(s + ":")
    def text(self):
        out = []
        for l in self.L:
            out.append(l if l.endswith(":") else "    " + l)
        return "\n".join(out)

def vr(a, n):
    return f"v[{a}:{a+n-1}]" if n > 1 else f"v{a}"
def ar(a, n):
    return f"a[{a}:{a+n-1}]" if n > 1 else f"a{a}"
def sr(a, n):
    return f"s[{a}:{a+n-1}]" if n > 1 else f"s{a}"

def srd(A, s, lo, hi, size):
    A(f"s_mov_b32 s{s}, s{lo}")
    A(f"s_mov_b32 s{s+1}, s{hi}")
    A(f"s_mov_b32 s{s+2}, {size}")
    A(f"s_mov_b32 s{s+3}, 0x20000")

def guard(A, o, tag):
    if o.guard:
        A("s_load_dword s3, s[0:1], 96")
        A("s_waitcnt lgkmcnt(0)")
        A("s_cmp_eq_u32 s3, 0x5eed1234")
        A(f"s_cbranch_scc0 L_{tag}_end")

def dpp_scan(A, v):
    for ctl in ("row_shr:1", "row_shr:2", "row_shr:4", "row_shr:8"):
        A(f"v_add_u32_dpp v{v}, v{v}, v{v} {ctl} row_mask:0xf bank_mask:0xf")
        A("s_nop 1")
    A(f"v_add_u32_dpp v{v}, v{v}, v{v} row_bcast:15 row_mask:0xa bank_mask:0xf")
    A("s_nop 1")
    A(f"v_add_u32_dpp v{v}, v{v}, v{v} row_bcast:31 row_mask:0xc bank_mask:0xf")

STAMP_OFF = 16 << 20
def stamp(A, o, idx, base=86):
    if o.padrel and base == 86 and idx == o.padrel[0]:
        A("s_memrealtime s[98:99]")
        A("s_waitcnt lgkmcnt(0)")
    if o.stamps and (o.stamps != "lite" or (base, idx) in ((72, 0), (72, 6), (86, 0), (86, 8), (86, 9), (86, 13))):
        assert idx < 14
        A(f"s_memrealtime s[{base+14}:{base+15}]")
        A("s_waitcnt lgkmcnt(0)")
        A(f"s_mov_b32 s{base+idx}, s{base+14}")
def stamp_out(A, o, n, base, lo, hi, srd0, slot_sgpr, region):
    if o.stamps and o.dbgstamps:
        lab = f"L_st_{region}"
        A(f"s_cmp_eq_u32 s{slot_sgpr}, {o.dbgstamps}")
        A(f"s_cbranch_scc0 {lab}")
        A(f"s_load_dwordx2 s[{srd0}:{srd0+1}], s[0:1], 80")
        A("s_waitcnt lgkmcnt(0)")
        if not region:
            A(f"s_add_u32 s{srd0}, s{srd0}, 512")
            A(f"s_addc_u32 s{srd0+1}, s{srd0+1}, 0")
            sel = [0, 6]
            off = 0
        else:
            sel = list(range(14))
            off = 8
        A("s_mov_b64 exec, 1")
        A(f"s_mov_b32 s{srd0+2}, 64")
        A(f"s_mov_b32 s{srd0+3}, 0x20000")
        A("v_mov_b32 v1, 0")
        for k, i in enumerate(sel):
            A(f"v_mov_b32 v2, s{base+i}")
            A(f"buffer_store_dword v2, v1, s[{srd0}:{srd0+3}], 0 offen offset:{off+4*k}")
        A.label(lab)
    elif o.stamps:
        A("s_mov_b64 exec, 1")
        A(f"s_add_u32 s{srd0}, s{lo}, {STAMP_OFF+region}")
        A(f"s_addc_u32 s{srd0+1}, s{hi}, 0")
        A(f"s_mov_b32 s{srd0+2}, {1<<19}")
        A(f"s_mov_b32 s{srd0+3}, 0x20000")
        A(f"s_lshl_b32 s{slot_sgpr}, s{slot_sgpr}, 6")
        A("v_mov_b32 v1, 0")
        for i in range(n):
            A(f"v_mov_b32 v2, s{base+i}")
            A(f"buffer_store_dword v2, v1, s[{srd0}:{srd0+3}], s{slot_sgpr} offen offset:{4*i}")

K1_HIST, K1_BASE, K1_STG = 0, 1024, 2048
K1_LDS = K1_STG + CH * 16
K1_BLOCK = 832
K1_PFO = 48

def k1(o):
    A = Asm()
    guard(A, o, "k1")
    A("s_cmp_ge_u32 s2, 256")
    A("s_cbranch_scc1 L_k1_end")
    stamp(A, o, 0, 72)
    if o.padto:
        A("s_memrealtime s[66:67]")
    A("s_load_dwordx4 s[4:7], s[0:1], 0")
    A("s_load_dwordx4 s[8:11], s[0:1], 16")
    A("s_load_dwordx4 s[12:15], s[0:1], 32")
    A("s_load_dwordx4 s[16:19], s[0:1], 48")
    A("s_load_dwordx2 s[20:21], s[0:1], 88")
    A("s_and_b32 s22, s2, 7")
    A("s_lshl_b32 s22, s22, 5")
    A("s_lshr_b32 s23, s2, 3")
    A("s_add_u32 s22, s22, s23")
    A("v_lshlrev_b32 v1, 4, v0")
    A("v_mul_u32_u24 v2, 24, v0")
    A("v_lshlrev_b32 v3, 3, v0")
    A("s_lshl_b32 s60, s22, 2")
    A(f"s_add_u32 s60, s60, {TABOFF}")
    A("s_cmp_ge_u32 s22, 250")
    A("s_cbranch_scc1 L_k1_wprep")
    A(f"s_mul_i32 s56, s22, {CH*4}")
    A(f"s_mul_i32 s57, s22, {CH*6}")
    A(f"s_mul_i32 s58, s22, {CH*2}")
    A(f"s_mul_i32 s{K1_PFO}, s22, {400*128}")
    A("v_cmp_gt_u32 vcc, 800, v0")
    A("s_and_b64 exec, exec, vcc")
    A("v_mov_b32 v44, 0")
    A("v_mov_b32 v45, 0")
    A("v_mov_b32 v46, 0")
    A("v_mov_b32 v47, 0")
    A("v_readfirstlane_b32 s61, v0")
    A("s_cmp_lt_u32 s61, 64")
    A("s_cbranch_scc0 L_k1_nz")
    A(f"ds_write_b128 v1, v[44:47] offset:{K1_HIST}")
    A.label("L_k1_nz")
    A("s_mov_b32 s62, 43980466")
    A("s_mov_b32 s63, 3125")
    A("s_mov_b32 s64, 0xc0000000")
    A(f"s_mov_b32 s65, {0xc0000 if o.nbk == 16 else 0x40000}")
    A("v_mov_b32 v50, 1")
    A("v_lshlrev_b32 v60, 12, v0")
    if o.tab_early is not None:
        for i in range(4):
            A(f"v_mov_b32 v{64+i}, 0")
    A("s_waitcnt lgkmcnt(0)")
    srd(A, 24, 12, 13, E * 4)
    A("buffer_load_dwordx4 v[4:7], v1, s[24:27], s56 offen")
    srd(A, 28, 10, 11, E * 4)
    srd(A, 32, 6, 7, E * 6)
    srd(A, 36, 8, 9, E * 2)
    A("s_barrier")
    A("buffer_load_dwordx4 v[8:11], v1, s[28:31], s56 offen")
    A("buffer_load_dwordx4 v[12:15], v2, s[32:35], s57 offen")
    A("buffer_load_dwordx2 v[16:17], v2, s[32:35], s57 offen offset:16")
    A("buffer_load_dwordx2 v[18:19], v3, s[36:39], s58 offen")
    npf = 0
    if o.k1_prefetch:
        srd(A, 40, 4, 5, XBYTES)
        A("v_lshlrev_b32 v48, 6, v0")
    if o.k1_prefetch == "early":
        A(f"buffer_load_dword v49, v48, s[40:43], s{K1_PFO} offen")
        npf = 1
    srd(A, 44, 20, 21, WS_USED + (64 if o.padto else 0))
    if o.padto:
        A("s_cmp_eq_u32 s2, 0")
        A("s_cbranch_scc0 L_k1_nt")
        A(f"v_mov_b32 v61, s66")
        A(f"v_mov_b32 v62, {WS_USED}")
        A("buffer_store_dword v61, v62, s[44:47], 0 offen")
        A("s_waitcnt vmcnt(0)")
        A.label("L_k1_nt")
    A(f"s_waitcnt vmcnt({4+npf})")
    stamp(A, o, 1, 72)
    for i in range(4):
        A(f"v_mul_hi_u32 v{52+i}, v{4+i}, s62")
    for i in range(4):
        A(f"v_lshlrev_b32 v{20+i}, 2, v{52+i}")
        A(f"ds_add_rtn_u32 v{24+i}, v{20+i}, v50 offset:{K1_HIST}")
    for i in range(4):
        A(f"v_mad_u32_u24 v{52+i}, v{52+i}, s63, 31")
    for i in range(4):
        A(f"v_lshrrev_b32 v{52+i}, 5, v{52+i}")
    for i in range(4):
        A(f"v_sub_u32 v{4+i}, v{4+i}, v{52+i}")
    A("s_waitcnt lgkmcnt(0)")
    stamp(A, o, 2, 72)
    A("s_barrier")
    A("s_cmp_lt_u32 s61, 64")
    A("s_cbranch_scc0 L_k1_ns")
    A(f"ds_read_b128 v[52:55], v1 offset:{K1_HIST}")
    A("s_waitcnt lgkmcnt(0)")
    A("v_add_u32 v56, v52, v53")
    A("v_add_u32 v57, v56, v54")
    A("v_add_u32 v58, v57, v55")
    A("v_mov_b32 v59, v58")
    A("s_nop 1")
    dpp_scan(A, 59)
    A("v_sub_u32 v44, v59, v58")
    A("v_add_u32 v45, v44, v52")
    A("v_add_u32 v46, v44, v56")
    A("v_add_u32 v47, v44, v57")
    A(f"ds_write_b128 v1, v[44:47] offset:{K1_BASE}")
    for i in range(4):
        A(f"v_lshl_or_b32 v{64+i}, v{52+i}, 16, v{44+i}")
    A("s_waitcnt lgkmcnt(0)")
    A.label("L_k1_ns")
    A("s_barrier")
    ntab = 0
    if o.tab_early is not None:
        ntab = 4
        A("s_mov_b64 s[50:51], exec")
        A("v_cmp_gt_u32 vcc, 64, v0")
        A("s_and_b64 exec, exec, vcc")
        for i in range(4):
            A(f"buffer_store_dword v{64+i}, v60, s[44:47], s60 offen offset:{1024*i} {o.tab_early}")
        A("s_mov_b64 exec, s[50:51]")
    npf += ntab
    stamp(A, o, 3, 72)
    for i in range(4):
        A(f"ds_read_b32 v{44+i}, v{20+i} offset:{K1_BASE}")
    if o.soa:
        A(f"s_mul_i32 s56, s22, {CH*4}")
        A("s_lshl_b32 s68, s56, 1")
        A(f"s_add_u32 s68, s68, {COFOFF}")
        for i in range(1, 4):
            A(f"s_add_u32 s{56+i}, s56, {3200*i}")
            A(f"s_add_u32 s{68+i}, s68, {6400*i}")
        A("v_lshlrev_b32 v2, 2, v0")
    else:
        A(f"s_mul_i32 s56, s22, {CHB}")
        A("s_add_u32 s57, s56, 9600")
        A("s_add_u32 s58, s56, 19200")
        A("s_add_u32 s59, s56, 28800")
        A("v_mul_u32_u24 v2, 12, v0")
    def k1_pf():
        per = o.k1pf
        srd(A, 40, 4, 5, XBYTES)
        A("s_lshr_b32 s49, s61, 6")
        if o.rot:
            A("s_and_b32 s50, s22, 31")
            A("s_mul_i32 s50, s50, 13")
            A("s_add_u32 s49, s49, s50")
            A(f"s_mul_i32 s49, s49, {per*128}")
            A("s_lshr_b32 s50, s22, 5")
            A(f"s_mul_i32 s50, s50, {XBYTES//8}")
            A("s_add_u32 s49, s49, s50")
            A(f"s_add_u32 s49, s49, {(12500 - per*13*32)*128}")
        else:
            A("s_mul_i32 s50, s22, 13")
            A("s_add_u32 s49, s49, s50")
            A(f"s_mul_i32 s49, s49, {per*128}")
        A("v_and_b32 v48, 63, v0")
        A("v_lshlrev_b32 v48, 7, v48")
        A("s_mov_b64 s[50:51], exec")
        A(f"s_mov_b32 exec_lo, {hex((1 << min(32, per)) - 1)}")
        A("s_mov_b32 exec_hi, 0")
        A("buffer_load_dword v49, v48, s[40:43], s49 offen")
        A("s_mov_b64 exec, s[50:51]")
    if o.k1pf and o.k1pf_at == "b3":
        assert o.k1pf <= 32
        k1_pf()
        npf += 1
    A(f"s_waitcnt vmcnt({3+npf})")
    R = [28, 32, 36, 40]
    b16 = o.nbk == 16
    for i in range(4):
        A(f"v_mul_u32_u24 v{56+i}, 0x29f00, v{8+i}")
        A(f"v_lshl_or_b32 v{52+i}, v{4+i}, {20 if b16 else 19}, v{8+i}")
    if o.rot:
        for i in range(4):
            A(f"v_lshrrev_b32 v{61 + (i & 1)}, 7, v{20+i}")
            A(f"v_lshlrev_b32 v{61 + (i & 1)}, 29, v{61 + (i & 1)}")
            A(f"v_sub_u32 v{56+i}, v{56+i}, v{61 + (i & 1)}")
    for i in range(4):
        A(f"v_and_or_b32 v{52+i}, v{56+i}, s64, v{52+i}")
        A(f"v_lshrrev_b32 v{56+i}, {10 if b16 else 11}, v{56+i}")
    for i in range(4):
        A(f"v_and_or_b32 v{R[i]+2}, v{56+i}, s65, v{52+i}")
    A("s_waitcnt lgkmcnt(0)")
    x4 = o.soa and o.k1x4
    for i in range(4):
        A(f"v_add_lshl_u32 v{44+i}, v{44+i}, v{24+i}, {2 if x4 else 4}")
        if x4:
            A(f"ds_write_b32 v{44+i}, v{R[i]+2} offset:{K1_STG+25600}")
            A(f"v_lshlrev_b32 v{44+i}, 1, v{44+i}")
    A(f"s_waitcnt vmcnt({npf})")
    src = [((18, 0), (12, 0), (12, 1), (13, 0)),
           ((18, 1), (13, 1), (14, 0), (14, 1)),
           ((19, 0), (15, 0), (15, 1), (16, 0)),
           ((19, 1), (16, 1), (17, 0), (17, 1))]
    for i in range(4):
        for k, (r, h) in enumerate(src[i]):
            if h == 0:
                A(f"v_lshlrev_b32 v{52+k}, 16, v{r}")
            else:
                A(f"v_and_b32 v{52+k}, 0xffff0000, v{r}")
        for k in range(1, 4):
            A(f"v_mul_f32 v{52+k}, v52, v{52+k}")
        A(f"v_cvt_pk_bf16_f32 v{R[i]}, v52, v53")
        A(f"v_cvt_pk_bf16_f32 v{R[i]+1}, v54, v55")
        if x4:
            A(f"ds_write_b64 v{44+i}, {vr(R[i],2)} offset:{K1_STG}")
        else:
            A(f"ds_write_b96 v{44+i}, {vr(R[i],3)} offset:{K1_STG}")
    if o.k1_prefetch == "late":
        A(f"buffer_load_dword v49, v48, s[40:43], s{K1_PFO} offen")
    if o.k1pf and o.k1pf_at == "b4":
        k1_pf()
    A("s_waitcnt lgkmcnt(0)")
    A("s_barrier")
    stamp(A, o, 4, 72)
    if o.k1_prefetch == "pre_end":
        A(f"buffer_load_dword v49, v48, s[40:43], s{K1_PFO} offen")
    if x4:
        cst = o.k1_store if o.k1_cstore is None else o.k1_cstore
        cst2 = cst if o.k1_cstore2 is None else o.k1_cstore2
        items = [(4, 25600, 56, o.k1_store), (8, 0, 68, cst), (12, 12800, 69, cst2)]
        if o.k1_cfirst:
            items = items[1:] + items[:1]
        for (r, off, sg, pol) in items:
            A(f"ds_read_b128 v[{r}:{r+3}], v1 offset:{K1_STG+off}")
        A("s_add_u32 s69, s68, 12800")
        for k, (r, off, sg, pol) in enumerate(items):
            A(f"s_waitcnt lgkmcnt({2-k})")
            A(f"buffer_store_dwordx4 v[{r}:{r+3}], v1, s[44:47], s{sg} offen {pol}")
    else:
        for i in range(4):
            A(f"ds_read_b96 {vr(4+4*i,3)}, v1 offset:{K1_STG+12800*i}")
        for i in range(4):
            A(f"s_waitcnt lgkmcnt({3-i})")
            if o.soa:
                A(f"buffer_store_dword v{6+4*i}, v2, s[44:47], s{56+i} offen {o.k1_store}")
                A(f"buffer_store_dwordx2 {vr(4+4*i,2)}, v3, s[44:47], s{68+i} offen {o.k1_store}")
            else:
                A(f"buffer_store_dwordx3 {vr(4+4*i,3)}, v2, s[44:47], s{56+i} offen {o.k1_store}")
    A("s_cmp_lt_u32 s61, 64")
    A("s_cbranch_scc0 L_k1_notab")
    for i in range(4 if o.tab_early is None else 0):
        A(f"buffer_store_dword v{64+i}, v60, s[44:47], s60 offen offset:{1024*i} {o.k1_store if o.k1_tstore is None else o.k1_tstore}")
    A.label("L_k1_notab")
    if o.k1pf and o.k1pf_at == "end":
        k1_pf()
    if o.k1_prefetch == "end":
        A(f"buffer_load_dword v49, v48, s[40:43], s{K1_PFO} offen")
    if o.stamps:
        stamp(A, o, 5, 72)
        A("s_waitcnt vmcnt(0)")
        stamp(A, o, 6, 72)
        A("s_lshr_b32 s61, s61, 6")
        A("s_lshl_b32 s62, s2, 4")
        A("s_add_u32 s61, s61, s62")
        stamp_out(A, o, 7, 72, 20, 21, 24, 61, 0)
    A("s_endpgm")

    A.label("L_k1_wprep")
    A("v_cmp_gt_u32 vcc, 512, v0")
    A("s_and_b64 exec, exec, vcc")
    A("s_cbranch_execz L_k1_end")
    A("s_sub_u32 s23, s22, 250")
    A("s_min_u32 s24, s23, 4")
    A("s_lshl_b32 s24, s24, 7")
    A("s_and_b32 s25, s23, 1")
    A("s_lshl_b32 s25, s25, 13")
    A("s_cmp_ge_u32 s23, 4")
    A("s_cselect_b32 s25, 16384, s25")
    A("s_cmp_eq_u32 s23, 5")
    A("s_cselect_b32 s26, 0x80000000, 0")
    A("s_lshl_b32 s27, s23, 13")
    A(f"s_add_u32 s27, s27, {WFOFF}")
    A("v_lshrrev_b32 v4, 6, v0")
    A("v_and_b32 v5, 63, v0")
    A("v_and_b32 v6, 31, v5")
    A("v_lshrrev_b32 v7, 5, v5")
    A("v_and_b32 v8, 1, v4")
    A("v_lshl_add_u32 v6, v6, 1, v8")
    A("v_bfe_u32 v8, v4, 1, 1")
    A("v_lshl_add_u32 v7, v8, 1, v7")
    A("v_lshrrev_b32 v8, 2, v4")
    A("v_lshlrev_b32 v8, 2, v8")
    A("v_lshl_add_u32 v7, v7, 4, v8")
    A("v_lshlrev_b32 v9, 1, v7")
    A("v_lshlrev_b32 v10, 6, v7")
    A("v_add_lshl_u32 v10, v10, v6, 1")
    A("v_mov_b32 v11, 0")
    A("v_lshlrev_b32 v30, 10, v0")
    A("s_waitcnt lgkmcnt(0)")
    srd(A, 44, 20, 21, WS_USED)
    srd(A, 32, 14, 15, 640)
    srd(A, 36, 16, 17, 128 * 128)
    srd(A, 40, 18, 19, 192 * 128)
    A("buffer_load_dwordx2 v[12:13], v9, s[32:35], s24 offen")
    A("buffer_load_dwordx2 v[14:15], v9, s[32:35], s24 offen offset:16")
    A("s_cmp_ge_u32 s23, 2")
    A("s_cbranch_scc1 L_k1_w1")
    for ii in range(8):
        A(f"buffer_load_ushort v{16+ii}, v10, s[36:39], s25 offen offset:{((ii>>2)*8+(ii&3))*128}")
    A("s_branch L_k1_w2")
    A.label("L_k1_w1")
    for ii in range(8):
        A(f"buffer_load_ushort v{16+ii}, v10, s[40:43], s25 offen offset:{((ii>>2)*8+(ii&3))*128}")
    A.label("L_k1_w2")
    A("v_cmp_gt_u32 vcc, 256, v0")
    A("s_and_saveexec_b64 s[28:29], vcc")
    A("s_cbranch_execz L_k1_w3")
    A("buffer_store_dword v11, v30, s[44:47], s60 offen")
    A.label("L_k1_w3")
    A("s_mov_b64 exec, s[28:29]")
    A("s_waitcnt vmcnt(0)")
    for ii in range(8):
        r = 12 + (ii >> 1)
        if ii & 1:
            A(f"v_and_b32 v24, 0xffff0000, v{r}")
        else:
            A(f"v_lshlrev_b32 v24, 16, v{r}")
        A(f"v_lshlrev_b32 v{16+ii}, 16, v{16+ii}")
        A(f"v_mul_f32 v{16+ii}, v24, v{16+ii}")
        A(f"v_xor_b32 v{16+ii}, s26, v{16+ii}")
    for k in range(4):
        A(f"v_cvt_pk_bf16_f32 v{24+k}, v{16+2*k}, v{17+2*k}")
    A(f"buffer_store_dwordx4 v[24:27], v1, s[44:47], s27 offen {o.w_store}")
    A.label("L_k1_end")
    A("s_endpgm")
    return A, 72, (96 if o.stamps else 72)

L_NI, L_CNT, L_RG, L_FLAG = 0, 4096, 4352, 4480
L_NODE, L_OV, L_DUM, L_STR = 4608, 5120, 5888, 6016
STRB = 848
L_WF = 9472
L_TBL = L_WF + 6 * 8192
WREG = 26064
GSTR = 40 * 128 + 16
GCAP = 40
K2_LDS = L_TBL + 4 * WREG
NSLOT = 22
OVCAP = 24
BIG = 0x7ffffff0

S_X, S_WS, S_OUT = 4, 8, 12
S_W, S_BIN, S_NST, S_NN, S_WB, S_512, S_S, S_SEND = 16, 17, 18, 19, 20, 21, 22, 23
S_MASK = 24
S_VAL = 34
S_T0, S_T1, S_T2, S_T3 = 78, 79, 80, 81
S_MODE, S_B, S_NB, S_TAB = 82, 83, 84, 85
S_PFB = 89
V_LANE, V_LOFF, V_HOFF, V_SP, V_Q, V_TP = 0, 1, 2, 3, 4, 5
V_SEL, V_A, V_C = 8, 12, 16
V_AD = 26
V_P = 28
V_S = 32
V_RING = 52

def acc(m):
    return ar(16 * m, 16) if m < 16 else vr(112 + 16 * (m - 16), 16)

def rec(u):
    return 44 if u == 0 else 112 + 6 * (u - 1)
def ent(u):
    return 240 + u
V_I = 6
V_LB = 7
V_PF = 31
V_TID = 35
V_EL = 39
V_MAX = 43
V_T = 50
V_E0 = V_T + 22
V_ONE = V_T + 30
V_PFA = V_T + 61

def k2(o):
    nph = o.nph
    ring = 112 - 20 * nph
    vS = V_S
    assert vS + 4 * nph <= ring
    A = Asm()
    guard(A, o, "k2")
    A("s_cmp_ge_u32 s2, 256")
    A("s_cbranch_scc1 L_k2_end")
    for _ in range(o.pad_k2):
        A("s_nop 0")
    stamp(A, o, 0)
    A("s_load_dwordx2 s[4:5], s[0:1], 0")
    A("s_load_dwordx2 s[8:9], s[0:1], 88")
    A("s_load_dwordx2 s[12:13], s[0:1], 72")
    A(f"v_mov_b32 v{V_TID}, v0")
    A("v_lshrrev_b32 v1, 6, v0")
    A("v_and_b32 v0, 63, v0")
    A(f"v_readfirstlane_b32 s{S_W}, v1")
    A(f"s_and_b32 s{S_BIN}, s2, 7")
    A(f"s_lshl_b32 s{S_BIN}, s{S_BIN}, 5")
    A(f"s_lshr_b32 s{S_T0}, s2, 3")
    A(f"s_add_u32 s{S_BIN}, s{S_BIN}, s{S_T0}")
    A(f"s_mul_i32 s{S_NST}, s{S_BIN}, 3125")
    A(f"s_add_u32 s{S_NN}, s{S_NST}, {3125+31}")
    A(f"s_add_u32 s{S_NST}, s{S_NST}, 31")
    A(f"s_lshr_b32 s{S_NST}, s{S_NST}, 5")
    A(f"s_lshr_b32 s{S_NN}, s{S_NN}, 5")
    A(f"s_sub_u32 s{S_NN}, s{S_NN}, s{S_NST}")
    A(f"s_mul_i32 s{S_WB}, s{S_W}, {WREG}")
    A(f"s_add_u32 s{S_WB}, s{S_WB}, {L_TBL}")
    A(f"s_lshl_b32 s{S_TAB}, s{S_BIN}, 10")
    A(f"s_add_u32 s{S_TAB}, s{S_TAB}, {TABOFF}")
    A(f"s_mov_b32 s{S_512}, 512")
    if o.rot and o.pf:
        A(f"s_lshr_b32 s{S_PFB}, s{S_BIN}, 5")
        A(f"s_mul_i32 s{S_PFB}, s{S_PFB}, {XBYTES // 8}")
    A(f"s_mov_b32 s{S_MODE}, 0")
    A(f"s_mov_b32 s{S_B}, 0")
    A(f"s_mov_b32 s{S_NB}, 0")
    A(f"s_mov_b32 s6, {XBYTES}")
    A("s_mov_b32 s7, 0x20000")
    A(f"s_mov_b32 s10, {WS_USED}")
    A("s_mov_b32 s11, 0x20000")
    A(f"s_mov_b32 s14, {XBYTES}")
    A("s_mov_b32 s15, 0x20000")
    T = V_T
    def init_small():
        A(f"v_and_b32 v{T}, 3, v0")
        A(f"v_cmp_eq_u32 vcc, 3, v{T}")
        A(f"v_mov_b32 v{T+8}, 0")
        A(f"v_mov_b32 v{T+9}, 0")
        A(f"v_cndmask_b32 v{T+4}, 0, -1, vcc")
        A(f"v_mov_b32 v{T+5}, v{T+4}")
        A(f"v_mov_b32 v{T+6}, v{T+4}")
        A(f"v_mov_b32 v{T+7}, v{T+4}")
        A(f"v_lshl_add_u32 v{T+1}, v0, 4, s{S_WB}")
        A(f"v_mov_b32 v{T+10}, 0")
        A(f"v_mov_b32 v{T+11}, 0")
        A(f"v_lshlrev_b32 v{T+2}, 4, v{V_TID}")
        A(f"ds_write_b128 v{T+2}, {vr(T+8,4)} offset:{L_NI}")
        A(f"v_cmp_gt_u32 vcc, 32, v{V_TID}")
        A("s_and_saveexec_b64 s[78:79], vcc")
        A(f"ds_write_b128 v{T+2}, {vr(T+8,4)} offset:{L_CNT}")
        A("s_mov_b64 exec, s[78:79]")
        A(f"s_mul_i32 s{S_T2}, s{S_W}, 192")
        A(f"s_mul_i32 s{S_T3}, s{S_W}, {STRB}")
        A(f"v_lshl_add_u32 v{T+2}, v0, 4, s{S_T2}")
        A(f"v_lshl_add_u32 v{T+3}, v0, 4, s{S_T3}")
        for k in range(4):
            A(f"v_mov_b32 v{T+12+k}, {L_DUM}")
        A(f"v_lshlrev_b32 v{T+16}, 4, v0")
        A(f"s_lshl_b32 s{S_T2}, s{S_W}, 7")
        A(f"v_lshl_add_u32 v{T+17}, v0, 2, s{S_T2}")
        A(f"v_mov_b32 v{T+18}, {BIG}")
        A(f"v_mov_b32 v{V_MAX}, 0")
        A("s_mov_b64 exec, 0xfff")
        A(f"ds_write_b128 v{T+2}, {vr(T+8,4)} offset:{L_OV}")
        A("s_mov_b32 exec_lo, -1")
        A("s_mov_b32 exec_hi, 0x1fffff")
        A(f"ds_write_b128 v{T+3}, {vr(T+12,4)} offset:{L_STR}")
        A("s_mov_b32 exec_hi, 0")
        A(f"ds_write_b32 v{T+17}, v{T+18} offset:{L_NODE}")
        A("s_mov_b32 exec_lo, 0xff")
        A(f"ds_write_b128 v{T+16}, {vr(T+4,4)} offset:{L_DUM}")
        A("s_mov_b64 exec, -1")
    def tbl_write(k):
        A(f"ds_write_b128 v{T+1}, {vr(T+4,4)} offset:{GSTR*(k//5) + 1024*(k%5)}")
    init_small()
    for k in range(o.init_a):
        tbl_write(k)
    A(f"v_and_b32 v{V_I}, 15, v0")
    A(f"v_lshrrev_b32 v{T}, 4, v{V_TID}")
    A(f"v_lshlrev_b32 v{T+20}, 6, v{T}")
    A(f"v_lshlrev_b32 v{T+21}, 2, v{V_TID}")
    RB = 4 if o.soa else 12
    CB = CH * RB
    A(f"s_mov_b32 s{S_T0}, {16*CB}")
    A(f"v_mul_lo_u32 v{V_LB}, v{T}, s{S_T0}")
    A(f"v_mad_u32_u24 v{V_LB}, v{V_I}, {RB}, v{V_LB}")
    for r in range(4):
        A(f"v_mov_b32 v{V_A+r}, 0")
    A("s_waitcnt lgkmcnt(0)")
    for k in range(4):
        A(f"buffer_load_dwordx4 {vr(ent(4*k),4)}, v{T+20}, s[8:11], s{S_TAB} offen offset:{16*k}")
    A(f"buffer_load_dword v{V_EL}, v{T+21}, s[8:11], s{S_TAB} offen")
    if o.dma_early:
        A(f"v_lshlrev_b32 v{T+22}, 4, v0")
        A(f"s_mul_i32 s{S_T0}, s{S_W}, 12288")
        A(f"s_add_u32 s{S_T1}, s{S_T0}, {WFOFF}")
        A(f"s_add_u32 s{S_T0}, s{S_T0}, {L_WF}")
        for k in range(3):
            A(f"s_mov_b32 m0, s{S_T0}")
            A(f"s_add_u32 s{S_T0}, s{S_T0}, 4096")
            for kk in range(4):
                A(f"buffer_load_dwordx4 v{T+22}, s[8:11], s{S_T1} offen offset:{1024*kk} lds")
            if k < 2:
                A(f"s_add_u32 s{S_T1}, s{S_T1}, 4096")
    zm = list(range(16))
    for k in range(o.init_a, o.init_b):
        tbl_write(k)
        if zm:
            m = zm.pop()
            A(f"v_mfma_f32_32x32x16_bf16 {acc(m)}, {vr(V_A,4)}, {vr(V_A,4)}, 0")
    C = T + 20
    A(f"v_and_b32 v{V_LOFF}, 31, v0")
    A(f"v_lshrrev_b32 v{V_HOFF}, 5, v0")
    A(f"v_lshrrev_b32 v{C}, 3, v{V_LOFF}")
    A(f"v_mul_u32_u24 v{C}, 0x202, v{C}")
    A(f"v_add_u32 v{C}, 0x100, v{C}")
    A(f"v_or_b32 v{C+1}, 0x0c0c0000, v{C}")
    A(f"v_lshlrev_b32 v{C}, 16, v{C}")
    A(f"v_or_b32 v{C}, 0x0c0c, v{C}")
    A(f"v_and_b32 v{C+2}, 1, v0")
    A(f"v_cmp_eq_u32 vcc, 1, v{C+2}")
    A(f"v_bfe_u32 v{C+2}, v0, 1, 2")
    A(f"v_mov_b32 v{C+3}, 0x0c0c0c0c")
    A(f"v_cndmask_b32 v{C}, v{C+1}, v{C}, vcc")
    for r in range(4):
        A(f"v_cmp_eq_u32 {sr(24+2*r,2)}, {r}, v{C+2}")
    A(f"v_lshlrev_b32 v{V_LOFF}, 4, v{V_LOFF}")
    A(f"v_lshlrev_b32 v{V_HOFF}, 6, v{V_HOFF}")
    for r in range(4):
        A(f"v_cndmask_b32 v{V_SEL+r}, v{C+3}, v{C}, {sr(24+2*r,2)}")
    for m in zm:
        A(f"v_mfma_f32_32x32x16_bf16 {acc(m)}, {vr(V_A,4)}, {vr(V_A,4)}, 0")
    A("s_waitcnt lgkmcnt(0)")
    A("s_barrier")

    def rec_load(u, ad, soff):
        if o.soa:
            A(f"buffer_load_dword v{rec(u)+2}, v{ad}, s[8:11], {soff} offen")
        else:
            A(f"buffer_load_dwordx3 {vr(rec(u),3)}, v{ad}, s[8:11], {soff} offen")
        A("s_mov_b64 exec, -1")
    AD = lambda u: rec(u) + 5 if o.soa else V_AD + (u & 1)
    def load_rec(u, e, soff):
        m = S_VAL + 2 * u
        A(f"v_mad_u32_u16 v{AD(u)}, v{e}, {RB}, v{V_LB}")
        A(f"v_cmpx_lt_u32_sdwa {sr(m,2)}, v{V_I}, v{e} src0_sel:DWORD src1_sel:WORD_1")
        rec_load(u, AD(u), soff)
    A(f"s_waitcnt vmcnt({12 if o.dma_early else 0})")
    stamp(A, o, 1)
    A(f"s_mov_b32 s{S_T0}, 0")
    for u in range(16):
        load_rec(u, ent(u), f"s{S_T0}")
        if u < 15:
            A(f"s_add_u32 s{S_T0}, s{S_T0}, {CB}")
    A(f"v_lshrrev_b32 v{T}, 16, v{V_EL}")
    A(f"v_cmp_lt_u32 s[24:25], 16, v{T}")
    A(f"v_cmp_lt_u32 s[26:27], 32, v{T}")
    A(f"v_cmp_lt_u32 s[28:29], 48, v{T}")
    A(f"s_mov_b32 s{S_T0}, {CB}")
    A(f"v_mul_lo_u32 v{T+1}, v{V_TID}, s{S_T0}")
    A(f"v_mad_u32_u16 v{T+2}, v{V_EL}, {RB}, v{T+1}")
    A(f"v_mbcnt_lo_u32_b32 v{T+6}, s24, 0")
    A(f"v_mbcnt_hi_u32_b32 v{T+6}, s25, v{T+6}")
    A(f"s_bcnt1_i32_b64 s{S_T0}, s[24:25]")
    A(f"s_bcnt1_i32_b64 s{S_T1}, s[26:27]")
    A(f"s_add_u32 s{S_T1}, s{S_T1}, s{S_T0}")
    A(f"s_mul_i32 s{S_T2}, s{S_W}, 192")
    A(f"v_mbcnt_lo_u32_b32 v{T+7}, s26, 0")
    A(f"v_mbcnt_hi_u32_b32 v{T+7}, s27, v{T+7}")
    A(f"v_add_u32 v{T+2}, {16*RB}, v{T+2}")
    A(f"v_add_u32 v{T+3}, -16, v{T}")
    A(f"v_add_u32 v{T+4}, {16*RB}, v{T+2}")
    A(f"v_add_u32 v{T+5}, -16, v{T+3}")
    A(f"v_add_u32 v{T+7}, s{S_T0}, v{T+7}")
    A(f"v_lshl_add_u32 v{T+6}, v{T+6}, 3, s{S_T2}")
    A(f"v_lshl_add_u32 v{T+7}, v{T+7}, 3, s{S_T2}")
    A(f"v_lshrrev_b32 v{T+8}, 4, v0")
    A(f"v_lshl_add_u32 v{T+8}, v{T+8}, 3, s{S_T2}")
    A(f"s_cmp_gt_u32 s{S_T1}, {OVCAP}")
    A("s_cbranch_scc1 L_ov_fail")
    A("s_cmp_lg_u64 s[28:29], 0")
    A("s_cbranch_scc1 L_ov_fail")
    A("s_mov_b64 exec, s[24:25]")
    A(f"ds_write_b64 v{T+6}, {vr(T+2,2)} offset:{L_OV}")
    A("s_mov_b64 exec, s[26:27]")
    A(f"ds_write_b64 v{T+7}, {vr(T+4,2)} offset:{L_OV}")
    A("s_mov_b64 exec, -1")
    A.label("L_ov_done")
    for k in range(6):
        A(f"ds_read_b64 {vr(T+10+2*k,2)}, v{T+8} offset:{L_OV+32*k}")
    for k in range(6):
        u = 16 + k
        m = S_VAL + 2 * u
        A(f"s_waitcnt lgkmcnt({5-k})")
        A(f"v_mad_u32_u24 v{AD(u)}, v{V_I}, {RB}, v{T+10+2*k}")
        A(f"v_cmpx_lt_u32 {sr(m,2)}, v{V_I}, v{T+11+2*k}")
        rec_load(u, AD(u), "0")
    if o.init_b < 25:
        A(f"v_and_b32 v{T}, 3, v0")
        A(f"v_cmp_eq_u32 vcc, 3, v{T}")
        A(f"v_lshl_add_u32 v{T+1}, v0, 4, s{S_WB}")
        A("s_nop 0")
        A(f"v_cndmask_b32 v{T+4}, 0, -1, vcc")
        for k in range(1, 4):
            A(f"v_mov_b32 v{T+4+k}, v{T+4}")
        for k in range(o.init_b, 25):
            tbl_write(k)
    stamp(A, o, 2)
    npf = o.k2_prefetch
    def phase_a(u, younger, soff):
        r = rec(u)
        A(f"s_mov_b64 exec, {sr(S_VAL+2*u,2)}")
        A(f"s_waitcnt vmcnt({younger})")
        A(f"v_lshrrev_b32 v{r+3}, 27, v{r+2}")
        A(f"v_bfe_u32 v{V_AD+(u&1)}, v{r+2}, 15, {12 if o.nbk == 16 else 11}")
        A(f"v_lshlrev_b32 v{r+4}, v{r+3}, v{V_ONE}")
        if o.soa:
            A(f"v_lshlrev_b32 v{r+5}, 1, v{r+5}")
        A(f"ds_add_rtn_u32 v{r+4}, v{V_AD+(u&1)}, v{r+4} offset:{L_NI}")
        if o.soa:
            A(f"buffer_load_dwordx2 {vr(r,2)}, v{r+5}, s[8:11], {soff} offen")
    pfstate = {"first": 0 if o.rot else o.k1pf * 13 * 250, "init": False}
    def pf_at(slot):
        n = 0
        for sl, per in o.pf:
            if sl != slot:
                continue
            if o.rot:
                assert per <= 64 and pfstate["first"] + per * 128 <= 12500
                A(f"s_and_b32 s3, s{S_BIN}, 31")
                A(f"s_lshl_b32 s3, s3, 2")
                A(f"s_add_u32 s3, s3, s{S_W}")
                A(f"s_mul_i32 s3, s3, {per*128}")
                A(f"s_add_u32 s3, s3, s{S_PFB}")
                if pfstate["first"]:
                    A(f"s_add_u32 s3, s3, {pfstate['first']*128}")
            else:
                assert per <= 64 and (pfstate["first"] + per * 1024) <= XBYTES // 128
                A(f"s_lshl_b32 s3, s{S_BIN}, 2")
                A(f"s_add_u32 s3, s3, s{S_W}")
                A(f"s_mul_i32 s3, s3, {per*128}")
                A(f"s_add_u32 s3, s3, {pfstate['first']*128}")
            if not pfstate["init"]:
                A("s_mov_b64 exec, -1")
                A(f"v_lshlrev_b32 v{V_PF-1 if False else V_PFA}, 7, v0")
                pfstate["init"] = True
            A(f"s_mov_b32 exec_lo, {hex((1 << min(32, per)) - 1)}")
            A(f"s_mov_b32 exec_hi, {hex((1 << max(0, per - 32)) - 1)}")
            A(f"buffer_load_dword v{V_PF}, v{V_PFA}, s[4:7], s3 offen")
            pfstate["first"] += per * (128 if o.rot else 1024)
            n += 1
        return n
    A(f"v_mov_b32 v{V_ONE}, 1")
    A(f"s_mov_b32 s{S_T0}, {COFOFF}")
    A(f"s_mov_b32 s{S_T1}, {COFOFF}")
    npa = 0
    for u in range(NSLOT):
        phase_a(u, (NSLOT - 1 if o.soa else NSLOT - 1 - u) + npa, f"s{S_T0}" if u < 16 else f"s{S_T1}")
        if o.soa and u < 15:
            A(f"s_add_u32 s{S_T0}, s{S_T0}, {CH*8}")
        npa += pf_at(f"a{u}")
    A.label("L_a_done")
    A("s_mov_b64 exec, -1")
    A("s_waitcnt lgkmcnt(0)")
    stamp(A, o, 4)
    A("s_barrier")
    A(f"s_cmp_eq_u32 s{S_W}, 0")
    A("s_cbranch_scc1 L_node")
    A(f"s_cmp_eq_u32 s{S_MODE}, 0")
    A("s_cbranch_scc0 L_node_wait")
    A(f"s_sub_u32 s{S_T2}, s{S_W}, 1")
    ndma = 0 if (o.wglobal or o.dma_late or o.dma_early) else 16
    if o.whyb:
        ndma = 8
        A(f"v_lshlrev_b32 v{T}, 4, v0")
        A(f"s_min_u32 s{S_T0}, s{S_T2}, 1")
        A(f"s_mul_i32 s{S_T0}, s{S_T0}, {3*8192}")
        A(f"s_add_u32 s{S_T1}, s{S_T0}, {WFOFF}")
        A(f"s_add_u32 s{S_T0}, s{S_T0}, {L_WF}")
        A(f"s_cmp_eq_u32 s{S_W}, 3")
        A("s_cbranch_scc1 L_nodma3")
        for k in range(2):
            A(f"s_mov_b32 m0, s{S_T0}")
            A(f"s_add_u32 s{S_T0}, s{S_T0}, 4096")
            for kk in range(4):
                A(f"buffer_load_dwordx4 v{T}, s[8:11], s{S_T1} offen offset:{1024*kk} lds")
            if k < 1:
                A(f"s_add_u32 s{S_T1}, s{S_T1}, 4096")
        A("s_branch L_dma3")
        A.label("L_nodma3")
        A("s_waitcnt vmcnt(0)")
        A.label("L_dma3")
    elif ndma:
        A(f"v_lshlrev_b32 v{T}, 4, v0")
        A(f"s_lshl_b32 s{S_T0}, s{S_T2}, 14")
        A(f"s_add_u32 s{S_T1}, s{S_T0}, {WFOFF}")
        A(f"s_add_u32 s{S_T0}, s{S_T0}, {L_WF}")
        for k in range(4):
            A(f"s_mov_b32 m0, s{S_T0}")
            A(f"s_add_u32 s{S_T0}, s{S_T0}, 4096")
            for kk in range(4):
                A(f"buffer_load_dwordx4 v{T}, s[8:11], s{S_T1} offen offset:{1024*kk} lds")
            if k < 3:
                A(f"s_add_u32 s{S_T1}, s{S_T1}, 4096")
    if npf:
        if o.k2_pfmode == "l2":
            A(f"s_and_b32 s{S_T0}, s{S_BIN}, 31")
            stride = 128
        else:
            A(f"s_mov_b32 s{S_T0}, s{S_BIN}")
            stride = o.k2_pfstride
        A(f"s_mul_i32 s{S_T0}, s{S_T0}, 3")
        A(f"s_add_u32 s{S_T0}, s{S_T0}, s{S_T2}")
        if o.k2_pfmode == "l2":
            A(f"s_mul_i32 s{S_T0}, s{S_T0}, {npf*64*128}")
            A(f"v_mul_u32_u24 v{T+1}, {stride}, v0")
        else:
            per = -(-XBYTES // 768 // 128) * 128
            assert npf * 64 * stride >= per
            A(f"s_mul_i32 s{S_T0}, s{S_T0}, {per}")
            A(f"v_mul_u32_u24 v{T+1}, {stride}, v0")
            A(f"v_add_u32 v{T+1}, s{S_T0}, v{T+1}")
            A(f"s_mov_b32 s{S_T0}, 0")
        for k in range(npf):
            if o.k2_pfmode == "l2":
                A(f"buffer_load_dword v{V_PF}, v{T+1}, s[4:7], s{S_T0} offen")
                if k < npf - 1:
                    A(f"s_add_u32 s{S_T0}, s{S_T0}, {64*128}")
            else:
                if (k + 1) * 64 * stride > per:
                    A(f"s_mov_b32 exec_lo, {hex((1 << min(32, (per - k*64*stride)//stride)) - 1)}")
                    A(f"s_mov_b32 exec_hi, {hex((1 << max(0, (per - k*64*stride)//stride - 32)) - 1)}")
                A(f"buffer_load_dword v{V_PF}, v{T+1}, s[4:7], 0 offen")
                A("s_mov_b64 exec, -1")
                if k < npf - 1:
                    A(f"v_add_u32 v{T+1}, {64*stride}, v{T+1}")
    if o.pfa:
        A(f"s_mul_i32 s{S_T0}, s{S_BIN}, 3")
        A(f"s_add_u32 s{S_T0}, s{S_T0}, s{S_T2}")
        A(f"s_lshl_b32 s{S_T0}, s{S_T0}, 13")
        A(f"v_lshlrev_b32 v{T+1}, 7, v0")
        A(f"buffer_load_dword v{V_PF}, v{T+1}, s[4:7], s{S_T0} offen")
        npf += 1
    if o.soa:
        A(f"s_waitcnt vmcnt({ndma+npf})")
    A("s_branch L_node_done")
    A.label("L_node")
    nw = o.nbk // 4
    X = [T, T + 26]
    SH = T + 52
    A(f"v_lshlrev_b32 v{SH}, {5 if nw == 4 else 4}, v0")
    for k, x in enumerate(X):
        for h in range(nw // 2):
            A(f"ds_read_b128 {vr(x+4*h,4)}, v{SH} offset:{L_NI+k*nw*512+16*h}")
    A(f"v_mov_b32 v{X[0]+20}, v0")
    A(f"v_add_u32 v{X[1]+20}, 64, v0")
    A(f"s_mov_b32 s{S_T0}, 0x01010101")
    A(f"v_mov_b32 v{SH+1}, 1")
    A(f"v_mov_b32 v{SH+5}, 0x3dc")
    for k, x in enumerate(X):
        A(f"v_add_u32 v{x+22}, s{S_NST}, v{x+20}")
        A(f"v_cmp_gt_u32 {sr(24+2*k,2)}, s{S_NN}, v{x+20}")
        A(f"v_lshlrev_b32 v{x+22}, 9, v{x+22}")
        A(f"v_mov_b32 v{x+23}, {BIG}")
        A(f"v_cndmask_b32 v{x+23}, v{x+23}, v{x+22}, {sr(24+2*k,2)}")
    for k, x in enumerate(X):
        A(f"s_waitcnt lgkmcnt({(1-k)*(nw//2)})")
        if nw == 4:
            A(f"v_add3_u32 v{x+21}, v{x}, v{x+2}, v{x+4}")
            A(f"v_add_u32 v{x+21}, v{x+21}, v{x+6}")
        else:
            A(f"v_add_u32 v{x+21}, v{x}, v{x+2}")
        A(f"v_sad_u8 v{x+24}, v{x+21}, 0, 1")
        A(f"v_lshrrev_b32 v{x+24}, 1, v{x+24}")
        A(f"v_min_u32 v{x+24}, {GCAP}, v{x+24}")
        A(f"v_sub_u32 v{x+16}, 62, v{x+24}")
        A(f"v_cndmask_b32 v{x+16}, 63, v{x+16}, {sr(24+2*k,2)}")
        A(f"v_lshlrev_b32 v{x+16}, 2, v{x+16}")
        A(f"ds_add_rtn_u32 v{x+17}, v{x+16}, v{SH+1} offset:{L_CNT}")
    A(f"v_lshlrev_b32 v{SH+2}, 2, v0")
    A(f"ds_read_b32 v{SH+3}, v{SH+2} offset:{L_CNT}")
    for k, x in enumerate(X):
        A(f"v_lshlrev_b32 v{x+8}, 8, v{x+21}")
        A(f"v_mul_lo_u32 v{x+8}, v{x+8}, s{S_T0}")
        for h in range(1, nw):
            A(f"v_add_u32 v{x+8+2*h}, v{x+6+2*h}, v{x+2*h-2}")
    A(f"s_cmp_eq_u32 s{S_MODE}, 0")
    A("s_cbranch_scc1 L_sort")
    A("s_waitcnt lgkmcnt(0)")
    A(f"v_mov_b32 v{X[0]+17}, v{X[0]+20}")
    A(f"v_mov_b32 v{X[1]+17}, v{X[1]+20}")
    A("s_branch L_sorted")
    A.label("L_sort")
    A("s_waitcnt lgkmcnt(0)")
    A(f"v_mov_b32 v{SH+4}, v{SH+3}")
    A("s_nop 1")
    dpp_scan(A, SH + 4)
    A(f"v_sub_u32 v{SH+4}, v{SH+4}, v{SH+3}")
    A(f"ds_bpermute_b32 v{X[0]+21}, v{X[0]+16}, v{SH+4}")
    A(f"ds_bpermute_b32 v{X[1]+21}, v{X[1]+16}, v{SH+4}")
    A("s_waitcnt lgkmcnt(1)")
    A(f"v_add_u32 v{X[0]+17}, v{X[0]+17}, v{X[0]+21}")
    A("s_waitcnt lgkmcnt(0)")
    A(f"v_add_u32 v{X[1]+17}, v{X[1]+17}, v{X[1]+21}")
    A.label("L_sorted")
    for k, x in enumerate(X):
        A(f"v_cmp_gt_u32 vcc, 100, v{x+17}")
        A(f"v_mul_u32_u24 v{x+18}, 205, v{x+17}")
        A(f"v_lshrrev_b32 v{x+18}, 10, v{x+18}")
        A(f"v_mul_u32_u24 v{x+21}, 5, v{x+18}")
        A(f"v_sub_u32 v{x+17}, v{x+17}, v{x+21}")
        if o.xorasg:
            A(f"v_lshrrev_b32 v{x+22}, 1, v{x+18}")
            A(f"v_and_b32 v{x+22}, 14, v{x+22}")
            A(f"v_lshrrev_b32 v{x+22}, v{x+22}, v{SH+5}")
            A(f"v_xor_b32 v{x+21}, v{x+22}, v{x+18}")
            A(f"v_and_b32 v{x+21}, 3, v{x+21}")
        else:
            A(f"v_bfe_u32 v{x+21}, v{x+18}, 2, 1")
            A(f"v_mul_u32_u24 v{x+21}, 3, v{x+21}")
            A(f"v_and_b32 v{x+22}, 3, v{x+18}")
            A(f"v_xor_b32 v{x+21}, v{x+21}, v{x+22}")
        A(f"v_lshrrev_b32 v{x+18}, 2, v{x+18}")
        A(f"v_lshl_add_u32 v{x+19}, v{x+21}, 3, v{x+18}")
        A(f"v_lshlrev_b32 v{x+19}, 2, v{x+19}")
        A(f"v_mad_u32_u24 v{x+22}, v{x+18}, 5, v{x+17}")
        A(f"v_lshl_add_u32 v{x+22}, v{x+21}, 5, v{x+22}")
        A(f"v_lshlrev_b32 v{x+22}, 2, v{x+22}")
        A(f"s_mov_b64 exec, vcc")
        A(f"ds_max_u32 v{x+19}, v{x+24} offset:{L_RG}")
        A(f"ds_write_b32 v{x+22}, v{x+23} offset:{L_NODE}")
        A("s_mov_b64 exec, -1")
        A(f"v_mul_u32_u24 v{x+21}, {WREG}, v{x+21}")
        A(f"v_mul_u32_u24 v{x+18}, {GSTR}, v{x+18}")
        A(f"v_lshl_add_u32 v{x+9}, v{x+17}, 3, v{x+21}")
        A(f"v_mul_u32_u24 v{x+17}, 6, v{x+17}")
        A(f"v_add_u32 v{x+9}, v{x+9}, v{x+18}")
        A(f"v_add_u32 v{x+9}, {L_TBL}, v{x+9}")
        A(f"v_lshl_or_b32 v{x+9}, v{x+17}, 24, v{x+9}")
        for h in range(1, nw):
            A(f"v_mov_b32 v{x+9+2*h}, v{x+9}")
        for h in range(nw // 2):
            A(f"ds_write_b128 v{SH}, {vr(x+8+4*h,4)} offset:{L_NI+k*nw*512+16*h}")
    A.label("L_node_wait")
    A("s_waitcnt vmcnt(0) lgkmcnt(0)")
    A.label("L_node_done")
    stamp(A, o, 5)
    A("s_barrier")
    if o.dma_late and not o.wglobal:
        A(f"s_cmp_eq_u32 s{S_MODE}, 0")
        A("s_cbranch_scc0 L_nodma")
        A(f"v_lshlrev_b32 v{T+60}, 4, v0")
        A(f"s_mul_i32 s{S_T0}, s{S_W}, 12288")
        A(f"s_add_u32 s{S_T1}, s{S_T0}, {WFOFF}")
        A(f"s_add_u32 s{S_T0}, s{S_T0}, {L_WF}")
        for k in range(3):
            A(f"s_mov_b32 m0, s{S_T0}")
            A(f"s_add_u32 s{S_T0}, s{S_T0}, 4096")
            for kk in range(4):
                A(f"buffer_load_dwordx4 v{T+60}, s[8:11], s{S_T1} offen offset:{1024*kk} lds")
            if k < 2:
                A(f"s_add_u32 s{S_T1}, s{S_T1}, 4096")
        A.label("L_nodma")
    A(f"s_lshl_b32 s{S_T2}, s{S_W}, 5")
    A(f"v_mov_b32 v{T+40}, s{S_T2}")
    A(f"ds_read_b128 {vr(T+32,4)}, v{T+40} offset:{L_RG}")
    A(f"ds_read_b32 v{T+36}, v{T+40} offset:{L_RG+16}")
    DEP = 4
    NI = lambda u: T + 2 * (u % (DEP + 1))
    TX = T + 20
    lds = []
    rpos = {}
    def issue(ins):
        A(ins)
        if ins.startswith("ds_"):
            lds.append(ins)
    def s_read(u):
        A(f"s_mov_b64 exec, {sr(S_VAL+2*u,2)}")
        A(f"v_bfe_u32 v{V_AD+(u&1)}, v{rec(u)+2}, 15, {12 if o.nbk == 16 else 11}")
        issue(f"ds_read_b64 {vr(NI(u),2)}, v{V_AD+(u&1)} offset:{L_NI}")
        rpos[u] = len(lds)
    def s_proc(u):
        r = rec(u); n = NI(u)
        a, b = TX + 2 * (u & 1), TX + 4 + 2 * (u & 1)
        A(f"s_mov_b64 exec, {sr(S_VAL+2*u,2)}")
        cnt = min(15, len(lds) - rpos[u])
        A(f"s_waitcnt lgkmcnt({cnt})")
        A(f"v_add_u32 v{a}, v{n}, v{r+4}")
        A(f"v_bfe_u32 v{a}, v{a}, v{r+3}, 8")
        A(f"v_lshl_add_u32 v{b}, v{a}, 6, v{n+1}")
        A(f"v_max_u32 v{V_MAX}, v{V_MAX}, v{a}")
        A(f"v_and_b32 v{b}, 0xffffff, v{b}")
        A(f"v_sub_u32_sdwa v{b+1}, v{b}, v{n+1} dst_sel:DWORD dst_unused:UNUSED_PAD src0_sel:DWORD src1_sel:BYTE_3")
        issue(f"ds_write_b64 v{b}, {vr(r,2)}")
        issue(f"ds_write_b16 v{b+1}, v{r+2} offset:48")
    R0 = T + 32
    M = T + 40
    def mask_atoms():
        at = []
        at.append([f"v_max3_u32 v{M}, v{R0}, v{R0+1}, v{R0+2}",
                   f"v_max3_u32 v{R0}, v{M}, v{R0+3}, v{R0+4}",
                   f"v_cvt_f32_u32 v{M+1}, v{R0}",
                   f"v_readfirstlane_b32 s{S_SEND}, v{R0}",
                   f"v_rcp_f32 v{M+1}, v{M+1}",
                   f"s_min_u32 s{S_SEND}, s{S_SEND}, {GCAP}"])
        at.append([f"v_mul_f32 v{M+1}, 0x47800000, v{M+1}",
                   f"v_cvt_u32_f32 v{M+1}, v{M+1}",
                   f"v_add_u32 v{M+1}, 2, v{M+1}",
                   f"s_bfm_b64 {sr(S_T0,2)}, s{S_SEND}, 0"])
        at.append([f"v_mul_u32_u24 v{M+2+g}, v{R0+g}, v{M+1}" for g in range(5)])
        at.append([f"v_mul_u32_u24 v{M+8+g}, v0, v{M+2+g}" for g in range(5)])
        at.append([f"v_add_u32 v{M+2+g}, v{M+8+g}, v{M+2+g}" for g in range(5)])
        at.append([f"v_lshrrev_b32 v{M+8+g}, 16, v{M+8+g}" for g in range(5)])
        at.append([f"v_lshrrev_b32 v{M+2+g}, 16, v{M+2+g}" for g in range(5)])
        at.append([f"v_cmp_gt_u32 {sr(S_MASK+2*g,2)}, v{M+2+g}, v{M+8+g}" for g in range(5)] +
                  [f"s_mul_i32 s{S_T3}, s{S_W}, {STRB}", f"s_mov_b32 s{S_T2}, s{S_WB}"])
        at.append([f"s_and_b64 {sr(S_MASK+2*g,2)}, {sr(S_MASK+2*g,2)}, {sr(S_T0,2)}" for g in range(5)] +
                  [f"v_mov_b32 v{M+1}, 0", f"v_mov_b32 v{V_SP}, s{S_T3}"])
        for gs in ((0, 1, 2), (3, 4)):
            x = []
            for g in gs:
                x += [f"v_mbcnt_lo_u32_b32 v{M+1}, s{S_MASK+2*g}, v{M+1}", f"v_mbcnt_hi_u32_b32 v{M+1}, s{S_MASK+2*g+1}, v{M+1}"]
            at.append(x)
        at[-1].append(f"v_lshl_add_u32 v{M+1}, v{M+1}, 2, s{S_T3}")
        for g in range(5):
            x = [f"v_lshl_add_u32 v{M+8+g}, v{M+8+g}, 7, s{S_T2}",
                 f"s_mov_b64 exec, {sr(S_MASK+2*g,2)}",
                 f"ds_write_b32 v{M+1}, v{M+8+g} offset:{L_STR}",
                 f"v_add_u32 v{M+1}, 4, v{M+1}"]
            if g < 4:
                x.append(f"s_add_u32 s{S_T2}, s{S_T2}, {GSTR}")
            at.append(x)
        return at
    def atom(x):
        A("s_mov_b64 exec, -1")
        for ins in x:
            issue(ins)
    npf += pf_at(-1)
    for u in range(DEP):
        s_read(u)
    atoms = mask_atoms() if o.maskmix else []
    zat = {1: 24}
    for i in range(8):
        zat[min(NSLOT - 1, (15 + 16 * i) // 6 + 1)] = 16 + i
    for u in range(NSLOT):
        if u + DEP < NSLOT:
            s_read(u + DEP)
        s_proc(u)
        if u == 0:
            A(f"s_cmp_eq_u32 s{S_MODE}, 0")
            A("s_cbranch_scc0 L_s_slow")
        if u >= 1 and atoms:
            atom(atoms.pop(0))
        npf += pf_at(u)
        if o.zmix and u in zat:
            A("s_mov_b64 exec, -1")
            A(f"v_mfma_f32_32x32x16_bf16 {acc(zat[u])}, {vr(V_A,4)}, {vr(V_A,4)}, 0")
    while atoms:
        atom(atoms.pop(0))
    if not o.maskmix:
        A.label("L_s_slow")
        stamp(A, o, 6)
        A("s_waitcnt lgkmcnt(0)")
        for x in mask_atoms():
            atom(x)
    A.label("L_s_done")
    A("s_mov_b64 exec, -1")
    if o.maskmix:
        stamp(A, o, 6)
    A(f"v_cmp_le_u32 vcc, {2*GCAP}, v{V_MAX}")
    A(f"v_mov_b32 v{T+20}, 1")
    A(f"v_mov_b32 v{T+21}, 0")
    A("s_cbranch_vccz L_deg_ok")
    A(f"ds_write_b32 v{T+21}, v{T+20} offset:{L_FLAG}")
    A.label("L_deg_ok")
    nb4 = npf
    assert nph in (2, 3)
    A(f"ds_read_b128 v[48:51], v{V_SP} offset:{L_STR}")
    A(f"ds_read_b32 v{V_Q}, v{V_SP} offset:{L_STR+4*(nph+1)}")
    A(f"s_mov_b32 s{S_S}, 0")
    A(f"s_waitcnt vmcnt({nb4}) lgkmcnt(0)")
    A(f"v_add_u32 v47, v48, v{V_HOFF}")
    for t in range(1, nph):
        A(f"v_add_u32 v{V_P+t}, v{48+t}, v{V_HOFF}")
    A(f"v_add_u32 v{V_P}, v{48+nph}, v{V_HOFF}")
    A("v_mov_b32 v49, 0")
    if not o.zmix:
        A(f"s_cmp_eq_u32 s{S_MODE}, 0")
        A("s_cbranch_scc0 L_nozero")
        for m in range(16, 25):
            A(f"v_mfma_f32_32x32x16_bf16 {acc(m)}, {vr(V_A,4)}, {vr(V_A,4)}, 0")
        A.label("L_nozero")
    stamp(A, o, 7)
    A("s_barrier")
    first = [vS + 4, vS + 8, 44][:nph] if nph == 3 else [vS + 4, 44]
    ptrs = [47] + [V_P + t for t in range(1, nph)]
    A(f"ds_read_b32 v48, v49 offset:{L_FLAG}")
    for t in range(nph):
        A(f"ds_read_b96 {vr(first[t],3)}, v{ptrs[t]} offset:48")
    A(f"ds_read_b96 {vr(vS,3)}, v{V_P} offset:48")
    A(f"ds_read_b128 {vr(V_C,4)}, v47")
    A(f"ds_read_b128 {vr(V_C+4,4)}, v47 offset:16")
    A(f"ds_read_b64 {vr(V_C+8,2)}, v47 offset:32")
    A(f"s_waitcnt lgkmcnt({nph+4})")
    A(f"v_readfirstlane_b32 s{S_T0}, v48")
    A(f"s_andn2_b32 s{S_T0}, s{S_T0}, s{S_MODE}")
    A(f"s_cmp_lg_u32 s{S_T0}, 0")
    A("s_cbranch_scc1 L_to_slow")
    A(f"s_cmp_eq_u32 s{S_SEND}, 0")
    A("s_cbranch_scc1 L_nomain" if o.epi2 else "s_cbranch_scc1 L_exit")
    def mad(dst, sreg, j):
        op = " op_sel:[1,0,0,0]" if j & 1 else ""
        A(f"v_mad_u32_u16 v{dst}, v{sreg + (j >> 1)}, s{S_512}, v{V_LOFF}{op}")
    for t in range(nph):
        A(f"s_waitcnt lgkmcnt({nph+3-t})")
        for j in range(5):
            mad(V_AD + (j & 1), first[t], j)
            A(f"buffer_load_dwordx4 {vr(ring+(5*t+j)*4,4)}, v{V_AD+(j&1)}, s[4:7], 0 offen")
    A("s_waitcnt lgkmcnt(0)")
    if o.epi2:
        epi_setup(A)
    stamp(A, o, 8)
    if o.pad_main is not None:
        A(f".p2align {o.pad_main[0]}, , 60")
        for _ in range(o.pad_main[1]):
            A("s_nop 0")
    NB = 5 * nph
    def blk(g, p):
        for b in range(NB):
            if b % 5 == g and b % nph == p:
                return b
    K = NB - 1
    stubs = []
    for b in range(NB):
        g, p = b % 5, b % nph
        pn = (p + 1) % nph
        A.label(f"L_blk{b}")
        A(f"s_waitcnt lgkmcnt(3)")
        A(f"v_add_u32 v{V_TP}, v{V_Q}, v{V_HOFF}")
        A(f"ds_read_b96 {vr(vS+4*pn,3)}, v{V_TP} offset:48")
        A(f"ds_read_b32 v{V_Q}, v{V_SP} offset:{L_STR+4*(p+2+nph)}")
        for j in range(5):
            m = 5 * g + j
            B = ring + (5 * p + j) * 4
            if j in (0, 2, 4):
                A(f"s_waitcnt vmcnt({K}) lgkmcnt(4)")
            else:
                A(f"s_waitcnt vmcnt({K})")
            c = V_C + 2 * j
            for r in range(4):
                A(f"v_perm_b32 v{V_A+r}, v{c+1}, v{c}, v{V_SEL+r}")
            mad(V_AD + (j & 1), vS + 4 * p, j)
            if j == 0:
                if g < 4:
                    A(f"s_bitcmp1_b64 {sr(S_MASK+2*(g+1),2)}, s{S_S}")
                else:
                    A(f"s_add_u32 s{S_S}, s{S_S}, 1")
            elif j == 1:
                A(f"ds_read_b128 {vr(V_C,4)}, v{V_P+pn}")
            elif j == 2:
                if g == 4:
                    A(f"s_cmp_lt_u32 s{S_S}, s{S_SEND}")
                elif p == nph - 1:
                    A(f"v_add_u32 v{V_SP}, {4*nph}, v{V_SP}")
                else:
                    A("s_nop 0")
            elif j == 3:
                A(f"ds_read_b128 {vr(V_C+4,4)}, v{V_P+pn} offset:16")
            else:
                A(f"ds_read_b64 {vr(V_C+8,2)}, v{V_P+pn} offset:32")
            A(f"v_mfma_f32_32x32x16_bf16 {acc(m)}, {vr(V_A,4)}, {vr(B,4)}, {acc(m)}")
            A(f"buffer_load_dwordx4 {vr(B,4)}, v{V_AD+(j&1)}, s[4:7], 0 offen")
        A(f"v_mov_b32 v{V_P+pn}, v{V_TP}")
        if g == 4 and p == nph - 1:
            A(f"v_add_u32 v{V_SP}, {4*nph}, v{V_SP}")
        if g < 4:
            A(f"s_cbranch_scc0 L_stub{b}")
            stubs.append(b)
        else:
            A("s_cbranch_scc0 L_exit")
        if b == NB - 1:
            A("s_branch L_blk0")
    for b in stubs:
        g, p = b % 5, b % nph
        pn = (p + 1) % nph
        A.label(f"L_stub{b}")
        for g2 in range(g + 2, 5):
            A(f"s_bitcmp1_b64 {sr(S_MASK+2*g2,2)}, s{S_S}")
            A(f"s_cbranch_scc1 L_blk{blk(g2,pn)}")
        A(f"s_add_u32 s{S_S}, s{S_S}, 1")
        A(f"s_cmp_lt_u32 s{S_S}, s{S_SEND}")
        A(f"s_cbranch_scc1 L_blk{blk(0,pn)}")
        if b != stubs[-1]:
            A("s_branch L_exit")
    A.label("L_exit")
    A("s_waitcnt lgkmcnt(0)" if o.epi2 else "s_waitcnt vmcnt(0) lgkmcnt(0)")
    stamp(A, o, 9)
    A(f"s_cmp_eq_u32 s{S_MODE}, 0")
    A("s_cbranch_scc0 L_next_batch")
    A.label("L_epi")
    (epilogue2 if o.epi2 else epilogue)(A, o)
    if o.padto:
        A(f"s_mov_b32 s10, {WS_USED+64}")
        A(f"v_mov_b32 v1, {WS_USED}")
        A("buffer_load_dword v2, v1, s[8:11], 0 offen")
        A("s_waitcnt vmcnt(0)")
        A("v_readfirstlane_b32 s24, v2")
        A("s_mov_b32 s25, 0")
        A.label("L_pad")
        A("s_memrealtime s[26:27]")
        A("s_waitcnt lgkmcnt(0)")
        A("s_sub_u32 s26, s26, s24")
        A(f"s_cmp_ge_u32 s26, {o.padto}")
        A("s_cbranch_scc1 L_pad_done")
        A("s_add_u32 s25, s25, 1")
        A("s_cmp_lt_u32 s25, 4000")
        A("s_cbranch_scc1 L_pad")
        A.label("L_pad_done")
    if o.padrel:
        A("s_mov_b32 s25, 0")
        A.label("L_padr")
        A("s_memrealtime s[26:27]")
        A("s_waitcnt lgkmcnt(0)")
        A("s_sub_u32 s26, s26, s98")
        A(f"s_cmp_ge_u32 s26, {o.padrel[1]}")
        A("s_cbranch_scc1 L_padr_done")
        A("s_add_u32 s25, s25, 1")
        A("s_cmp_lt_u32 s25, 4000")
        A("s_cbranch_scc1 L_padr")
        A.label("L_padr_done")
    if o.stamps:
        A("s_waitcnt vmcnt(0)")
        stamp(A, o, 13)
        A(f"s_lshl_b32 s{S_T0}, s2, 2")
        A(f"s_add_u32 s{S_T0}, s{S_T0}, s{S_W}")
        stamp_out(A, o, 14, 86, 8, 9, 24, S_T0, 1 << 19)
    A("s_endpgm")

    A.label("L_ov_fail")
    A(f"v_mov_b32 v{T}, 1")
    A(f"v_mov_b32 v{T+1}, 0")
    A(f"ds_write_b32 v{T+1}, v{T} offset:{L_FLAG}")
    A("s_branch L_ov_done")

    if o.maskmix:
        A.label("L_s_slow")
        A("s_waitcnt lgkmcnt(0)")
        for x in mask_atoms():
            atom(x)
        A("s_branch L_s_done")

    A.label("L_to_slow")
    A("s_waitcnt lgkmcnt(0)")
    A(f"v_lshrrev_b32 v{T}, 16, v{V_EL}")
    A(f"v_mov_b32 v{T+1}, 0")
    A(f"ds_max_u32 v{T+1}, v{T} offset:{L_FLAG+4}")
    A("s_waitcnt lgkmcnt(0)")
    A("s_barrier")
    A(f"ds_read_b32 v{T}, v{T+1} offset:{L_FLAG+4}")
    A("s_waitcnt lgkmcnt(0)")
    A(f"v_readfirstlane_b32 s{S_NB}, v{T}")
    A("s_barrier")
    A(f"s_min_u32 s{S_NB}, s{S_NB}, {CH}")
    A(f"s_add_u32 s{S_NB}, s{S_NB}, 15")
    A(f"s_lshr_b32 s{S_NB}, s{S_NB}, 4")
    A(f"s_lshl_b32 s{S_NB}, s{S_NB}, 6")
    A(f"s_mov_b32 s{S_MODE}, 1")
    A(f"s_mov_b32 s{S_B}, 0")
    A("s_branch L_batch")

    if o.epi2:
        A.label("L_nomain")
        A("s_waitcnt vmcnt(0) lgkmcnt(0)")
        epi_setup(A)
        A("s_branch L_exit")

    A.label("L_next_batch")
    A("s_waitcnt vmcnt(0)")
    A(f"s_add_u32 s{S_B}, s{S_B}, 1")
    A(f"s_cmp_lt_u32 s{S_B}, s{S_NB}")
    A("s_cbranch_scc0 L_epi")

    A.label("L_batch")
    init_small()
    for k in range(25):
        tbl_write(k)
    A(f"v_mov_b32 v{V_ONE}, 1")
    A(f"s_and_b32 s{S_T0}, s{S_B}, 15")
    A(f"v_lshrrev_b32 v{T+20}, 4, v{V_TID}")
    A(f"v_lshlrev_b32 v{T+20}, 6, v{T+20}")
    A(f"s_lshl_b32 s{S_T1}, s{S_T0}, 2")
    A(f"v_add_u32 v{T+20}, s{S_T1}, v{T+20}")
    A(f"buffer_load_dword v{V_E0}, v{T+20}, s[8:11], s{S_TAB} offen")
    A(f"s_mul_i32 s{S_T0}, s{S_T0}, {CB}")
    A(f"s_lshr_b32 s{S_T1}, s{S_B}, 6")
    A(f"s_lshl_b32 s{S_T1}, s{S_T1}, 4")
    A(f"s_bfe_u32 s{S_T2}, s{S_B}, 0x20004")
    A(f"s_cmp_eq_u32 s{S_T2}, s{S_W}")
    A(f"s_cselect_b32 s{S_T3}, -1, 0")
    A("s_waitcnt vmcnt(0)")
    A(f"v_lshrrev_b32 v{T+21}, 16, v{V_E0}")
    A(f"v_and_b32 v{V_E0}, 0xffff, v{V_E0}")
    A(f"v_add_u32 v{V_E0}, s{S_T1}, v{V_E0}")
    A(f"v_max_u32 v{T+21}, s{S_T1}, v{T+21}")
    A(f"v_subrev_u32 v{T+21}, s{S_T1}, v{T+21}")
    A(f"v_and_b32 v{T+21}, s{S_T3}, v{T+21}")
    A(f"v_lshl_or_b32 v{V_E0}, v{T+21}, 16, v{V_E0}")
    load_rec(0, V_E0, f"s{S_T0}")
    for u in range(1, 5):
        A(f"s_mov_b64 {sr(S_VAL+2*u,2)}, 0")
    A("s_waitcnt lgkmcnt(0)")
    A("s_barrier")
    A(f"s_lshl_b32 s{S_T0}, s{S_T0}, 1")
    A(f"s_add_u32 s{S_T0}, s{S_T0}, {COFOFF}")
    phase_a(0, 0, f"s{S_T0}")
    A("s_branch L_a_done")
    A.label("L_k2_end")
    A("s_endpgm")
    return A, 512, 102

def epilogue(A, o):
    V_TW, V_TR, V_WR, V_N2 = 1, 2, 3, 4
    PK = lambda m, q: 112 + 8 * (m - 16) + 2 * q
    OUTB = [32, 48, 64, 80, 96, 184, 200, 216]
    OUT = lambda oo, t: OUTB[2 * oo + t]
    TF = [8, 12, 16]
    TMP = 232
    NOD = 240
    A(f"v_and_b32 v5, 31, v0")
    A(f"v_lshrrev_b32 v6, 5, v0")
    A(f"v_lshlrev_b32 v{V_TW}, 3, v5")
    A(f"v_lshl_add_u32 v{V_TW}, v6, 8, v{V_TW}")
    A(f"v_add_u32 v{V_TW}, s{S_WB}, v{V_TW}")
    A(f"v_min_u32 v{V_TR}, 24, v5")
    A(f"v_mul_u32_u24 v{V_TR}, 1040, v{V_TR}")
    A(f"v_lshl_add_u32 v{V_TR}, v6, 4, v{V_TR}")
    A(f"v_add_u32 v{V_TR}, s{S_WB}, v{V_TR}")
    A(f"v_lshlrev_b32 v{V_WR}, 4, v0")
    A(f"v_lshlrev_b32 v{V_N2}, 2, v5")
    A(f"s_lshl_b32 s{S_T0}, s{S_W}, 7")
    A(f"v_lshl_add_u32 v7, v6, 4, s{S_T0}")
    for a in range(3):
        A(f"ds_read_b128 {vr(8+4*a,4)}, v7 offset:{L_NODE+32*a}")
    A(f"ds_read_b32 v20, v7 offset:{L_NODE+96}")
    A("s_nop 1")
    for m in range(16, 25):
        s = 112 + 16 * (m - 16)
        for k in range(8):
            A(f"v_cvt_pk_bf16_f32 v{PK(m,0)+k}, v{s+2*k}, v{s+2*k+1}")
    A("s_waitcnt lgkmcnt(0)")
    for i in range(13):
        A(f"v_add_u32 v{NOD+i}, v{8+i}, v{V_N2}")

    def conv_write(q, lst):
        out = []
        k = 0
        for m in range(25):
            off = m * 1040 + (q & 1) * 512
            if m < 16:
                t = TMP + 4 * (k & 1); k += 1
                for i in range(4):
                    out.append(f"v_accvgpr_read_b32 v{t+i}, a{16*m+4*q+i}")
                out.append(f"v_cvt_pk_bf16_f32 v{t}, v{t}, v{t+1}")
                out.append(f"v_cvt_pk_bf16_f32 v{t+1}, v{t+2}, v{t+3}")
                out.append(f"ds_write_b64 v{V_TW}, {vr(t,2)} offset:{off}")
            else:
                out.append(f"ds_write_b64 v{V_TW}, {vr(PK(m,q),2)} offset:{off}")
        return out

    plan = {0: [(0, 0, 0), (1, 3, 1), (2, 3, 2), (3, 3, 3)],
            1: [(0, 2, 1), (1, 1, 0), (2, 4, 3), (3, 5, 2)],
            2: [(0, 2, 2), (1, 5, 3), (2, 1, 0), (3, 4, 1)],
            3: [(3, 1, 0), (2, 5, 1), (1, 4, 2), (0, 2, 3)]}
    hole = lambda h: 16 * (h & 15) + 4 * (h >> 4)
    if o.wglobal:
        wbase = {0: 0, 3: 8, 2: 0, 1: 16, 4: 24, 5: 8}
    else:
        wbase = {0: 0, 3: 8, 2: 16, 1: 24, 4: 0, 5: 8}
    steps = []
    for q in range(4):
        steps += [(q, c, b, oo, s) for (c, b, oo) in plan[q] for s in range(4)]
    loaded = set()
    lds = []
    vm = []
    need = {}
    wpos = {}
    def issue(ins):
        A(ins)
        if ins.startswith("ds_"):
            lds.append(ins)
        if ins.startswith("buffer_"):
            vm.append(ins)
    def wload(b, f):
        sreg = 24 + 2 * b + (f >> 2)
        issue(f"buffer_load_dwordx4 {ar(hole(wbase[b]+f),4)}, v{V_WR}, s[8:11], s{sreg} offen offset:{(f & 3)*1024}")
        wpos[(b, f)] = len(vm)
    def reads(k):
        q, c, b, oo, s = steps[k]
        toff = (q & 1) * 512 + (s >> 1) * 256 + c * 64 + (s & 1) * 32
        issue(f"ds_read_b128 {vr(TF[k % 3],4)}, v{V_TR} offset:{toff}")
        if (b, s) not in loaded and not o.wglobal:
            loaded.add((b, s))
            for t in range(2):
                issue(f"ds_read_b128 {ar(hole(wbase[b]+2*s+t),4)}, v{V_WR} offset:{L_WF + b*8192 + (2*s+t)*1024}")
        need[k] = len(lds)
    if o.wglobal:
        for b in range(6):
            for h in range(2):
                A(f"s_mov_b32 s{24+2*b+h}, {WFOFF + b*8192 + h*4096}")
    first = conv_write(0, None)
    nconv = 0
    for ins in first:
        issue(ins)
        if o.wglobal and ins.startswith("v_accvgpr_read") and ins.split("a")[-1].isdigit() and int(ins.split(", a")[1]) % 16 == 3:
            wload(0 if nconv < 8 else 3, nconv & 7)
            nconv += 1
    stamp(A, o, 10)
    G = lambda t, i: 112 + 16 * t + i
    post = gate_and_store(o, OUT, G, NOD, TMP)
    if o.pk:
        A("s_mov_b32 s40, 0xbfb8aa3b")
        A("s_mov_b32 s41, 0xbfb8aa3b")
        A("s_mov_b32 s42, 1.0")
        A("s_mov_b32 s43, 1.0")
    later = {}
    if o.wglobal:
        for f in range(8):
            later.setdefault(5 + f // 2, []).append((2, f))
            later.setdefault(9 + f // 2, []).append((1, f))
            later.setdefault(14 + f // 2, []).append((4, f))
            later.setdefault(18 + f // 2, []).append((5, f))
    started = set()
    waited = 0
    reads(0); reads(1)
    for k in range(64):
        q, c, b, oo, s = steps[k]
        kk = k % 16
        if kk == 0:
            fill = conv_write(q + 1, None) if q < 3 else []
        n = len(fill)
        chunk = fill[min(kk, 14) * n // 14:min(kk + 1, 14) * n // 14]
        if k + 2 < 64:
            reads(k + 2)
        cnt = len(lds) - need[k]
        assert cnt <= 15
        w = f"s_waitcnt lgkmcnt({cnt})"
        if o.wglobal and wpos[(b, 2 * s + 1)] > waited:
            waited = wpos[(b, 2 * s + 1)]
            w = f"s_waitcnt vmcnt({len(vm) - waited}) lgkmcnt({cnt})"
        A(w)
        for t in range(2):
            d = vr(OUT(oo, t), 16)
            cc = d if (oo, t) in started else "0"
            started.add((oo, t))
            if "m" not in o.diag or cc == "0":
                A(f"v_mfma_f32_32x32x16_bf16 {d}, {vr(TF[k % 3],4)}, {ar(hole(wbase[b]+2*s+t),4)}, {cc}")
            for ins in (chunk[:len(chunk)//2] if t == 0 else chunk[len(chunk)//2:]):
                if "w" in o.diag and ins.startswith("ds_"): continue
                if "v" in o.diag and ins.startswith("v_"): continue
                issue(ins)
            if k in later:
                wload(*later[k][t])
        if q == 3 and kk >= 6:
            pos = kk - 6
            j, part = pos // 4, pos % 4
            if j < 3:
                p = post[j]
                nparts = 4 if j < 2 else 2
                for ins in p[part * len(p) // nparts:(part + 1) * len(p) // nparts]:
                    A(ins)
        if k == 47:
            stamp(A, o, 11)
    stamp(A, o, 12)
    A("s_nop 11")
    for ins in post[3]:
        A(ins)

E_TW, E_TR, E_WR, E_N2, E_ND = 44, 45, 46, 47, 48
def epi_setup(A):
    A(f"v_and_b32 v49, 31, v0")
    A(f"v_lshrrev_b32 v50, 5, v0")
    A(f"v_lshlrev_b32 v{E_TW}, 3, v49")
    A(f"v_lshl_add_u32 v{E_TW}, v50, 8, v{E_TW}")
    A(f"v_add_u32 v{E_TW}, s{S_WB}, v{E_TW}")
    A(f"v_min_u32 v{E_TR}, 24, v49")
    A(f"v_mul_u32_u24 v{E_TR}, 1040, v{E_TR}")
    A(f"v_lshl_add_u32 v{E_TR}, v50, 4, v{E_TR}")
    A(f"v_add_u32 v{E_TR}, s{S_WB}, v{E_TR}")
    A(f"v_lshlrev_b32 v{E_WR}, 4, v0")
    A(f"v_lshlrev_b32 v{E_N2}, 2, v49")
    A(f"s_lshl_b32 s{S_T0}, s{S_W}, 7")
    A(f"v_lshl_add_u32 v{E_ND}, v50, 4, s{S_T0}")

def epilogue2(A, o):
    V_TW, V_TR, V_WR, V_N2, V_ND = 1, 2, 3, 4, 5
    PK = lambda m, q: 112 + 8 * (m - 16) + 2 * q
    OUTB = [32, 48, 64, 80, 96, 184, 200, 216]
    OUT = lambda oo, t: OUTB[2 * oo + t]
    TF = [8, 12, 16] if o.tdist == 2 else [8, 12, 16, 20]
    NT, TD = len(TF), o.tdist
    TMP = 232
    NOD = 240
    G = lambda t, i: 112 + 16 * t + i
    for _ in range(o.pad_epi):
        A("s_nop 0")
    for k, r in enumerate((E_TW, E_TR, E_WR, E_N2, E_ND)):
        A(f"v_mov_b32 v{1+k}, v{r}")
    A("s_nop 3")
    def pack(m, qs):
        s0 = 112 + 16 * (m - 16)
        return [f"v_cvt_pk_bf16_f32 v{PK(m,q)+h}, v{s0+4*q+2*h}, v{s0+4*q+2*h+1}" for q in qs for h in range(2)]
    def conv(q, nodes, sets=None):
        if not o.stagger:
            out = []
            for m in nodes:
                off = m * 1040 + (q & 1) * 512
                if m < 16:
                    t = TMP + 4 * (m & 1)
                    out += [f"v_accvgpr_read_b32 v{t+i}, a{16*m+4*q+i}" for i in range(4)]
                    out.append(f"v_cvt_pk_bf16_f32 v{t}, v{t}, v{t+1}")
                    out.append(f"v_cvt_pk_bf16_f32 v{t+1}, v{t+2}, v{t+3}")
                    out.append(f"ds_write_b64 v{V_TW}, {vr(t,2)} offset:{off}")
                else:
                    out.append(f"ds_write_b64 v{V_TW}, {vr(PK(m,q),2)} offset:{off}")
            return out
        sets = sets or [TMP, TMP + 4, 24, 28]
        an = [m for m in nodes if m < 16]
        vn = [m for m in nodes if m >= 16]
        out = []
        n = len(an)
        for i in range(n + 2):
            rd = [f"v_accvgpr_read_b32 v{sets[i % len(sets)]+k}, a{16*an[i]+4*q+k}" for k in range(4)] if i < n else []
            cv = []
            if 0 <= i - 1 < n:
                t = sets[(i - 1) % len(sets)]
                cv = [f"v_cvt_pk_bf16_f32 v{t}, v{t}, v{t+1}", f"v_cvt_pk_bf16_f32 v{t+1}, v{t+2}, v{t+3}"]
            wr = []
            if 0 <= i - 2 < n:
                t = sets[(i - 2) % len(sets)]
                wr = [f"ds_write_b64 v{V_TW}, {vr(t,2)} offset:{an[i-2]*1040 + (q & 1)*512}"]
            vw = []
            if vn and i >= n + 2 - len(vn) - 0 or (vn and i % 2 == 1 and False):
                m = vn.pop(0)
                vw = [f"ds_write_b64 v{V_TW}, {vr(PK(m,q),2)} offset:{m*1040 + (q & 1)*512}"]
            out += rd[:2] + wr + cv[:1] + rd[2:] + vw + cv[1:]
        for m in vn:
            out.append(f"ds_write_b64 v{V_TW}, {vr(PK(m,q),2)} offset:{m*1040 + (q & 1)*512}")
        return out
    lds = []
    vm = []; wpos = {}
    def issue(ins):
        if "; W" in ins:
            ins, tag = ins.split(" ; W")
            vm.append(ins)
            wpos[tuple(int(x) for x in tag.split("."))] = len(vm)
        elif ins.startswith("buffer_"):
            vm.append(ins)
        A(ins)
        if ins.startswith("ds_"):
            lds.append(ins)
    late = []
    if o.latepack:
        pend = []
        for m in range(16, 25):
            t = 20 + 2 * ((m - 16) % 6)
            s0 = 112 + 16 * (m - 16)
            A(f"v_cvt_pk_bf16_f32 v{t}, v{s0}, v{s0+1}")
            A(f"v_cvt_pk_bf16_f32 v{t+1}, v{s0+2}, v{s0+3}")
            pend.append(f"ds_write_b64 v{V_TW}, {vr(t,2)} offset:{m*1040}")
            if len(pend) > (2 if o.stagger else 0):
                issue(pend.pop(0))
        for ins in pend:
            issue(ins)
        for m in (23, 24):
            pass
        CT = [24, 28]
    else:
        for m in range(16, 25):
            for ins in pack(m, range(4)):
                A(ins)
        CT = [TMP, TMP + 4]
    def conv0(q, nodes, ct):
        return [x.replace(f"v{TMP}", f"v{TMP}") for x in conv(q, nodes)]
    if o.latepack:
        if o.stagger:
            for ins in conv(0, list(range(16)), [24, 28, 20]):
                issue(ins)
        else:
            for m in range(16):
                t = CT[m & 1]
                for i in range(4):
                    A(f"v_accvgpr_read_b32 v{t+i}, a{16*m+i}")
                A(f"v_cvt_pk_bf16_f32 v{t}, v{t}, v{t+1}")
                A(f"v_cvt_pk_bf16_f32 v{t+1}, v{t+2}, v{t+3}")
                issue(f"ds_write_b64 v{V_TW}, {vr(t,2)} offset:{m*1040}")
        late = [x for m in range(16, 25) for x in pack(m, (1, 2, 3))]
    else:
        for ins in conv(0, list(range(16, 25)) + list(range(16))):
            issue(ins)
    stamp(A, o, 10)
    blocks = [(0, 0, 0, 0), (0, 1, 3, 1), (0, 2, 3, 2), (0, 3, 3, 3),
              (1, 0, 2, 1), (1, 1, 1, 0), (1, 2, 4, 3), (1, 3, 5, 2),
              (2, 2, 1, 0), (2, 0, 2, 2), (3, 3, 1, 0), (2, 3, 4, 1),
              (3, 2, 5, 1), (3, 1, 4, 2), (2, 1, 5, 3), (3, 0, 2, 3)]
    steps = [b + (s,) for b in blocks for s in range(4)]
    hole = lambda h: 16 * (h & 15) + 4 * (h >> 4)
    wbase = {0: 0, 3: 8, 2: 0, 1: 16, 4: 24, 5: 8} if o.whyb else {0: 0, 3: 8, 2: 16, 1: 24, 4: 0, 5: 8}
    def wld(b, f):
        return f"buffer_load_dwordx4 {ar(hole(wbase[b]+f),4)}, v{V_WR}, s[8:11], s{24+2*b+(f>>2)} offen offset:{(f&3)*1024} ; W{b}.{f}"
    if o.whyb:
        for b in (1, 2, 4, 5):
            for h in range(2):
                A(f"s_mov_b32 s{24+2*b+h}, {WFOFF + b*8192 + h*4096}")
    firstq = {q: min(k for k, st in enumerate(steps) if st[0] == q) for q in range(4)}
    lastq = {q: max(k for k, st in enumerate(steps) if st[0] == q) for q in range(4)}
    lasto = {oo: max(k for k, st in enumerate(steps) if st[3] == oo) for oo in range(4)}
    loaded = set(); need = {}
    def read_list(k):
        q, c, b, oo, s = steps[k]
        toff = (q & 1) * 512 + (s >> 1) * 256 + c * 64 + (s & 1) * 32
        r = [f"ds_read_b128 {vr(TF[k % NT],4)}, v{V_TR} offset:{toff}"]
        if (b, s) not in loaded and not (o.whyb and b not in (0, 3)):
            loaded.add((b, s))
            for t in range(2):
                r.append(f"ds_read_b128 {ar(hole(wbase[b]+2*s+t),4)}, v{V_WR} offset:{L_WF + b*8192 + (2*s+t)*1024}")
        return r
    def cost(ins):
        if ins.startswith("ds_write"): return 7
        if ins.startswith(("v_exp", "v_rcp")): return 8
        if ins.startswith("s_"): return 4
        return 5 if ins.startswith(("ds_", "buffer_", "v_cvt")) else 4.5
    post = gate_and_store(o, OUT, G, NOD, TMP)
    nodj = [f"ds_read_b128 {vr(NOD+4*a,4)}, v{V_ND} offset:{L_NODE+32*a}" for a in range(3)]
    nodj += [f"ds_read_b32 v{NOD+12}, v{V_ND} offset:{L_NODE+96}", "s_waitcnt lgkmcnt(0)"]
    nodj += [f"v_add_u32 v{NOD+i}, v{NOD+i}, v{V_N2}" for i in range(13)]
    NG = 128
    jobs = []
    if late:
        jobs.append([0, 2 * 7 + 1, late])
    for q in (1, 2, 3):
        rel = 0 if q == 1 else 2 * (lastq[q - 2] - TD) + 1
        cl = conv(q, list(range(16)) + list(range(16, 25)))
        if o.whyb and q == 1:
            c2 = []
            for ins in cl:
                c2.append(ins)
                if ins.startswith("v_accvgpr_read") and int(ins.split(", a")[1]) % 16 == 7:
                    m = int(ins.split(", a")[1]) // 16
                    c2.append(wld(1 if m < 8 else 4, m & 7))
            cl = c2
        jobs.append([rel, 2 * (firstq[q] - TD) - 1, cl])
    jobs.append([2 * (firstq[3] - TD), 2 * (lasto[0] + 1), nodj])
    if o.whyb:
        for s_ in range(4):
            jobs.append([2 * s_ + 2, 2 * s_ + 9, [wld(2, 2 * s_), wld(2, 2 * s_ + 1)]])
            jobs.append([2 * (12 + s_) + 2, 2 * (12 + s_) + 9, [wld(5, 2 * s_), wld(5, 2 * s_ + 1)]])
    for oo in range(4):
        rel = 2 * (lasto[oo] + 1) + 1
        jobs.append([rel, NG - 1 if oo < 3 else 10**6, post[oo], oo, False])
    rls = [read_list(k) for k in range(64)]
    fixedc = [sum(cost(x) for x in rls[g // 2 + TD]) if (g % 2 == 0 and g // 2 + TD < 64) else (4 if g % 2 else 0) for g in range(NG)]
    for k in range(TD):
        for ins in rls[k]: issue(ins)
        need[k] = len(lds)
    started = set()
    done_at = {}
    waited = [0]
    def emit_gap(g, fixed):
        budget = o.gapmin
        for j in jobs:
            if j[2] and g <= j[1] < NG and j[0] <= g + o.look:
                tot = sum(cost(x) for jj in jobs if jj[1] <= j[1] for x in jj[2]) + sum(fixedc[g:j[1] + 1])
                budget = max(budget, tot / (j[1] - g + 1))
        used = fixed
        for j in sorted(jobs, key=lambda j: (j[1], j[0])):
            if j[0] > g:
                continue
            while j[2] and (used + cost(j[2][0]) / 2 <= budget or j[1] <= g):
                if len(j) > 3 and not j[4]:
                    d = len(A.L) - done_at[j[3]]
                    if d < 12:
                        A(f"s_nop {11 - d}")
                    j[4] = True
                ins = j[2].pop(0)
                if "w" in o.diag and ins.startswith("ds_write") or "v" in o.diag and ins.startswith(("v_acc", "v_cvt")) and len(j) == 3:
                    pass
                elif ins.startswith("s_waitcnt lgkmcnt(0)"):
                    A(ins)
                else:
                    issue(ins)
                used += cost(ins)
            if j[2]:
                break
    for k in range(64):
        q, c, b, oo, s = steps[k]
        cnt = min(15, len(lds) - need[k])
        w = f"s_waitcnt vmcnt(0) lgkmcnt({cnt})" if k == 0 else f"s_waitcnt lgkmcnt({cnt})"
        if o.whyb and b not in (0, 3):
            p_ = max(wpos[(b, 2 * s)], wpos[(b, 2 * s + 1)])
            if p_ > waited[0]:
                waited[0] = p_
                w = f"s_waitcnt vmcnt({len(vm) - p_}) lgkmcnt({cnt})"
        A(w)
        for t in range(2):
            d = vr(OUT(oo, t), 16)
            cc = d if (oo, t) in started else "0"
            started.add((oo, t))
            A(f"v_mfma_f32_32x32x16_bf16 {d}, {vr(TF[k % NT],4)}, {ar(hole(wbase[b]+2*s+t),4)}, {cc}")
            done_at[oo] = len(A.L)
            fixed = 0
            if t == 0 and k + TD < 64:
                rl = rls[k + TD]
                for ins in rl:
                    issue(ins)
                need[k + TD] = len(lds)
                fixed += sum(cost(x) for x in rl)
            if t == 1:
                fixed += 4
            emit_gap(2 * k + t, fixed)
        if k == 47:
            stamp(A, o, 11)
    stamp(A, o, 12)
    A("s_nop 11")
    for j in jobs:
        for ins in j[2]:
            A(ins)

def gate_and_store(o, OUT, G, NOD, TMP):
    res = []
    p = []
    for t in range(2):
        if o.pk:
            for i in range(0, 13, 2):
                p.append(f"v_pk_mul_f32 {vr(G(t,i),2)}, {vr(OUT(0,t)+i,2)}, s[40:41]")
        else:
            for i in range(13):
                p.append(f"v_mul_f32 v{G(t,i)}, 0xbfb8aa3b, v{OUT(0,t)+i}")
        for i in range(13):
            p.append(f"v_exp_f32 v{G(t,i)}, v{G(t,i)}")
        if o.pk:
            for i in range(0, 13, 2):
                p.append(f"v_pk_add_f32 {vr(G(t,i),2)}, {vr(G(t,i),2)}, s[42:43]")
        else:
            for i in range(13):
                p.append(f"v_add_f32 v{G(t,i)}, 1.0, v{G(t,i)}")
        for i in range(13):
            p.append(f"v_rcp_f32 v{G(t,i)}, v{G(t,i)}")
    for i in range(13):
        r = TMP + (i & 7)
        p.append(f"v_cvt_pk_bf16_f32 v{r}, v{OUT(0,0)+i}, v{OUT(0,1)+i}")
        p.append(f"buffer_store_dword v{r}, v{NOD+i}, s[12:15], 0 offen {o.out_store}")
    res.append(p)
    for oo in range(1, 4):
        p = []
        for i in range(13):
            r = TMP + (i & 7)
            if o.pk:
                if i % 2 == 0:
                    p.append(f"v_pk_mul_f32 {vr(OUT(oo,0)+i,2)}, {vr(OUT(oo,0)+i,2)}, {vr(G(0,i),2)}")
                    p.append(f"v_pk_mul_f32 {vr(OUT(oo,1)+i,2)}, {vr(OUT(oo,1)+i,2)}, {vr(G(1,i),2)}")
            else:
                p.append(f"v_mul_f32 v{OUT(oo,0)+i}, v{OUT(oo,0)+i}, v{G(0,i)}")
                p.append(f"v_mul_f32 v{OUT(oo,1)+i}, v{OUT(oo,1)+i}, v{G(1,i)}")
            p.append(f"v_cvt_pk_bf16_f32 v{r}, v{OUT(oo,0)+i}, v{OUT(oo,1)+i}")
            pol = o.last_store if (oo == 3 and o.last_store is not None) else o.out_store
            p.append(f"buffer_store_dword v{r}, v{NOD+i}, s[12:15], 0 offen offset:{128*oo} {pol}")
        res.append(p)
    return res

def descriptor(name, vg, sg):
    accum = min(256, (vg + 3) // 4 * 4)
    return f""".amdhsa_kernel {name}
  .amdhsa_next_free_vgpr {vg}
  .amdhsa_next_free_sgpr {sg}
  .amdhsa_accum_offset {accum}
  .amdhsa_group_segment_fixed_size 0
  .amdhsa_kernarg_size 96
  .amdhsa_user_sgpr_count 2
  .amdhsa_user_sgpr_kernarg_segment_ptr 1
  .amdhsa_system_sgpr_workgroup_id_x 1
  .amdhsa_float_denorm_mode_32 3
.end_amdhsa_kernel"""

HEADER = """; Equiformer-style tensor-product message passing (gather, tensor product, scatter-sum, gate), two launches.
; is accumulated first and the two weight matrices (scaled by w_rad) are applied once per node.
;                go straight into a 32x32x16 MFMA; node-level GEMMs, sigmoid gate and bf16 stores at the end.
"""

def build(o):
    a1, v1, s1 = k1(o)
    a2, v2, s2 = k2(o)
    n1, n2 = "sort_kernel", "main_kernel"
    t = HEADER
    t += "; @launch kernel=empty_kernel grid=(256,1,1) block=(64,1,1) lds=0\n" * o.extra_pre
    t += f"; @launch kernel={n1} grid=(256,1,1) block=({K1_BLOCK},1,1) lds={K1_LDS}\n"
    t += f"; @launch kernel={n2} grid=(256,1,1) block=(256,1,1) lds={K2_LDS}\n"
    t += "; @launch kernel=empty_kernel grid=(256,1,1) block=(64,1,1) lds=0\n" * o.extra_post
    extra = o.extra_pre + o.extra_post
    t += '.amdgcn_target "amdgcn-amd-amdhsa--gfx950"\n.text\n'
    for n, a in ((n1, a1), (n2, a2)):
        t += f".globl {n}\n.p2align 8\n.type {n},@function\n{n}:\n{a.text()}\n"
    if extra:
        t += ".globl empty_kernel\n.p2align 8\n.type empty_kernel,@function\nempty_kernel:\n    s_endpgm\n"
    t += '.section .rodata,"a"\n.p2align 6\n' + descriptor(n1, v1, s1) + "\n.p2align 6\n" + descriptor(n2, v2, s2) + "\n"
    if extra:
        t += ".p2align 6\n" + descriptor("empty_kernel", 8, 16) + "\n"
    return t, a1, a2

if __name__ == "__main__":
    o = Opt()
    t, a1, a2 = build(o)
    out = sys.argv[1] if len(sys.argv) > 1 else f"cdna_kernels/{NAME}.s"
    open(out, "w").write(t)
    print("wrote", out, len(a1.L), len(a2.L))
```

```python
import sys
import gen, emu
def check(lines, name):
    prog, labels = emu.parse([l for l in lines if not l.startswith(".")])
    n = len(prog)
    preds = [[] for _ in range(n + 1)]
    for i, I in enumerate(prog):
        if I.mn not in ("s_branch", "s_endpgm"):
            preds[i + 1].append(i)
        if I.mn.startswith(("s_branch", "s_cbranch")):
            preds[labels[I.ops[0].val]].append(i)
    w = emu.Wave.__new__(emu.Wave)
    bad = 0
    for i, I in enumerate(prog):
        stack = [(p, 0) for p in preds[i]]
        seen = set()
        while stack:
            p, d = stack.pop()
            if (p, d) in seen: continue
            seen.add((p, d))
            P = prog[p]
            need = w.hazard(P, I)
            if d < need:
                print(f"{name}: [{i}] {I.text}  needs {need} after [{p}] {P.text}, has {d}"); bad += 1
            d2 = d + P.states
            if d2 < 20:
                stack += [(q, d2) for q in preds[p]]
    assert prog[-1].mn in ("s_endpgm", "s_branch")
    print(name, "instructions", n, "hazards", bad)
o = gen.Opt()
for a in sys.argv[1:]:
    k, v = a.split("="); setattr(o, k, eval(v))
t, a1, a2 = gen.build(o)
check(a1.L, "k1"); check(a2.L, "k2")
```

```python
import sys

NAME = "gather_scatter__tensor_product_equiv_equiformer__graph"
N = 25000
E = 800000
XBYTES = N * 512
NCH = 250
CH = 3200
RECB = 12
CHB = CH * RECB
REC_TOTAL = NCH * CHB
COFOFF = NCH * CH * 4
TABOFF = REC_TOTAL
WFOFF = TABOFF + 256 * 1024
WS_USED = WFOFF + 6 * 8192

class Opt:
    nph = 3
    k1_prefetch = False
    soa = True
    k2_pfmode = "mall"
    k2_pfstride = 128
    wglobal = False
    pk = False
    maskmix = True
    pfa = False
    pf = (("a15", 12), ("a21", 12), (-1, 12), (2, 12), (5, 12), (8, 12), (11, 12), (14, 13))
    rot = True
    k1pf = 0
    k1pf_at = "b3"
    dma_early = False
    dma_late = False
    pfb = None
    xorasg = True
    k1x4 = True
    last_store = None
    diag = ""
    epi2 = True
    latepack = True
    gapmin = 24
    tdist = 2
    stagger = True
    look = 30
    zmix = True
    whyb = False
    pad_k2 = 0
    pad_main = None
    pad_epi = 0
    small_late = False
    b1_late = True
    k1q = 1
    nbk = 16
    init_b = 25
    init_a = 8
    tab_early = None
    w_store = ""
    k1_cstore2 = None
    k1_cfirst = True
    k1_tstore = ""
    k1_cstore = "sc1"
    k1_store = "sc1"
    out_store = "sc1"
    k2_prefetch = 0
    stamps = False
    guard = False
    dbgstamps = False
    padto = 0
    padrel = None
    extra_pre = 0
    extra_post = 0

class Asm:
    def __init__(self):
        self.L = []
    def __call__(self, s):
        for line in s.strip().split("\n"):
            line = line.strip()
            if line:
                self.L.append(line)
    def label(self, s):
        self.L.append(s + ":")
    def text(self):
        out = []
        for l in self.L:
            out.append(l if l.endswith(":") else "    " + l)
        return "\n".join(out)

def vr(a, n):
    return f"v[{a}:{a+n-1}]" if n > 1 else f"v{a}"
def ar(a, n):
    return f"a[{a}:{a+n-1}]" if n > 1 else f"a{a}"
def sr(a, n):
    return f"s[{a}:{a+n-1}]" if n > 1 else f"s{a}"

def srd(A, s, lo, hi, size):
    A(f"s_mov_b32 s{s}, s{lo}")
    A(f"s_mov_b32 s{s+1}, s{hi}")
    A(f"s_mov_b32 s{s+2}, {size}")
    A(f"s_mov_b32 s{s+3}, 0x20000")

def guard(A, o, tag):
    if o.guard:
        A("s_load_dword s3, s[0:1], 96")
        A("s_waitcnt lgkmcnt(0)")
        A("s_cmp_eq_u32 s3, 0x5eed1234")
        A(f"s_cbranch_scc0 L_{tag}_end")

def dpp_scan(A, v):
    for ctl in ("row_shr:1", "row_shr:2", "row_shr:4", "row_shr:8"):
        A(f"v_add_u32_dpp v{v}, v{v}, v{v} {ctl} row_mask:0xf bank_mask:0xf")
        A("s_nop 1")
    A(f"v_add_u32_dpp v{v}, v{v}, v{v} row_bcast:15 row_mask:0xa bank_mask:0xf")
    A("s_nop 1")
    A(f"v_add_u32_dpp v{v}, v{v}, v{v} row_bcast:31 row_mask:0xc bank_mask:0xf")

STAMP_OFF = 16 << 20
def stamp(A, o, idx, base=86):
    if o.padrel and base == 86 and idx == o.padrel[0]:
        A("s_memrealtime s[98:99]")
        A("s_waitcnt lgkmcnt(0)")
    if o.stamps and (o.stamps != "lite" or (base, idx) in ((72, 0), (72, 6), (86, 0), (86, 8), (86, 9), (86, 13))):
        assert idx < 14
        A(f"s_memrealtime s[{base+14}:{base+15}]")
        A("s_waitcnt lgkmcnt(0)")
        A(f"s_mov_b32 s{base+idx}, s{base+14}")
def stamp_out(A, o, n, base, lo, hi, srd0, slot_sgpr, region):
    if o.stamps and o.dbgstamps:
        lab = f"L_st_{region}"
        A(f"s_cmp_eq_u32 s{slot_sgpr}, {o.dbgstamps}")
        A(f"s_cbranch_scc0 {lab}")
        A(f"s_load_dwordx2 s[{srd0}:{srd0+1}], s[0:1], 80")
        A("s_waitcnt lgkmcnt(0)")
        if not region:
            A(f"s_add_u32 s{srd0}, s{srd0}, 512")
            A(f"s_addc_u32 s{srd0+1}, s{srd0+1}, 0")
            sel = [0, 6]
            off = 0
        else:
            sel = list(range(14))
            off = 8
        A("s_mov_b64 exec, 1")
        A(f"s_mov_b32 s{srd0+2}, 64")
        A(f"s_mov_b32 s{srd0+3}, 0x20000")
        A("v_mov_b32 v1, 0")
        for k, i in enumerate(sel):
            A(f"v_mov_b32 v2, s{base+i}")
            A(f"buffer_store_dword v2, v1, s[{srd0}:{srd0+3}], 0 offen offset:{off+4*k}")
        A.label(lab)
    elif o.stamps:
        A("s_mov_b64 exec, 1")
        A(f"s_add_u32 s{srd0}, s{lo}, {STAMP_OFF+region}")
        A(f"s_addc_u32 s{srd0+1}, s{hi}, 0")
        A(f"s_mov_b32 s{srd0+2}, {1<<19}")
        A(f"s_mov_b32 s{srd0+3}, 0x20000")
        A(f"s_lshl_b32 s{slot_sgpr}, s{slot_sgpr}, 6")
        A("v_mov_b32 v1, 0")
        for i in range(n):
            A(f"v_mov_b32 v2, s{base+i}")
            A(f"buffer_store_dword v2, v1, s[{srd0}:{srd0+3}], s{slot_sgpr} offen offset:{4*i}")

K1_HIST, K1_BASE, K1_STG = 0, 1024, 2048
K1_LDS = K1_STG + CH * 16
K1_BLOCK = 832
K1_PFO = 48

def k1(o):
    A = Asm()
    guard(A, o, "k1")
    A("s_cmp_ge_u32 s2, 256")
    A("s_cbranch_scc1 L_k1_end")
    stamp(A, o, 0, 72)
    if o.padto:
        A("s_memrealtime s[66:67]")
    A("s_load_dwordx4 s[4:7], s[0:1], 0")
    A("s_load_dwordx4 s[8:11], s[0:1], 16")
    A("s_load_dwordx4 s[12:15], s[0:1], 32")
    A("s_load_dwordx4 s[16:19], s[0:1], 48")
    A("s_load_dwordx2 s[20:21], s[0:1], 88")
    A("s_and_b32 s22, s2, 7")
    A("s_lshl_b32 s22, s22, 5")
    A("s_lshr_b32 s23, s2, 3")
    A("s_add_u32 s22, s22, s23")
    A("v_lshlrev_b32 v1, 4, v0")
    A("v_mul_u32_u24 v2, 24, v0")
    A("v_lshlrev_b32 v3, 3, v0")
    A("s_lshl_b32 s60, s22, 2")
    A(f"s_add_u32 s60, s60, {TABOFF}")
    A("s_cmp_ge_u32 s22, 250")
    A("s_cbranch_scc1 L_k1_wprep")
    A(f"s_mul_i32 s56, s22, {CH*4}")
    A(f"s_mul_i32 s57, s22, {CH*6}")
    A(f"s_mul_i32 s58, s22, {CH*2}")
    A(f"s_mul_i32 s{K1_PFO}, s22, {400*128}")
    A("v_cmp_gt_u32 vcc, 800, v0")
    A("s_and_b64 exec, exec, vcc")
    A("v_mov_b32 v44, 0")
    A("v_mov_b32 v45, 0")
    A("v_mov_b32 v46, 0")
    A("v_mov_b32 v47, 0")
    A("v_readfirstlane_b32 s61, v0")
    A("s_cmp_lt_u32 s61, 64")
    A("s_cbranch_scc0 L_k1_nz")
    A(f"ds_write_b128 v1, v[44:47] offset:{K1_HIST}")
    A.label("L_k1_nz")
    A("s_mov_b32 s62, 43980466")
    A("s_mov_b32 s63, 3125")
    A("s_mov_b32 s64, 0xc0000000")
    A(f"s_mov_b32 s65, {0xc0000 if o.nbk == 16 else 0x40000}")
    A("v_mov_b32 v50, 1")
    A("v_lshlrev_b32 v60, 12, v0")
    if o.tab_early is not None:
        for i in range(4):
            A(f"v_mov_b32 v{64+i}, 0")
    A("s_waitcnt lgkmcnt(0)")
    srd(A, 24, 12, 13, E * 4)
    A("buffer_load_dwordx4 v[4:7], v1, s[24:27], s56 offen")
    srd(A, 28, 10, 11, E * 4)
    srd(A, 32, 6, 7, E * 6)
    srd(A, 36, 8, 9, E * 2)
    A("s_barrier")
    A("buffer_load_dwordx4 v[8:11], v1, s[28:31], s56 offen")
    A("buffer_load_dwordx4 v[12:15], v2, s[32:35], s57 offen")
    A("buffer_load_dwordx2 v[16:17], v2, s[32:35], s57 offen offset:16")
    A("buffer_load_dwordx2 v[18:19], v3, s[36:39], s58 offen")
    npf = 0
    if o.k1_prefetch:
        srd(A, 40, 4, 5, XBYTES)
        A("v_lshlrev_b32 v48, 6, v0")
    if o.k1_prefetch == "early":
        A(f"buffer_load_dword v49, v48, s[40:43], s{K1_PFO} offen")
        npf = 1
    srd(A, 44, 20, 21, WS_USED + (64 if o.padto else 0))
    if o.padto:
        A("s_cmp_eq_u32 s2, 0")
        A("s_cbranch_scc0 L_k1_nt")
        A(f"v_mov_b32 v61, s66")
        A(f"v_mov_b32 v62, {WS_USED}")
        A("buffer_store_dword v61, v62, s[44:47], 0 offen")
        A("s_waitcnt vmcnt(0)")
        A.label("L_k1_nt")
    A(f"s_waitcnt vmcnt({4+npf})")
    stamp(A, o, 1, 72)
    for i in range(4):
        A(f"v_mul_hi_u32 v{52+i}, v{4+i}, s62")
    for i in range(4):
        A(f"v_lshlrev_b32 v{20+i}, 2, v{52+i}")
        A(f"ds_add_rtn_u32 v{24+i}, v{20+i}, v50 offset:{K1_HIST}")
    for i in range(4):
        A(f"v_mad_u32_u24 v{52+i}, v{52+i}, s63, 31")
    for i in range(4):
        A(f"v_lshrrev_b32 v{52+i}, 5, v{52+i}")
    for i in range(4):
        A(f"v_sub_u32 v{4+i}, v{4+i}, v{52+i}")
    A("s_waitcnt lgkmcnt(0)")
    stamp(A, o, 2, 72)
    A("s_barrier")
    A("s_cmp_lt_u32 s61, 64")
    A("s_cbranch_scc0 L_k1_ns")
    A(f"ds_read_b128 v[52:55], v1 offset:{K1_HIST}")
    A("s_waitcnt lgkmcnt(0)")
    A("v_add_u32 v56, v52, v53")
    A("v_add_u32 v57, v56, v54")
    A("v_add_u32 v58, v57, v55")
    A("v_mov_b32 v59, v58")
    A("s_nop 1")
    dpp_scan(A, 59)
    A("v_sub_u32 v44, v59, v58")
    A("v_add_u32 v45, v44, v52")
    A("v_add_u32 v46, v44, v56")
    A("v_add_u32 v47, v44, v57")
    A(f"ds_write_b128 v1, v[44:47] offset:{K1_BASE}")
    for i in range(4):
        A(f"v_lshl_or_b32 v{64+i}, v{52+i}, 16, v{44+i}")
    A("s_waitcnt lgkmcnt(0)")
    A.label("L_k1_ns")
    A("s_barrier")
    ntab = 0
    if o.tab_early is not None:
        ntab = 4
        A("s_mov_b64 s[50:51], exec")
        A("v_cmp_gt_u32 vcc, 64, v0")
        A("s_and_b64 exec, exec, vcc")
        for i in range(4):
            A(f"buffer_store_dword v{64+i}, v60, s[44:47], s60 offen offset:{1024*i} {o.tab_early}")
        A("s_mov_b64 exec, s[50:51]")
    npf += ntab
    stamp(A, o, 3, 72)
    for i in range(4):
        A(f"ds_read_b32 v{44+i}, v{20+i} offset:{K1_BASE}")
    if o.soa:
        A(f"s_mul_i32 s56, s22, {CH*4}")
        A("s_lshl_b32 s68, s56, 1")
        A(f"s_add_u32 s68, s68, {COFOFF}")
        for i in range(1, 4):
            A(f"s_add_u32 s{56+i}, s56, {3200*i}")
            A(f"s_add_u32 s{68+i}, s68, {6400*i}")
        A("v_lshlrev_b32 v2, 2, v0")
    else:
        A(f"s_mul_i32 s56, s22, {CHB}")
        A("s_add_u32 s57, s56, 9600")
        A("s_add_u32 s58, s56, 19200")
        A("s_add_u32 s59, s56, 28800")
        A("v_mul_u32_u24 v2, 12, v0")
    def k1_pf():
        per = o.k1pf
        srd(A, 40, 4, 5, XBYTES)
        A("s_lshr_b32 s49, s61, 6")
        if o.rot:
            A("s_and_b32 s50, s22, 31")
            A("s_mul_i32 s50, s50, 13")
            A("s_add_u32 s49, s49, s50")
            A(f"s_mul_i32 s49, s49, {per*128}")
            A("s_lshr_b32 s50, s22, 5")
            A(f"s_mul_i32 s50, s50, {XBYTES//8}")
            A("s_add_u32 s49, s49, s50")
            A(f"s_add_u32 s49, s49, {(12500 - per*13*32)*128}")
        else:
            A("s_mul_i32 s50, s22, 13")
            A("s_add_u32 s49, s49, s50")
            A(f"s_mul_i32 s49, s49, {per*128}")
        A("v_and_b32 v48, 63, v0")
        A("v_lshlrev_b32 v48, 7, v48")
        A("s_mov_b64 s[50:51], exec")
        A(f"s_mov_b32 exec_lo, {hex((1 << min(32, per)) - 1)}")
        A("s_mov_b32 exec_hi, 0")
        A("buffer_load_dword v49, v48, s[40:43], s49 offen")
        A("s_mov_b64 exec, s[50:51]")
    if o.k1pf and o.k1pf_at == "b3":
        assert o.k1pf <= 32
        k1_pf()
        npf += 1
    A(f"s_waitcnt vmcnt({3+npf})")
    R = [28, 32, 36, 40]
    b16 = o.nbk == 16
    for i in range(4):
        A(f"v_mul_u32_u24 v{56+i}, 0x29f00, v{8+i}")
        A(f"v_lshl_or_b32 v{52+i}, v{4+i}, {20 if b16 else 19}, v{8+i}")
    if o.rot:
        for i in range(4):
            A(f"v_lshrrev_b32 v{61 + (i & 1)}, 7, v{20+i}")
            A(f"v_lshlrev_b32 v{61 + (i & 1)}, 29, v{61 + (i & 1)}")
            A(f"v_sub_u32 v{56+i}, v{56+i}, v{61 + (i & 1)}")
    for i in range(4):
        A(f"v_and_or_b32 v{52+i}, v{56+i}, s64, v{52+i}")
        A(f"v_lshrrev_b32 v{56+i}, {10 if b16 else 11}, v{56+i}")
    for i in range(4):
        A(f"v_and_or_b32 v{R[i]+2}, v{56+i}, s65, v{52+i}")
    A("s_waitcnt lgkmcnt(0)")
    x4 = o.soa and o.k1x4
    for i in range(4):
        A(f"v_add_lshl_u32 v{44+i}, v{44+i}, v{24+i}, {2 if x4 else 4}")
        if x4:
            A(f"ds_write_b32 v{44+i}, v{R[i]+2} offset:{K1_STG+25600}")
            A(f"v_lshlrev_b32 v{44+i}, 1, v{44+i}")
    A(f"s_waitcnt vmcnt({npf})")
    src = [((18, 0), (12, 0), (12, 1), (13, 0)),
           ((18, 1), (13, 1), (14, 0), (14, 1)),
           ((19, 0), (15, 0), (15, 1), (16, 0)),
           ((19, 1), (16, 1), (17, 0), (17, 1))]
    for i in range(4):
        for k, (r, h) in enumerate(src[i]):
            if h == 0:
                A(f"v_lshlrev_b32 v{52+k}, 16, v{r}")
            else:
                A(f"v_and_b32 v{52+k}, 0xffff0000, v{r}")
        for k in range(1, 4):
            A(f"v_mul_f32 v{52+k}, v52, v{52+k}")
        A(f"v_cvt_pk_bf16_f32 v{R[i]}, v52, v53")
        A(f"v_cvt_pk_bf16_f32 v{R[i]+1}, v54, v55")
        if x4:
            A(f"ds_write_b64 v{44+i}, {vr(R[i],2)} offset:{K1_STG}")
        else:
            A(f"ds_write_b96 v{44+i}, {vr(R[i],3)} offset:{K1_STG}")
    if o.k1_prefetch == "late":
        A(f"buffer_load_dword v49, v48, s[40:43], s{K1_PFO} offen")
    if o.k1pf and o.k1pf_at == "b4":
        k1_pf()
    A("s_waitcnt lgkmcnt(0)")
    A("s_barrier")
    stamp(A, o, 4, 72)
    if o.k1_prefetch == "pre_end":
        A(f"buffer_load_dword v49, v48, s[40:43], s{K1_PFO} offen")
    if x4:
        cst = o.k1_store if o.k1_cstore is None else o.k1_cstore
        cst2 = cst if o.k1_cstore2 is None else o.k1_cstore2
        items = [(4, 25600, 56, o.k1_store), (8, 0, 68, cst), (12, 12800, 69, cst2)]
        if o.k1_cfirst:
            items = items[1:] + items[:1]
        for (r, off, sg, pol) in items:
            A(f"ds_read_b128 v[{r}:{r+3}], v1 offset:{K1_STG+off}")
        A("s_add_u32 s69, s68, 12800")
        for k, (r, off, sg, pol) in enumerate(items):
            A(f"s_waitcnt lgkmcnt({2-k})")
            A(f"buffer_store_dwordx4 v[{r}:{r+3}], v1, s[44:47], s{sg} offen {pol}")
    else:
        for i in range(4):
            A(f"ds_read_b96 {vr(4+4*i,3)}, v1 offset:{K1_STG+12800*i}")
        for i in range(4):
            A(f"s_waitcnt lgkmcnt({3-i})")
            if o.soa:
                A(f"buffer_store_dword v{6+4*i}, v2, s[44:47], s{56+i} offen {o.k1_store}")
                A(f"buffer_store_dwordx2 {vr(4+4*i,2)}, v3, s[44:47], s{68+i} offen {o.k1_store}")
            else:
                A(f"buffer_store_dwordx3 {vr(4+4*i,3)}, v2, s[44:47], s{56+i} offen {o.k1_store}")
    A("s_cmp_lt_u32 s61, 64")
    A("s_cbranch_scc0 L_k1_notab")
    for i in range(4 if o.tab_early is None else 0):
        A(f"buffer_store_dword v{64+i}, v60, s[44:47], s60 offen offset:{1024*i} {o.k1_store if o.k1_tstore is None else o.k1_tstore}")
    A.label("L_k1_notab")
    if o.k1pf and o.k1pf_at == "end":
        k1_pf()
    if o.k1_prefetch == "end":
        A(f"buffer_load_dword v49, v48, s[40:43], s{K1_PFO} offen")
    if o.stamps:
        stamp(A, o, 5, 72)
        A("s_waitcnt vmcnt(0)")
        stamp(A, o, 6, 72)
        A("s_lshr_b32 s61, s61, 6")
        A("s_lshl_b32 s62, s2, 4")
        A("s_add_u32 s61, s61, s62")
        stamp_out(A, o, 7, 72, 20, 21, 24, 61, 0)
    A("s_endpgm")

    A.label("L_k1_wprep")
    A("v_cmp_gt_u32 vcc, 512, v0")
    A("s_and_b64 exec, exec, vcc")
    A("s_cbranch_execz L_k1_end")
    A("s_sub_u32 s23, s22, 250")
    A("s_min_u32 s24, s23, 4")
    A("s_lshl_b32 s24, s24, 7")
    A("s_and_b32 s25, s23, 1")
    A("s_lshl_b32 s25, s25, 13")
    A("s_cmp_ge_u32 s23, 4")
    A("s_cselect_b32 s25, 16384, s25")
    A("s_cmp_eq_u32 s23, 5")
    A("s_cselect_b32 s26, 0x80000000, 0")
    A("s_lshl_b32 s27, s23, 13")
    A(f"s_add_u32 s27, s27, {WFOFF}")
    A("v_lshrrev_b32 v4, 6, v0")
    A("v_and_b32 v5, 63, v0")
    A("v_and_b32 v6, 31, v5")
    A("v_lshrrev_b32 v7, 5, v5")
    A("v_and_b32 v8, 1, v4")
    A("v_lshl_add_u32 v6, v6, 1, v8")
    A("v_bfe_u32 v8, v4, 1, 1")
    A("v_lshl_add_u32 v7, v8, 1, v7")
    A("v_lshrrev_b32 v8, 2, v4")
    A("v_lshlrev_b32 v8, 2, v8")
    A("v_lshl_add_u32 v7, v7, 4, v8")
    A("v_lshlrev_b32 v9, 1, v7")
    A("v_lshlrev_b32 v10, 6, v7")
    A("v_add_lshl_u32 v10, v10, v6, 1")
    A("v_mov_b32 v11, 0")
    A("v_lshlrev_b32 v30, 10, v0")
    A("s_waitcnt lgkmcnt(0)")
    srd(A, 44, 20, 21, WS_USED)
    srd(A, 32, 14, 15, 640)
    srd(A, 36, 16, 17, 128 * 128)
    srd(A, 40, 18, 19, 192 * 128)
    A("buffer_load_dwordx2 v[12:13], v9, s[32:35], s24 offen")
    A("buffer_load_dwordx2 v[14:15], v9, s[32:35], s24 offen offset:16")
    A("s_cmp_ge_u32 s23, 2")
    A("s_cbranch_scc1 L_k1_w1")
    for ii in range(8):
        A(f"buffer_load_ushort v{16+ii}, v10, s[36:39], s25 offen offset:{((ii>>2)*8+(ii&3))*128}")
    A("s_branch L_k1_w2")
    A.label("L_k1_w1")
    for ii in range(8):
        A(f"buffer_load_ushort v{16+ii}, v10, s[40:43], s25 offen offset:{((ii>>2)*8+(ii&3))*128}")
    A.label("L_k1_w2")
    A("v_cmp_gt_u32 vcc, 256, v0")
    A("s_and_saveexec_b64 s[28:29], vcc")
    A("s_cbranch_execz L_k1_w3")
    A("buffer_store_dword v11, v30, s[44:47], s60 offen")
    A.label("L_k1_w3")
    A("s_mov_b64 exec, s[28:29]")
    A("s_waitcnt vmcnt(0)")
    for ii in range(8):
        r = 12 + (ii >> 1)
        if ii & 1:
            A(f"v_and_b32 v24, 0xffff0000, v{r}")
        else:
            A(f"v_lshlrev_b32 v24, 16, v{r}")
        A(f"v_lshlrev_b32 v{16+ii}, 16, v{16+ii}")
        A(f"v_mul_f32 v{16+ii}, v24, v{16+ii}")
        A(f"v_xor_b32 v{16+ii}, s26, v{16+ii}")
    for k in range(4):
        A(f"v_cvt_pk_bf16_f32 v{24+k}, v{16+2*k}, v{17+2*k}")
    A(f"buffer_store_dwordx4 v[24:27], v1, s[44:47], s27 offen {o.w_store}")
    A.label("L_k1_end")
    A("s_endpgm")
    return A, 72, (96 if o.stamps else 72)


def k1b(o):
    Q = o.k1q
    NT = 800 // Q
    A = Asm()
    A("s_cmp_ge_u32 s2, 256")
    A("s_cbranch_scc1 L_k1_end")
    stamp(A, o, 0, 72)
    A("s_load_dwordx4 s[4:7], s[0:1], 0")
    A("s_load_dwordx4 s[8:11], s[0:1], 16")
    A("s_load_dwordx4 s[12:15], s[0:1], 32")
    A("s_load_dwordx4 s[16:19], s[0:1], 48")
    A("s_load_dwordx2 s[20:21], s[0:1], 88")
    A("s_and_b32 s22, s2, 7")
    A("s_lshl_b32 s22, s22, 5")
    A("s_lshr_b32 s23, s2, 3")
    A("s_add_u32 s22, s22, s23")
    A("v_lshlrev_b32 v1, 4, v0")
    A("v_mul_u32_u24 v2, 24, v0")
    A("v_lshlrev_b32 v3, 3, v0")
    A("s_lshl_b32 s60, s22, 2")
    A(f"s_add_u32 s60, s60, {TABOFF}")
    A("s_cmp_ge_u32 s22, 250")
    A("s_cbranch_scc1 L_k1_wprep")
    A(f"s_mul_i32 s52, s22, {CH*4}")
    A(f"s_mul_i32 s56, s22, {CH*6}")
    A(f"s_mul_i32 s64, s22, {CH*2}")
    for r in range(1, Q):
        A(f"s_add_u32 s{52+r}, s52, {NT*16*r}")
        A(f"s_add_u32 s{56+r}, s56, {NT*24*r}")
        A(f"s_add_u32 s{64+r}, s64, {NT*8*r}")
    A(f"v_cmp_gt_u32 vcc, {NT}, v0")
    A("s_and_b64 exec, exec, vcc")
    D = lambda r: 8 + 4 * r
    S = lambda r: 16 + 4 * r
    Y = lambda r: 24 + 6 * r
    EA = lambda r: 36 + 2 * r
    HA = lambda r: 40 + 4 * r
    RK = lambda r: 48 + 4 * r
    RC = lambda r, i: 56 + 16 * r + 4 * i
    TM = 88
    assert Q <= 2
    for k in range(4):
        A(f"v_mov_b32 v{TM+k}, 0")
    A("v_readfirstlane_b32 s61, v0")
    A("s_cmp_lt_u32 s61, 64")
    A("s_cbranch_scc0 L_k1_nz")
    A(f"ds_write_b128 v1, {vr(TM,4)} offset:{K1_HIST}")
    A.label("L_k1_nz")
    A("s_mov_b32 s62, 43980466")
    A("s_mov_b32 s63, 3125")
    A("s_mov_b32 s68, 0xc0000000")
    A("s_mov_b32 s69, 0xc0000")
    A("v_mov_b32 v4, 1")
    A("v_lshlrev_b32 v5, 12, v0")
    A("s_waitcnt lgkmcnt(0)")
    srd(A, 24, 12, 13, E * 4)
    for r in range(Q):
        A(f"buffer_load_dwordx4 {vr(D(r),4)}, v1, s[24:27], s{52+r} offen")
    srd(A, 28, 10, 11, E * 4)
    srd(A, 32, 6, 7, E * 6)
    srd(A, 36, 8, 9, E * 2)
    A("s_barrier")
    for r in range(Q):
        A(f"buffer_load_dwordx4 {vr(S(r),4)}, v1, s[28:31], s{52+r} offen")
        A(f"buffer_load_dwordx4 {vr(Y(r),4)}, v2, s[32:35], s{56+r} offen")
        A(f"buffer_load_dwordx2 {vr(Y(r)+4,2)}, v2, s[32:35], s{56+r} offen offset:16")
        A(f"buffer_load_dwordx2 {vr(EA(r),2)}, v3, s[36:39], s{64+r} offen")
    srd(A, 44, 20, 21, WS_USED)
    for r in range(Q):
        A(f"s_waitcnt vmcnt({4*Q + Q-1-r})")
        if r == 0:
            stamp(A, o, 1, 72)
        for i in range(4):
            A(f"v_mul_hi_u32 v{TM+i}, v{D(r)+i}, s62")
        for i in range(4):
            A(f"v_lshlrev_b32 v{HA(r)+i}, 2, v{TM+i}")
            A(f"ds_add_rtn_u32 v{RK(r)+i}, v{HA(r)+i}, v4 offset:{K1_HIST}")
        for i in range(4):
            A(f"v_mad_u32_u24 v{TM+i}, v{TM+i}, s63, 31")
        for i in range(4):
            A(f"v_lshrrev_b32 v{TM+i}, 5, v{TM+i}")
        for i in range(4):
            A(f"v_sub_u32 v{D(r)+i}, v{D(r)+i}, v{TM+i}")
    A("s_waitcnt lgkmcnt(0)")
    stamp(A, o, 2, 72)
    A("s_barrier")
    A("s_cmp_lt_u32 s61, 64")
    A("s_cbranch_scc0 L_k1_ns")
    H, P, B4 = 56, 60, 64
    A(f"ds_read_b128 {vr(H,4)}, v1 offset:{K1_HIST}")
    A("s_waitcnt lgkmcnt(0)")
    A(f"v_add_u32 v{P}, v{H}, v{H+1}")
    A(f"v_add_u32 v{P+1}, v{P}, v{H+2}")
    A(f"v_add_u32 v{P+2}, v{P+1}, v{H+3}")
    A(f"v_mov_b32 v{P+3}, v{P+2}")
    A("s_nop 1")
    dpp_scan(A, P + 3)
    A(f"v_sub_u32 v{B4}, v{P+3}, v{P+2}")
    A(f"v_add_u32 v{B4+1}, v{B4}, v{H}")
    A(f"v_add_u32 v{B4+2}, v{B4}, v{P}")
    A(f"v_add_u32 v{B4+3}, v{B4}, v{P+1}")
    A(f"ds_write_b128 v1, {vr(B4,4)} offset:{K1_BASE}")
    for i in range(4):
        A(f"v_lshl_or_b32 v{96+i}, v{H+i}, 16, v{B4+i}")
    A("s_waitcnt lgkmcnt(0)")
    A.label("L_k1_ns")
    A("s_barrier")
    stamp(A, o, 3, 72)
    BS = lambda r: 100 + 4 * r
    for r in range(Q):
        for i in range(4):
            A(f"ds_read_b32 v{BS(r)+i}, v{HA(r)+i} offset:{K1_BASE}")
    A(f"s_mul_i32 s56, s22, {CH*4}")
    A("s_lshl_b32 s57, s56, 1")
    A(f"s_add_u32 s57, s57, {COFOFF}")
    for r in range(Q):
        A(f"s_waitcnt vmcnt({4*(Q-1-r)+3})")
        for i in range(4):
            A(f"v_mul_u32_u24 v{TM+i}, 0x29f00, v{S(r)+i}")
            A(f"v_lshl_or_b32 v{D(r)+i}, v{D(r)+i}, 20, v{S(r)+i}")
        for i in range(4):
            A(f"v_lshrrev_b32 v{TM+4+(i&1)}, 7, v{HA(r)+i}")
            A(f"v_lshlrev_b32 v{TM+4+(i&1)}, 29, v{TM+4+(i&1)}")
            A(f"v_sub_u32 v{TM+i}, v{TM+i}, v{TM+4+(i&1)}")
        for i in range(4):
            A(f"v_and_or_b32 v{D(r)+i}, v{TM+i}, s68, v{D(r)+i}")
            A(f"v_lshrrev_b32 v{TM+i}, 10, v{TM+i}")
        for i in range(4):
            A(f"v_and_or_b32 v{RC(r,i)+2}, v{TM+i}, s69, v{D(r)+i}")
        if r == 0:
            A("s_waitcnt lgkmcnt(0)")
        for i in range(4):
            A(f"v_add_lshl_u32 v{RK(r)+i}, v{BS(r)+i}, v{RK(r)+i}, 2")
            A(f"ds_write_b32 v{RK(r)+i}, v{RC(r,i)+2} offset:{K1_STG+25600}")
            A(f"v_lshlrev_b32 v{RK(r)+i}, 1, v{RK(r)+i}")
        A(f"s_waitcnt vmcnt({4*(Q-1-r)})")
        y, e = Y(r), EA(r)
        src = [((e, 0), (y, 0), (y, 1), (y+1, 0)), ((e, 1), (y+1, 1), (y+2, 0), (y+2, 1)),
               ((e+1, 0), (y+3, 0), (y+3, 1), (y+4, 0)), ((e+1, 1), (y+4, 1), (y+5, 0), (y+5, 1))]
        for i in range(4):
            for k, (rr, h) in enumerate(src[i]):
                if h == 0:
                    A(f"v_lshlrev_b32 v{TM+k}, 16, v{rr}")
                else:
                    A(f"v_and_b32 v{TM+k}, 0xffff0000, v{rr}")
            for k in range(1, 4):
                A(f"v_mul_f32 v{TM+k}, v{TM}, v{TM+k}")
            A(f"v_cvt_pk_bf16_f32 v{RC(r,i)}, v{TM}, v{TM+1}")
            A(f"v_cvt_pk_bf16_f32 v{RC(r,i)+1}, v{TM+2}, v{TM+3}")
            A(f"ds_write_b64 v{RK(r)+i}, {vr(RC(r,i),2)} offset:{K1_STG}")
    A("s_waitcnt lgkmcnt(0)")
    A("s_barrier")
    stamp(A, o, 4, 72)
    items = [(8 + 4 * k, NT * 16 * k, 57, NT * 16 * k, o.k1_cstore) for k in range(2 * Q)]
    items += [(8 + 4 * (2 * Q + k), 25600 + NT * 16 * k, 56, NT * 16 * k, o.k1_store) for k in range(Q)]
    for (r, off, sg, go, pol) in items:
        A(f"ds_read_b128 {vr(r,4)}, v1 offset:{K1_STG+off}")
    for k, (r, off, sg, go, pol) in enumerate(items):
        A(f"s_add_u32 s58, s{sg}, {go}")
        A(f"s_waitcnt lgkmcnt({len(items)-1-k})")
        A(f"buffer_store_dwordx4 {vr(r,4)}, v1, s[44:47], s58 offen {pol}")
    A("s_cmp_lt_u32 s61, 64")
    A("s_cbranch_scc0 L_k1_notab")
    for i in range(4):
        A(f"buffer_store_dword v{96+i}, v5, s[44:47], s60 offen offset:{1024*i} {o.k1_tstore}")
    A.label("L_k1_notab")
    if o.stamps:
        stamp(A, o, 5, 72)
        A("s_waitcnt vmcnt(0)")
        stamp(A, o, 6, 72)
        A("s_lshr_b32 s61, s61, 6")
        A("s_lshl_b32 s62, s2, 4")
        A("s_add_u32 s61, s61, s62")
        stamp_out(A, o, 7, 72, 20, 21, 24, 61, 0)
    A("s_endpgm")
    A.label("L_k1_wprep")
    A("v_cmp_gt_u32 vcc, 256, v0")
    A("s_and_b64 exec, exec, vcc")
    A("s_cbranch_execz L_k1_end")
    A("s_sub_u32 s23, s22, 250")
    A("s_min_u32 s24, s23, 4")
    A("s_lshl_b32 s24, s24, 7")
    A("s_and_b32 s25, s23, 1")
    A("s_lshl_b32 s25, s25, 13")
    A("s_cmp_ge_u32 s23, 4")
    A("s_cselect_b32 s25, 16384, s25")
    A("s_cmp_eq_u32 s23, 5")
    A("s_cselect_b32 s26, 0x80000000, 0")
    A("s_lshl_b32 s27, s23, 13")
    A(f"s_add_u32 s27, s27, {WFOFF}")
    A("v_lshrrev_b32 v4, 6, v0")
    A("v_and_b32 v5, 63, v0")
    A("v_and_b32 v6, 31, v5")
    A("v_lshrrev_b32 v7, 5, v5")
    A("v_and_b32 v8, 1, v4")
    A("v_lshl_add_u32 v6, v6, 1, v8")
    A("v_bfe_u32 v8, v4, 1, 1")
    A("v_lshl_add_u32 v7, v8, 1, v7")
    A("v_lshlrev_b32 v7, 4, v7")
    A("v_lshlrev_b32 v9, 1, v7")
    A("v_lshlrev_b32 v10, 6, v7")
    A("v_add_lshl_u32 v10, v10, v6, 1")
    A("v_mov_b32 v11, 0")
    A("v_lshlrev_b32 v30, 10, v0")
    A("s_waitcnt lgkmcnt(0)")
    srd(A, 44, 20, 21, WS_USED)
    srd(A, 32, 14, 15, 640)
    srd(A, 36, 16, 17, 128 * 128)
    srd(A, 40, 18, 19, 192 * 128)
    A("buffer_store_dword v11, v30, s[44:47], s60 offen")
    for h in range(2):
        A(f"buffer_load_dwordx2 {vr(12+16*h*2,2)}, v9, s[32:35], s24 offen offset:{8*h}")
        A(f"buffer_load_dwordx2 {vr(14+16*h*2,2)}, v9, s[32:35], s24 offen offset:{16+8*h}")
    A("s_cmp_ge_u32 s23, 2")
    A("s_cbranch_scc1 L_k1_w1")
    for h in range(2):
        for ii in range(8):
            A(f"buffer_load_ushort v{16+32*h+ii}, v10, s[36:39], s25 offen offset:{((ii>>2)*8+(ii&3)+4*h)*128}")
    A("s_branch L_k1_w2")
    A.label("L_k1_w1")
    for h in range(2):
        for ii in range(8):
            A(f"buffer_load_ushort v{16+32*h+ii}, v10, s[40:43], s25 offen offset:{((ii>>2)*8+(ii&3)+4*h)*128}")
    A.label("L_k1_w2")
    A("s_waitcnt vmcnt(0)")
    A("s_add_u32 s28, s27, 4096")
    for h in range(2):
        b = 32 * h
        for ii in range(8):
            r = 12 + b + (ii >> 1)
            if ii & 1:
                A(f"v_and_b32 v{24+b}, 0xffff0000, v{r}")
            else:
                A(f"v_lshlrev_b32 v{24+b}, 16, v{r}")
            A(f"v_lshlrev_b32 v{16+b+ii}, 16, v{16+b+ii}")
            A(f"v_mul_f32 v{16+b+ii}, v{24+b}, v{16+b+ii}")
            A(f"v_xor_b32 v{16+b+ii}, s26, v{16+b+ii}")
        for k in range(4):
            A(f"v_cvt_pk_bf16_f32 v{24+b+k}, v{16+b+2*k}, v{17+b+2*k}")
        A(f"buffer_store_dwordx4 {vr(24+b,4)}, v1, s[44:47], s{27+h} offen {o.w_store}")
    A.label("L_k1_end")
    A("s_endpgm")
    return A, 112, (96 if o.stamps else 72)

L_NI, L_CNT, L_RG, L_FLAG = 0, 4096, 4352, 4480
L_NODE, L_OV, L_DUM, L_STR = 4608, 5120, 5888, 6016
STRB = 848
L_WF = 9472
L_TBL = L_WF + 6 * 8192
WREG = 26064
GSTR = 40 * 128 + 16
GCAP = 40
K2_LDS = L_TBL + 4 * WREG
NSLOT = 22
OVCAP = 24
BIG = 0x7ffffff0

S_X, S_WS, S_OUT = 4, 8, 12
S_W, S_BIN, S_NST, S_NN, S_WB, S_512, S_S, S_SEND = 16, 17, 18, 19, 20, 21, 22, 23
S_MASK = 24
S_VAL = 34
S_T0, S_T1, S_T2, S_T3 = 78, 79, 80, 81
S_MODE, S_B, S_NB, S_TAB = 82, 83, 84, 85
S_PFB = 89
V_LANE, V_LOFF, V_HOFF, V_SP, V_Q, V_TP = 0, 1, 2, 3, 4, 5
V_SEL, V_A, V_C = 8, 12, 16
V_AD = 26
V_P = 28
V_S = 32
V_RING = 52

def acc(m):
    return ar(16 * m, 16) if m < 16 else vr(112 + 16 * (m - 16), 16)

def rec(u):
    return 44 if u == 0 else 112 + 6 * (u - 1)
def ent(u):
    return 240 + u
V_I = 6
V_LB = 7
V_PF = 31
V_TID = 35
V_EL = 39
V_MAX = 43
V_T = 50
V_E0 = V_T + 22
V_ONE = V_T + 30
V_PFA = V_T + 61

def k2(o):
    nph = o.nph
    ring = 112 - 20 * nph
    vS = V_S
    assert vS + 4 * nph <= ring
    A = Asm()
    guard(A, o, "k2")
    A("s_cmp_ge_u32 s2, 256")
    A("s_cbranch_scc1 L_k2_end")
    for _ in range(o.pad_k2):
        A("s_nop 0")
    stamp(A, o, 0)
    A("s_load_dwordx2 s[4:5], s[0:1], 0")
    A("s_load_dwordx2 s[8:9], s[0:1], 88")
    A("s_load_dwordx2 s[12:13], s[0:1], 72")
    A(f"v_mov_b32 v{V_TID}, v0")
    A("v_lshrrev_b32 v1, 6, v0")
    A("v_and_b32 v0, 63, v0")
    A(f"v_readfirstlane_b32 s{S_W}, v1")
    A(f"s_and_b32 s{S_BIN}, s2, 7")
    A(f"s_lshl_b32 s{S_BIN}, s{S_BIN}, 5")
    A(f"s_lshr_b32 s{S_T0}, s2, 3")
    A(f"s_add_u32 s{S_BIN}, s{S_BIN}, s{S_T0}")
    A(f"s_mul_i32 s{S_NST}, s{S_BIN}, 3125")
    A(f"s_add_u32 s{S_NN}, s{S_NST}, {3125+31}")
    A(f"s_add_u32 s{S_NST}, s{S_NST}, 31")
    A(f"s_lshr_b32 s{S_NST}, s{S_NST}, 5")
    A(f"s_lshr_b32 s{S_NN}, s{S_NN}, 5")
    A(f"s_sub_u32 s{S_NN}, s{S_NN}, s{S_NST}")
    A(f"s_mul_i32 s{S_WB}, s{S_W}, {WREG}")
    A(f"s_add_u32 s{S_WB}, s{S_WB}, {L_TBL}")
    A(f"s_lshl_b32 s{S_TAB}, s{S_BIN}, 10")
    A(f"s_add_u32 s{S_TAB}, s{S_TAB}, {TABOFF}")
    A(f"s_mov_b32 s{S_512}, 512")
    if o.rot and o.pf:
        A(f"s_lshr_b32 s{S_PFB}, s{S_BIN}, 5")
        A(f"s_mul_i32 s{S_PFB}, s{S_PFB}, {XBYTES // 8}")
    A(f"s_mov_b32 s{S_MODE}, 0")
    A(f"s_mov_b32 s{S_B}, 0")
    A(f"s_mov_b32 s{S_NB}, 0")
    A(f"s_mov_b32 s6, {XBYTES}")
    A("s_mov_b32 s7, 0x20000")
    A(f"s_mov_b32 s10, {WS_USED}")
    A("s_mov_b32 s11, 0x20000")
    A(f"s_mov_b32 s14, {XBYTES}")
    A("s_mov_b32 s15, 0x20000")
    T = V_T
    def init_small():
        A(f"v_and_b32 v{T}, 3, v0")
        A(f"v_cmp_eq_u32 vcc, 3, v{T}")
        A(f"v_mov_b32 v{T+8}, 0")
        A(f"v_mov_b32 v{T+9}, 0")
        A(f"v_cndmask_b32 v{T+4}, 0, -1, vcc")
        A(f"v_mov_b32 v{T+5}, v{T+4}")
        A(f"v_mov_b32 v{T+6}, v{T+4}")
        A(f"v_mov_b32 v{T+7}, v{T+4}")
        A(f"v_lshl_add_u32 v{T+1}, v0, 4, s{S_WB}")
        A(f"v_mov_b32 v{T+10}, 0")
        A(f"v_mov_b32 v{T+11}, 0")
        A(f"v_lshlrev_b32 v{T+2}, 4, v{V_TID}")
        A(f"ds_write_b128 v{T+2}, {vr(T+8,4)} offset:{L_NI}")
        A(f"v_cmp_gt_u32 vcc, 32, v{V_TID}")
        A("s_and_saveexec_b64 s[78:79], vcc")
        A(f"ds_write_b128 v{T+2}, {vr(T+8,4)} offset:{L_CNT}")
        A("s_mov_b64 exec, s[78:79]")
        A(f"s_mul_i32 s{S_T2}, s{S_W}, 192")
        A(f"s_mul_i32 s{S_T3}, s{S_W}, {STRB}")
        A(f"v_lshl_add_u32 v{T+2}, v0, 4, s{S_T2}")
        A(f"v_lshl_add_u32 v{T+3}, v0, 4, s{S_T3}")
        for k in range(4):
            A(f"v_mov_b32 v{T+12+k}, {L_DUM}")
        A(f"v_lshlrev_b32 v{T+16}, 4, v0")
        A(f"s_lshl_b32 s{S_T2}, s{S_W}, 7")
        A(f"v_lshl_add_u32 v{T+17}, v0, 2, s{S_T2}")
        A(f"v_mov_b32 v{T+18}, {BIG}")
        A(f"v_mov_b32 v{V_MAX}, 0")
        A("s_mov_b64 exec, 0xfff")
        A(f"ds_write_b128 v{T+2}, {vr(T+8,4)} offset:{L_OV}")
        A("s_mov_b32 exec_lo, -1")
        A("s_mov_b32 exec_hi, 0x1fffff")
        A(f"ds_write_b128 v{T+3}, {vr(T+12,4)} offset:{L_STR}")
        A("s_mov_b32 exec_hi, 0")
        A(f"ds_write_b32 v{T+17}, v{T+18} offset:{L_NODE}")
        A("s_mov_b32 exec_lo, 0xff")
        A(f"ds_write_b128 v{T+16}, {vr(T+4,4)} offset:{L_DUM}")
        A("s_mov_b64 exec, -1")
    def tbl_write(k):
        A(f"ds_write_b128 v{T+1}, {vr(T+4,4)} offset:{GSTR*(k//5) + 1024*(k%5)}")
    if not o.small_late:
        init_small()
        for k in range(o.init_a):
            tbl_write(k)
    A(f"v_and_b32 v{V_I}, 15, v0")
    A(f"v_lshrrev_b32 v{T}, 4, v{V_TID}")
    A(f"v_lshlrev_b32 v{T+20}, 6, v{T}")
    A(f"v_lshlrev_b32 v{T+21}, 2, v{V_TID}")
    RB = 4 if o.soa else 12
    CB = CH * RB
    A(f"s_mov_b32 s{S_T0}, {16*CB}")
    A(f"v_mul_lo_u32 v{V_LB}, v{T}, s{S_T0}")
    A(f"v_mad_u32_u24 v{V_LB}, v{V_I}, {RB}, v{V_LB}")
    for r in range(4):
        A(f"v_mov_b32 v{V_A+r}, 0")
    A("s_waitcnt lgkmcnt(0)")
    for k in range(4):
        A(f"buffer_load_dwordx4 {vr(ent(4*k),4)}, v{T+20}, s[8:11], s{S_TAB} offen offset:{16*k}")
    A(f"buffer_load_dword v{V_EL}, v{T+21}, s[8:11], s{S_TAB} offen")
    if o.dma_early:
        A(f"v_lshlrev_b32 v{T+22}, 4, v0")
        A(f"s_mul_i32 s{S_T0}, s{S_W}, 12288")
        A(f"s_add_u32 s{S_T1}, s{S_T0}, {WFOFF}")
        A(f"s_add_u32 s{S_T0}, s{S_T0}, {L_WF}")
        for k in range(3):
            A(f"s_mov_b32 m0, s{S_T0}")
            A(f"s_add_u32 s{S_T0}, s{S_T0}, 4096")
            for kk in range(4):
                A(f"buffer_load_dwordx4 v{T+22}, s[8:11], s{S_T1} offen offset:{1024*kk} lds")
            if k < 2:
                A(f"s_add_u32 s{S_T1}, s{S_T1}, 4096")
    if o.small_late:
        init_small()
        for k in range(o.init_a):
            tbl_write(k)
    zm = list(range(16))
    for k in range(o.init_a, o.init_b):
        tbl_write(k)
        if zm:
            m = zm.pop()
            A(f"v_mfma_f32_32x32x16_bf16 {acc(m)}, {vr(V_A,4)}, {vr(V_A,4)}, 0")
    C = T + 20
    A(f"v_and_b32 v{V_LOFF}, 31, v0")
    A(f"v_lshrrev_b32 v{V_HOFF}, 5, v0")
    A(f"v_lshrrev_b32 v{C}, 3, v{V_LOFF}")
    A(f"v_mul_u32_u24 v{C}, 0x202, v{C}")
    A(f"v_add_u32 v{C}, 0x100, v{C}")
    A(f"v_or_b32 v{C+1}, 0x0c0c0000, v{C}")
    A(f"v_lshlrev_b32 v{C}, 16, v{C}")
    A(f"v_or_b32 v{C}, 0x0c0c, v{C}")
    A(f"v_and_b32 v{C+2}, 1, v0")
    A(f"v_cmp_eq_u32 vcc, 1, v{C+2}")
    A(f"v_bfe_u32 v{C+2}, v0, 1, 2")
    A(f"v_mov_b32 v{C+3}, 0x0c0c0c0c")
    A(f"v_cndmask_b32 v{C}, v{C+1}, v{C}, vcc")
    for r in range(4):
        A(f"v_cmp_eq_u32 {sr(24+2*r,2)}, {r}, v{C+2}")
    A(f"v_lshlrev_b32 v{V_LOFF}, 4, v{V_LOFF}")
    A(f"v_lshlrev_b32 v{V_HOFF}, 6, v{V_HOFF}")
    for r in range(4):
        A(f"v_cndmask_b32 v{V_SEL+r}, v{C+3}, v{C}, {sr(24+2*r,2)}")
    for m in zm:
        A(f"v_mfma_f32_32x32x16_bf16 {acc(m)}, {vr(V_A,4)}, {vr(V_A,4)}, 0")
    if not o.b1_late:
        A("s_waitcnt lgkmcnt(0)")
        A("s_barrier")

    def rec_load(u, ad, soff):
        if o.soa:
            A(f"buffer_load_dword v{rec(u)+2}, v{ad}, s[8:11], {soff} offen")
        else:
            A(f"buffer_load_dwordx3 {vr(rec(u),3)}, v{ad}, s[8:11], {soff} offen")
        A("s_mov_b64 exec, -1")
    AD = lambda u: rec(u) + 5 if o.soa else V_AD + (u & 1)
    def load_rec(u, e, soff):
        m = S_VAL + 2 * u
        A(f"v_mad_u32_u16 v{AD(u)}, v{e}, {RB}, v{V_LB}")
        A(f"v_cmpx_lt_u32_sdwa {sr(m,2)}, v{V_I}, v{e} src0_sel:DWORD src1_sel:WORD_1")
        rec_load(u, AD(u), soff)
    A(f"s_waitcnt vmcnt({12 if o.dma_early else 0})")
    stamp(A, o, 1)
    A(f"s_mov_b32 s{S_T0}, 0")
    for u in range(16):
        load_rec(u, ent(u), f"s{S_T0}")
        if u < 15:
            A(f"s_add_u32 s{S_T0}, s{S_T0}, {CB}")
    A(f"v_lshrrev_b32 v{T}, 16, v{V_EL}")
    A(f"v_cmp_lt_u32 s[24:25], 16, v{T}")
    A(f"v_cmp_lt_u32 s[26:27], 32, v{T}")
    A(f"v_cmp_lt_u32 s[28:29], 48, v{T}")
    A(f"s_mov_b32 s{S_T0}, {CB}")
    A(f"v_mul_lo_u32 v{T+1}, v{V_TID}, s{S_T0}")
    A(f"v_mad_u32_u16 v{T+2}, v{V_EL}, {RB}, v{T+1}")
    A(f"v_mbcnt_lo_u32_b32 v{T+6}, s24, 0")
    A(f"v_mbcnt_hi_u32_b32 v{T+6}, s25, v{T+6}")
    A(f"s_bcnt1_i32_b64 s{S_T0}, s[24:25]")
    A(f"s_bcnt1_i32_b64 s{S_T1}, s[26:27]")
    A(f"s_add_u32 s{S_T1}, s{S_T1}, s{S_T0}")
    A(f"s_mul_i32 s{S_T2}, s{S_W}, 192")
    A(f"v_mbcnt_lo_u32_b32 v{T+7}, s26, 0")
    A(f"v_mbcnt_hi_u32_b32 v{T+7}, s27, v{T+7}")
    A(f"v_add_u32 v{T+2}, {16*RB}, v{T+2}")
    A(f"v_add_u32 v{T+3}, -16, v{T}")
    A(f"v_add_u32 v{T+4}, {16*RB}, v{T+2}")
    A(f"v_add_u32 v{T+5}, -16, v{T+3}")
    A(f"v_add_u32 v{T+7}, s{S_T0}, v{T+7}")
    A(f"v_lshl_add_u32 v{T+6}, v{T+6}, 3, s{S_T2}")
    A(f"v_lshl_add_u32 v{T+7}, v{T+7}, 3, s{S_T2}")
    A(f"v_lshrrev_b32 v{T+8}, 4, v0")
    A(f"v_lshl_add_u32 v{T+8}, v{T+8}, 3, s{S_T2}")
    A(f"s_cmp_gt_u32 s{S_T1}, {OVCAP}")
    A("s_cbranch_scc1 L_ov_fail")
    A("s_cmp_lg_u64 s[28:29], 0")
    A("s_cbranch_scc1 L_ov_fail")
    A("s_mov_b64 exec, s[24:25]")
    A(f"ds_write_b64 v{T+6}, {vr(T+2,2)} offset:{L_OV}")
    A("s_mov_b64 exec, s[26:27]")
    A(f"ds_write_b64 v{T+7}, {vr(T+4,2)} offset:{L_OV}")
    A("s_mov_b64 exec, -1")
    A.label("L_ov_done")
    for k in range(6):
        A(f"ds_read_b64 {vr(T+10+2*k,2)}, v{T+8} offset:{L_OV+32*k}")
    for k in range(6):
        u = 16 + k
        m = S_VAL + 2 * u
        A(f"s_waitcnt lgkmcnt({5-k})")
        A(f"v_mad_u32_u24 v{AD(u)}, v{V_I}, {RB}, v{T+10+2*k}")
        A(f"v_cmpx_lt_u32 {sr(m,2)}, v{V_I}, v{T+11+2*k}")
        rec_load(u, AD(u), "0")
    if o.init_b < 25:
        A(f"v_and_b32 v{T}, 3, v0")
        A(f"v_cmp_eq_u32 vcc, 3, v{T}")
        A(f"v_lshl_add_u32 v{T+1}, v0, 4, s{S_WB}")
        A("s_nop 0")
        A(f"v_cndmask_b32 v{T+4}, 0, -1, vcc")
        for k in range(1, 4):
            A(f"v_mov_b32 v{T+4+k}, v{T+4}")
        for k in range(o.init_b, 25):
            tbl_write(k)
    if o.b1_late:
        A("s_waitcnt lgkmcnt(0)")
        A("s_barrier")
    stamp(A, o, 2)
    npf = o.k2_prefetch
    def phase_a(u, younger, soff):
        r = rec(u)
        A(f"s_mov_b64 exec, {sr(S_VAL+2*u,2)}")
        A(f"s_waitcnt vmcnt({younger})")
        A(f"v_lshrrev_b32 v{r+3}, 27, v{r+2}")
        A(f"v_bfe_u32 v{V_AD+(u&1)}, v{r+2}, 15, {12 if o.nbk == 16 else 11}")
        A(f"v_lshlrev_b32 v{r+4}, v{r+3}, v{V_ONE}")
        if o.soa:
            A(f"v_lshlrev_b32 v{r+5}, 1, v{r+5}")
        A(f"ds_add_rtn_u32 v{r+4}, v{V_AD+(u&1)}, v{r+4} offset:{L_NI}")
        if o.soa:
            A(f"buffer_load_dwordx2 {vr(r,2)}, v{r+5}, s[8:11], {soff} offen")
    pfstate = {"first": 0 if o.rot else o.k1pf * 13 * 250, "init": False}
    def pf_at(slot):
        n = 0
        for sl, per in o.pf:
            if sl != slot:
                continue
            if o.rot:
                assert per <= 64 and pfstate["first"] + per * 128 <= 12500
                A(f"s_and_b32 s3, s{S_BIN}, 31")
                A(f"s_lshl_b32 s3, s3, 2")
                A(f"s_add_u32 s3, s3, s{S_W}")
                A(f"s_mul_i32 s3, s3, {per*128}")
                A(f"s_add_u32 s3, s3, s{S_PFB}")
                if pfstate["first"]:
                    A(f"s_add_u32 s3, s3, {pfstate['first']*128}")
            else:
                assert per <= 64 and (pfstate["first"] + per * 1024) <= XBYTES // 128
                A(f"s_lshl_b32 s3, s{S_BIN}, 2")
                A(f"s_add_u32 s3, s3, s{S_W}")
                A(f"s_mul_i32 s3, s3, {per*128}")
                A(f"s_add_u32 s3, s3, {pfstate['first']*128}")
            if not pfstate["init"]:
                A("s_mov_b64 exec, -1")
                A(f"v_lshlrev_b32 v{V_PF-1 if False else V_PFA}, 7, v0")
                pfstate["init"] = True
            A(f"s_mov_b32 exec_lo, {hex((1 << min(32, per)) - 1)}")
            A(f"s_mov_b32 exec_hi, {hex((1 << max(0, per - 32)) - 1)}")
            A(f"buffer_load_dword v{V_PF}, v{V_PFA}, s[4:7], s3 offen")
            pfstate["first"] += per * (128 if o.rot else 1024)
            n += 1
        return n
    A(f"v_mov_b32 v{V_ONE}, 1")
    A(f"s_mov_b32 s{S_T0}, {COFOFF}")
    A(f"s_mov_b32 s{S_T1}, {COFOFF}")
    npa = 0
    for u in range(NSLOT):
        phase_a(u, (NSLOT - 1 if o.soa else NSLOT - 1 - u) + npa, f"s{S_T0}" if u < 16 else f"s{S_T1}")
        if o.soa and u < 15:
            A(f"s_add_u32 s{S_T0}, s{S_T0}, {CH*8}")
        npa += pf_at(f"a{u}")
    A.label("L_a_done")
    A("s_mov_b64 exec, -1")
    A("s_waitcnt lgkmcnt(0)")
    stamp(A, o, 4)
    A("s_barrier")
    A(f"s_cmp_eq_u32 s{S_W}, 0")
    A("s_cbranch_scc1 L_node")
    A(f"s_cmp_eq_u32 s{S_MODE}, 0")
    A("s_cbranch_scc0 L_node_wait")
    A(f"s_sub_u32 s{S_T2}, s{S_W}, 1")
    ndma = 0 if (o.wglobal or o.dma_late or o.dma_early) else 16
    if o.whyb:
        ndma = 8
        A(f"v_lshlrev_b32 v{T}, 4, v0")
        A(f"s_min_u32 s{S_T0}, s{S_T2}, 1")
        A(f"s_mul_i32 s{S_T0}, s{S_T0}, {3*8192}")
        A(f"s_add_u32 s{S_T1}, s{S_T0}, {WFOFF}")
        A(f"s_add_u32 s{S_T0}, s{S_T0}, {L_WF}")
        A(f"s_cmp_eq_u32 s{S_W}, 3")
        A("s_cbranch_scc1 L_nodma3")
        for k in range(2):
            A(f"s_mov_b32 m0, s{S_T0}")
            A(f"s_add_u32 s{S_T0}, s{S_T0}, 4096")
            for kk in range(4):
                A(f"buffer_load_dwordx4 v{T}, s[8:11], s{S_T1} offen offset:{1024*kk} lds")
            if k < 1:
                A(f"s_add_u32 s{S_T1}, s{S_T1}, 4096")
        A("s_branch L_dma3")
        A.label("L_nodma3")
        A("s_waitcnt vmcnt(0)")
        A.label("L_dma3")
    elif ndma:
        A(f"v_lshlrev_b32 v{T}, 4, v0")
        A(f"s_lshl_b32 s{S_T0}, s{S_T2}, 14")
        A(f"s_add_u32 s{S_T1}, s{S_T0}, {WFOFF}")
        A(f"s_add_u32 s{S_T0}, s{S_T0}, {L_WF}")
        for k in range(4):
            A(f"s_mov_b32 m0, s{S_T0}")
            A(f"s_add_u32 s{S_T0}, s{S_T0}, 4096")
            for kk in range(4):
                A(f"buffer_load_dwordx4 v{T}, s[8:11], s{S_T1} offen offset:{1024*kk} lds")
            if k < 3:
                A(f"s_add_u32 s{S_T1}, s{S_T1}, 4096")
    if npf:
        if o.k2_pfmode == "l2":
            A(f"s_and_b32 s{S_T0}, s{S_BIN}, 31")
            stride = 128
        else:
            A(f"s_mov_b32 s{S_T0}, s{S_BIN}")
            stride = o.k2_pfstride
        A(f"s_mul_i32 s{S_T0}, s{S_T0}, 3")
        A(f"s_add_u32 s{S_T0}, s{S_T0}, s{S_T2}")
        if o.k2_pfmode == "l2":
            A(f"s_mul_i32 s{S_T0}, s{S_T0}, {npf*64*128}")
            A(f"v_mul_u32_u24 v{T+1}, {stride}, v0")
        else:
            per = -(-XBYTES // 768 // 128) * 128
            assert npf * 64 * stride >= per
            A(f"s_mul_i32 s{S_T0}, s{S_T0}, {per}")
            A(f"v_mul_u32_u24 v{T+1}, {stride}, v0")
            A(f"v_add_u32 v{T+1}, s{S_T0}, v{T+1}")
            A(f"s_mov_b32 s{S_T0}, 0")
        for k in range(npf):
            if o.k2_pfmode == "l2":
                A(f"buffer_load_dword v{V_PF}, v{T+1}, s[4:7], s{S_T0} offen")
                if k < npf - 1:
                    A(f"s_add_u32 s{S_T0}, s{S_T0}, {64*128}")
            else:
                if (k + 1) * 64 * stride > per:
                    A(f"s_mov_b32 exec_lo, {hex((1 << min(32, (per - k*64*stride)//stride)) - 1)}")
                    A(f"s_mov_b32 exec_hi, {hex((1 << max(0, (per - k*64*stride)//stride - 32)) - 1)}")
                A(f"buffer_load_dword v{V_PF}, v{T+1}, s[4:7], 0 offen")
                A("s_mov_b64 exec, -1")
                if k < npf - 1:
                    A(f"v_add_u32 v{T+1}, {64*stride}, v{T+1}")
    if o.pfa:
        A(f"s_mul_i32 s{S_T0}, s{S_BIN}, 3")
        A(f"s_add_u32 s{S_T0}, s{S_T0}, s{S_T2}")
        A(f"s_lshl_b32 s{S_T0}, s{S_T0}, 13")
        A(f"v_lshlrev_b32 v{T+1}, 7, v0")
        A(f"buffer_load_dword v{V_PF}, v{T+1}, s[4:7], s{S_T0} offen")
        npf += 1
    if o.soa:
        A(f"s_waitcnt vmcnt({ndma+npf})")
    A("s_branch L_node_done")
    A.label("L_node")
    nw = o.nbk // 4
    X = [T, T + 26]
    SH = T + 52
    A(f"v_lshlrev_b32 v{SH}, {5 if nw == 4 else 4}, v0")
    for k, x in enumerate(X):
        for h in range(nw // 2):
            A(f"ds_read_b128 {vr(x+4*h,4)}, v{SH} offset:{L_NI+k*nw*512+16*h}")
    A(f"v_mov_b32 v{X[0]+20}, v0")
    A(f"v_add_u32 v{X[1]+20}, 64, v0")
    A(f"s_mov_b32 s{S_T0}, 0x01010101")
    A(f"v_mov_b32 v{SH+1}, 1")
    A(f"v_mov_b32 v{SH+5}, 0x3dc")
    for k, x in enumerate(X):
        A(f"v_add_u32 v{x+22}, s{S_NST}, v{x+20}")
        A(f"v_cmp_gt_u32 {sr(24+2*k,2)}, s{S_NN}, v{x+20}")
        A(f"v_lshlrev_b32 v{x+22}, 9, v{x+22}")
        A(f"v_mov_b32 v{x+23}, {BIG}")
        A(f"v_cndmask_b32 v{x+23}, v{x+23}, v{x+22}, {sr(24+2*k,2)}")
    for k, x in enumerate(X):
        A(f"s_waitcnt lgkmcnt({(1-k)*(nw//2)})")
        if nw == 4:
            A(f"v_add3_u32 v{x+21}, v{x}, v{x+2}, v{x+4}")
            A(f"v_add_u32 v{x+21}, v{x+21}, v{x+6}")
        else:
            A(f"v_add_u32 v{x+21}, v{x}, v{x+2}")
        A(f"v_sad_u8 v{x+24}, v{x+21}, 0, 1")
        A(f"v_lshrrev_b32 v{x+24}, 1, v{x+24}")
        A(f"v_min_u32 v{x+24}, {GCAP}, v{x+24}")
        A(f"v_sub_u32 v{x+16}, 62, v{x+24}")
        A(f"v_cndmask_b32 v{x+16}, 63, v{x+16}, {sr(24+2*k,2)}")
        A(f"v_lshlrev_b32 v{x+16}, 2, v{x+16}")
        A(f"ds_add_rtn_u32 v{x+17}, v{x+16}, v{SH+1} offset:{L_CNT}")
    A(f"v_lshlrev_b32 v{SH+2}, 2, v0")
    A(f"ds_read_b32 v{SH+3}, v{SH+2} offset:{L_CNT}")
    for k, x in enumerate(X):
        A(f"v_lshlrev_b32 v{x+8}, 8, v{x+21}")
        A(f"v_mul_lo_u32 v{x+8}, v{x+8}, s{S_T0}")
        for h in range(1, nw):
            A(f"v_add_u32 v{x+8+2*h}, v{x+6+2*h}, v{x+2*h-2}")
    A(f"s_cmp_eq_u32 s{S_MODE}, 0")
    A("s_cbranch_scc1 L_sort")
    A("s_waitcnt lgkmcnt(0)")
    A(f"v_mov_b32 v{X[0]+17}, v{X[0]+20}")
    A(f"v_mov_b32 v{X[1]+17}, v{X[1]+20}")
    A("s_branch L_sorted")
    A.label("L_sort")
    A("s_waitcnt lgkmcnt(0)")
    A(f"v_mov_b32 v{SH+4}, v{SH+3}")
    A("s_nop 1")
    dpp_scan(A, SH + 4)
    A(f"v_sub_u32 v{SH+4}, v{SH+4}, v{SH+3}")
    A(f"ds_bpermute_b32 v{X[0]+21}, v{X[0]+16}, v{SH+4}")
    A(f"ds_bpermute_b32 v{X[1]+21}, v{X[1]+16}, v{SH+4}")
    A("s_waitcnt lgkmcnt(1)")
    A(f"v_add_u32 v{X[0]+17}, v{X[0]+17}, v{X[0]+21}")
    A("s_waitcnt lgkmcnt(0)")
    A(f"v_add_u32 v{X[1]+17}, v{X[1]+17}, v{X[1]+21}")
    A.label("L_sorted")
    for k, x in enumerate(X):
        A(f"v_cmp_gt_u32 vcc, 100, v{x+17}")
        A(f"v_mul_u32_u24 v{x+18}, 205, v{x+17}")
        A(f"v_lshrrev_b32 v{x+18}, 10, v{x+18}")
        A(f"v_mul_u32_u24 v{x+21}, 5, v{x+18}")
        A(f"v_sub_u32 v{x+17}, v{x+17}, v{x+21}")
        if o.xorasg:
            A(f"v_lshrrev_b32 v{x+22}, 1, v{x+18}")
            A(f"v_and_b32 v{x+22}, 14, v{x+22}")
            A(f"v_lshrrev_b32 v{x+22}, v{x+22}, v{SH+5}")
            A(f"v_xor_b32 v{x+21}, v{x+22}, v{x+18}")
            A(f"v_and_b32 v{x+21}, 3, v{x+21}")
        else:
            A(f"v_bfe_u32 v{x+21}, v{x+18}, 2, 1")
            A(f"v_mul_u32_u24 v{x+21}, 3, v{x+21}")
            A(f"v_and_b32 v{x+22}, 3, v{x+18}")
            A(f"v_xor_b32 v{x+21}, v{x+21}, v{x+22}")
        A(f"v_lshrrev_b32 v{x+18}, 2, v{x+18}")
        A(f"v_lshl_add_u32 v{x+19}, v{x+21}, 3, v{x+18}")
        A(f"v_lshlrev_b32 v{x+19}, 2, v{x+19}")
        A(f"v_mad_u32_u24 v{x+22}, v{x+18}, 5, v{x+17}")
        A(f"v_lshl_add_u32 v{x+22}, v{x+21}, 5, v{x+22}")
        A(f"v_lshlrev_b32 v{x+22}, 2, v{x+22}")
        A(f"s_mov_b64 exec, vcc")
        A(f"ds_max_u32 v{x+19}, v{x+24} offset:{L_RG}")
        A(f"ds_write_b32 v{x+22}, v{x+23} offset:{L_NODE}")
        A("s_mov_b64 exec, -1")
        A(f"v_mul_u32_u24 v{x+21}, {WREG}, v{x+21}")
        A(f"v_mul_u32_u24 v{x+18}, {GSTR}, v{x+18}")
        A(f"v_lshl_add_u32 v{x+9}, v{x+17}, 3, v{x+21}")
        A(f"v_mul_u32_u24 v{x+17}, 6, v{x+17}")
        A(f"v_add_u32 v{x+9}, v{x+9}, v{x+18}")
        A(f"v_add_u32 v{x+9}, {L_TBL}, v{x+9}")
        A(f"v_lshl_or_b32 v{x+9}, v{x+17}, 24, v{x+9}")
        for h in range(1, nw):
            A(f"v_mov_b32 v{x+9+2*h}, v{x+9}")
        for h in range(nw // 2):
            A(f"ds_write_b128 v{SH}, {vr(x+8+4*h,4)} offset:{L_NI+k*nw*512+16*h}")
    A.label("L_node_wait")
    A("s_waitcnt vmcnt(0) lgkmcnt(0)")
    A.label("L_node_done")
    stamp(A, o, 5)
    A("s_barrier")
    if o.dma_late and not o.wglobal:
        A(f"s_cmp_eq_u32 s{S_MODE}, 0")
        A("s_cbranch_scc0 L_nodma")
        A(f"v_lshlrev_b32 v{T+60}, 4, v0")
        A(f"s_mul_i32 s{S_T0}, s{S_W}, 12288")
        A(f"s_add_u32 s{S_T1}, s{S_T0}, {WFOFF}")
        A(f"s_add_u32 s{S_T0}, s{S_T0}, {L_WF}")
        for k in range(3):
            A(f"s_mov_b32 m0, s{S_T0}")
            A(f"s_add_u32 s{S_T0}, s{S_T0}, 4096")
            for kk in range(4):
                A(f"buffer_load_dwordx4 v{T+60}, s[8:11], s{S_T1} offen offset:{1024*kk} lds")
            if k < 2:
                A(f"s_add_u32 s{S_T1}, s{S_T1}, 4096")
        A.label("L_nodma")
    A(f"s_lshl_b32 s{S_T2}, s{S_W}, 5")
    A(f"v_mov_b32 v{T+40}, s{S_T2}")
    A(f"ds_read_b128 {vr(T+32,4)}, v{T+40} offset:{L_RG}")
    A(f"ds_read_b32 v{T+36}, v{T+40} offset:{L_RG+16}")
    DEP = 4
    NI = lambda u: T + 2 * (u % (DEP + 1))
    TX = T + 20
    lds = []
    rpos = {}
    def issue(ins):
        A(ins)
        if ins.startswith("ds_"):
            lds.append(ins)
    def s_read(u):
        A(f"s_mov_b64 exec, {sr(S_VAL+2*u,2)}")
        A(f"v_bfe_u32 v{V_AD+(u&1)}, v{rec(u)+2}, 15, {12 if o.nbk == 16 else 11}")
        issue(f"ds_read_b64 {vr(NI(u),2)}, v{V_AD+(u&1)} offset:{L_NI}")
        rpos[u] = len(lds)
    def s_proc(u):
        r = rec(u); n = NI(u)
        a, b = TX + 2 * (u & 1), TX + 4 + 2 * (u & 1)
        A(f"s_mov_b64 exec, {sr(S_VAL+2*u,2)}")
        cnt = min(15, len(lds) - rpos[u])
        A(f"s_waitcnt lgkmcnt({cnt})")
        A(f"v_add_u32 v{a}, v{n}, v{r+4}")
        A(f"v_bfe_u32 v{a}, v{a}, v{r+3}, 8")
        A(f"v_lshl_add_u32 v{b}, v{a}, 6, v{n+1}")
        A(f"v_max_u32 v{V_MAX}, v{V_MAX}, v{a}")
        A(f"v_and_b32 v{b}, 0xffffff, v{b}")
        A(f"v_sub_u32_sdwa v{b+1}, v{b}, v{n+1} dst_sel:DWORD dst_unused:UNUSED_PAD src0_sel:DWORD src1_sel:BYTE_3")
        issue(f"ds_write_b64 v{b}, {vr(r,2)}")
        issue(f"ds_write_b16 v{b+1}, v{r+2} offset:48")
    R0 = T + 32
    M = T + 40
    def mask_atoms():
        at = []
        at.append([f"v_max3_u32 v{M}, v{R0}, v{R0+1}, v{R0+2}",
                   f"v_max3_u32 v{R0}, v{M}, v{R0+3}, v{R0+4}",
                   f"v_cvt_f32_u32 v{M+1}, v{R0}",
                   f"v_readfirstlane_b32 s{S_SEND}, v{R0}",
                   f"v_rcp_f32 v{M+1}, v{M+1}",
                   f"s_min_u32 s{S_SEND}, s{S_SEND}, {GCAP}"])
        at.append([f"v_mul_f32 v{M+1}, 0x47800000, v{M+1}",
                   f"v_cvt_u32_f32 v{M+1}, v{M+1}",
                   f"v_add_u32 v{M+1}, 2, v{M+1}",
                   f"s_bfm_b64 {sr(S_T0,2)}, s{S_SEND}, 0"])
        at.append([f"v_mul_u32_u24 v{M+2+g}, v{R0+g}, v{M+1}" for g in range(5)])
        at.append([f"v_mul_u32_u24 v{M+8+g}, v0, v{M+2+g}" for g in range(5)])
        at.append([f"v_add_u32 v{M+2+g}, v{M+8+g}, v{M+2+g}" for g in range(5)])
        at.append([f"v_lshrrev_b32 v{M+8+g}, 16, v{M+8+g}" for g in range(5)])
        at.append([f"v_lshrrev_b32 v{M+2+g}, 16, v{M+2+g}" for g in range(5)])
        at.append([f"v_cmp_gt_u32 {sr(S_MASK+2*g,2)}, v{M+2+g}, v{M+8+g}" for g in range(5)] +
                  [f"s_mul_i32 s{S_T3}, s{S_W}, {STRB}", f"s_mov_b32 s{S_T2}, s{S_WB}"])
        at.append([f"s_and_b64 {sr(S_MASK+2*g,2)}, {sr(S_MASK+2*g,2)}, {sr(S_T0,2)}" for g in range(5)] +
                  [f"v_mov_b32 v{M+1}, 0", f"v_mov_b32 v{V_SP}, s{S_T3}"])
        for gs in ((0, 1, 2), (3, 4)):
            x = []
            for g in gs:
                x += [f"v_mbcnt_lo_u32_b32 v{M+1}, s{S_MASK+2*g}, v{M+1}", f"v_mbcnt_hi_u32_b32 v{M+1}, s{S_MASK+2*g+1}, v{M+1}"]
            at.append(x)
        at[-1].append(f"v_lshl_add_u32 v{M+1}, v{M+1}, 2, s{S_T3}")
        for g in range(5):
            x = [f"v_lshl_add_u32 v{M+8+g}, v{M+8+g}, 7, s{S_T2}",
                 f"s_mov_b64 exec, {sr(S_MASK+2*g,2)}",
                 f"ds_write_b32 v{M+1}, v{M+8+g} offset:{L_STR}",
                 f"v_add_u32 v{M+1}, 4, v{M+1}"]
            if g < 4:
                x.append(f"s_add_u32 s{S_T2}, s{S_T2}, {GSTR}")
            at.append(x)
        return at
    def atom(x):
        A("s_mov_b64 exec, -1")
        for ins in x:
            issue(ins)
    npf += pf_at(-1)
    for u in range(DEP):
        s_read(u)
    atoms = mask_atoms() if o.maskmix else []
    zat = {1: 24}
    for i in range(8):
        zat[min(NSLOT - 1, (15 + 16 * i) // 6 + 1)] = 16 + i
    for u in range(NSLOT):
        if u + DEP < NSLOT:
            s_read(u + DEP)
        s_proc(u)
        if u == 0:
            A(f"s_cmp_eq_u32 s{S_MODE}, 0")
            A("s_cbranch_scc0 L_s_slow")
        if u >= 1 and atoms:
            atom(atoms.pop(0))
        npf += pf_at(u)
        if o.zmix and u in zat:
            A("s_mov_b64 exec, -1")
            A(f"v_mfma_f32_32x32x16_bf16 {acc(zat[u])}, {vr(V_A,4)}, {vr(V_A,4)}, 0")
    while atoms:
        atom(atoms.pop(0))
    if not o.maskmix:
        A.label("L_s_slow")
        stamp(A, o, 6)
        A("s_waitcnt lgkmcnt(0)")
        for x in mask_atoms():
            atom(x)
    A.label("L_s_done")
    A("s_mov_b64 exec, -1")
    if o.maskmix:
        stamp(A, o, 6)
    A(f"v_cmp_le_u32 vcc, {2*GCAP}, v{V_MAX}")
    A(f"v_mov_b32 v{T+20}, 1")
    A(f"v_mov_b32 v{T+21}, 0")
    A("s_cbranch_vccz L_deg_ok")
    A(f"ds_write_b32 v{T+21}, v{T+20} offset:{L_FLAG}")
    A.label("L_deg_ok")
    nb4 = npf
    assert nph in (2, 3)
    A(f"ds_read_b128 v[48:51], v{V_SP} offset:{L_STR}")
    A(f"ds_read_b32 v{V_Q}, v{V_SP} offset:{L_STR+4*(nph+1)}")
    A(f"s_mov_b32 s{S_S}, 0")
    A(f"s_waitcnt vmcnt({nb4}) lgkmcnt(0)")
    A(f"v_add_u32 v47, v48, v{V_HOFF}")
    for t in range(1, nph):
        A(f"v_add_u32 v{V_P+t}, v{48+t}, v{V_HOFF}")
    A(f"v_add_u32 v{V_P}, v{48+nph}, v{V_HOFF}")
    A("v_mov_b32 v49, 0")
    if not o.zmix:
        A(f"s_cmp_eq_u32 s{S_MODE}, 0")
        A("s_cbranch_scc0 L_nozero")
        for m in range(16, 25):
            A(f"v_mfma_f32_32x32x16_bf16 {acc(m)}, {vr(V_A,4)}, {vr(V_A,4)}, 0")
        A.label("L_nozero")
    stamp(A, o, 7)
    A("s_barrier")
    first = [vS + 4, vS + 8, 44][:nph] if nph == 3 else [vS + 4, 44]
    ptrs = [47] + [V_P + t for t in range(1, nph)]
    A(f"ds_read_b32 v48, v49 offset:{L_FLAG}")
    for t in range(nph):
        A(f"ds_read_b96 {vr(first[t],3)}, v{ptrs[t]} offset:48")
    A(f"ds_read_b96 {vr(vS,3)}, v{V_P} offset:48")
    A(f"ds_read_b128 {vr(V_C,4)}, v47")
    A(f"ds_read_b128 {vr(V_C+4,4)}, v47 offset:16")
    A(f"ds_read_b64 {vr(V_C+8,2)}, v47 offset:32")
    A(f"s_waitcnt lgkmcnt({nph+4})")
    A(f"v_readfirstlane_b32 s{S_T0}, v48")
    A(f"s_andn2_b32 s{S_T0}, s{S_T0}, s{S_MODE}")
    A(f"s_cmp_lg_u32 s{S_T0}, 0")
    A("s_cbranch_scc1 L_to_slow")
    A(f"s_cmp_eq_u32 s{S_SEND}, 0")
    A("s_cbranch_scc1 L_nomain" if o.epi2 else "s_cbranch_scc1 L_exit")
    def mad(dst, sreg, j):
        op = " op_sel:[1,0,0,0]" if j & 1 else ""
        A(f"v_mad_u32_u16 v{dst}, v{sreg + (j >> 1)}, s{S_512}, v{V_LOFF}{op}")
    for t in range(nph):
        A(f"s_waitcnt lgkmcnt({nph+3-t})")
        for j in range(5):
            mad(V_AD + (j & 1), first[t], j)
            A(f"buffer_load_dwordx4 {vr(ring+(5*t+j)*4,4)}, v{V_AD+(j&1)}, s[4:7], 0 offen")
    A("s_waitcnt lgkmcnt(0)")
    if o.epi2:
        epi_setup(A)
    stamp(A, o, 8)
    if o.pad_main is not None:
        A(f".p2align {o.pad_main[0]}, , 60")
        for _ in range(o.pad_main[1]):
            A("s_nop 0")
    NB = 5 * nph
    def blk(g, p):
        for b in range(NB):
            if b % 5 == g and b % nph == p:
                return b
    K = NB - 1
    stubs = []
    for b in range(NB):
        g, p = b % 5, b % nph
        pn = (p + 1) % nph
        A.label(f"L_blk{b}")
        A(f"s_waitcnt lgkmcnt(3)")
        A(f"v_add_u32 v{V_TP}, v{V_Q}, v{V_HOFF}")
        A(f"ds_read_b96 {vr(vS+4*pn,3)}, v{V_TP} offset:48")
        A(f"ds_read_b32 v{V_Q}, v{V_SP} offset:{L_STR+4*(p+2+nph)}")
        for j in range(5):
            m = 5 * g + j
            B = ring + (5 * p + j) * 4
            if j in (0, 2, 4):
                A(f"s_waitcnt vmcnt({K}) lgkmcnt(4)")
            else:
                A(f"s_waitcnt vmcnt({K})")
            c = V_C + 2 * j
            for r in range(4):
                A(f"v_perm_b32 v{V_A+r}, v{c+1}, v{c}, v{V_SEL+r}")
            mad(V_AD + (j & 1), vS + 4 * p, j)
            if j == 0:
                if g < 4:
                    A(f"s_bitcmp1_b64 {sr(S_MASK+2*(g+1),2)}, s{S_S}")
                else:
                    A(f"s_add_u32 s{S_S}, s{S_S}, 1")
            elif j == 1:
                A(f"ds_read_b128 {vr(V_C,4)}, v{V_P+pn}")
            elif j == 2:
                if g == 4:
                    A(f"s_cmp_lt_u32 s{S_S}, s{S_SEND}")
                elif p == nph - 1:
                    A(f"v_add_u32 v{V_SP}, {4*nph}, v{V_SP}")
                else:
                    A("s_nop 0")
            elif j == 3:
                A(f"ds_read_b128 {vr(V_C+4,4)}, v{V_P+pn} offset:16")
            else:
                A(f"ds_read_b64 {vr(V_C+8,2)}, v{V_P+pn} offset:32")
            A(f"v_mfma_f32_32x32x16_bf16 {acc(m)}, {vr(V_A,4)}, {vr(B,4)}, {acc(m)}")
            A(f"buffer_load_dwordx4 {vr(B,4)}, v{V_AD+(j&1)}, s[4:7], 0 offen")
        A(f"v_mov_b32 v{V_P+pn}, v{V_TP}")
        if g == 4 and p == nph - 1:
            A(f"v_add_u32 v{V_SP}, {4*nph}, v{V_SP}")
        if g < 4:
            A(f"s_cbranch_scc0 L_stub{b}")
            stubs.append(b)
        else:
            A("s_cbranch_scc0 L_exit")
        if b == NB - 1:
            A("s_branch L_blk0")
    for b in stubs:
        g, p = b % 5, b % nph
        pn = (p + 1) % nph
        A.label(f"L_stub{b}")
        for g2 in range(g + 2, 5):
            A(f"s_bitcmp1_b64 {sr(S_MASK+2*g2,2)}, s{S_S}")
            A(f"s_cbranch_scc1 L_blk{blk(g2,pn)}")
        A(f"s_add_u32 s{S_S}, s{S_S}, 1")
        A(f"s_cmp_lt_u32 s{S_S}, s{S_SEND}")
        A(f"s_cbranch_scc1 L_blk{blk(0,pn)}")
        if b != stubs[-1]:
            A("s_branch L_exit")
    A.label("L_exit")
    A("s_waitcnt lgkmcnt(0)" if o.epi2 else "s_waitcnt vmcnt(0) lgkmcnt(0)")
    stamp(A, o, 9)
    A(f"s_cmp_eq_u32 s{S_MODE}, 0")
    A("s_cbranch_scc0 L_next_batch")
    A.label("L_epi")
    (epilogue2 if o.epi2 else epilogue)(A, o)
    if o.padto:
        A(f"s_mov_b32 s10, {WS_USED+64}")
        A(f"v_mov_b32 v1, {WS_USED}")
        A("buffer_load_dword v2, v1, s[8:11], 0 offen")
        A("s_waitcnt vmcnt(0)")
        A("v_readfirstlane_b32 s24, v2")
        A("s_mov_b32 s25, 0")
        A.label("L_pad")
        A("s_memrealtime s[26:27]")
        A("s_waitcnt lgkmcnt(0)")
        A("s_sub_u32 s26, s26, s24")
        A(f"s_cmp_ge_u32 s26, {o.padto}")
        A("s_cbranch_scc1 L_pad_done")
        A("s_add_u32 s25, s25, 1")
        A("s_cmp_lt_u32 s25, 4000")
        A("s_cbranch_scc1 L_pad")
        A.label("L_pad_done")
    if o.padrel:
        A("s_mov_b32 s25, 0")
        A.label("L_padr")
        A("s_memrealtime s[26:27]")
        A("s_waitcnt lgkmcnt(0)")
        A("s_sub_u32 s26, s26, s98")
        A(f"s_cmp_ge_u32 s26, {o.padrel[1]}")
        A("s_cbranch_scc1 L_padr_done")
        A("s_add_u32 s25, s25, 1")
        A("s_cmp_lt_u32 s25, 4000")
        A("s_cbranch_scc1 L_padr")
        A.label("L_padr_done")
    if o.stamps:
        A("s_waitcnt vmcnt(0)")
        stamp(A, o, 13)
        A(f"s_lshl_b32 s{S_T0}, s2, 2")
        A(f"s_add_u32 s{S_T0}, s{S_T0}, s{S_W}")
        stamp_out(A, o, 14, 86, 8, 9, 24, S_T0, 1 << 19)
    A("s_endpgm")

    A.label("L_ov_fail")
    A(f"v_mov_b32 v{T}, 1")
    A(f"v_mov_b32 v{T+1}, 0")
    A(f"ds_write_b32 v{T+1}, v{T} offset:{L_FLAG}")
    A("s_branch L_ov_done")

    if o.maskmix:
        A.label("L_s_slow")
        A("s_waitcnt lgkmcnt(0)")
        for x in mask_atoms():
            atom(x)
        A("s_branch L_s_done")

    A.label("L_to_slow")
    A("s_waitcnt lgkmcnt(0)")
    A(f"v_lshrrev_b32 v{T}, 16, v{V_EL}")
    A(f"v_mov_b32 v{T+1}, 0")
    A(f"ds_max_u32 v{T+1}, v{T} offset:{L_FLAG+4}")
    A("s_waitcnt lgkmcnt(0)")
    A("s_barrier")
    A(f"ds_read_b32 v{T}, v{T+1} offset:{L_FLAG+4}")
    A("s_waitcnt lgkmcnt(0)")
    A(f"v_readfirstlane_b32 s{S_NB}, v{T}")
    A("s_barrier")
    A(f"s_min_u32 s{S_NB}, s{S_NB}, {CH}")
    A(f"s_add_u32 s{S_NB}, s{S_NB}, 15")
    A(f"s_lshr_b32 s{S_NB}, s{S_NB}, 4")
    A(f"s_lshl_b32 s{S_NB}, s{S_NB}, 6")
    A(f"s_mov_b32 s{S_MODE}, 1")
    A(f"s_mov_b32 s{S_B}, 0")
    A("s_branch L_batch")

    if o.epi2:
        A.label("L_nomain")
        A("s_waitcnt vmcnt(0) lgkmcnt(0)")
        epi_setup(A)
        A("s_branch L_exit")

    A.label("L_next_batch")
    A("s_waitcnt vmcnt(0)")
    A(f"s_add_u32 s{S_B}, s{S_B}, 1")
    A(f"s_cmp_lt_u32 s{S_B}, s{S_NB}")
    A("s_cbranch_scc0 L_epi")

    A.label("L_batch")
    init_small()
    for k in range(25):
        tbl_write(k)
    A(f"v_mov_b32 v{V_ONE}, 1")
    A(f"s_and_b32 s{S_T0}, s{S_B}, 15")
    A(f"v_lshrrev_b32 v{T+20}, 4, v{V_TID}")
    A(f"v_lshlrev_b32 v{T+20}, 6, v{T+20}")
    A(f"s_lshl_b32 s{S_T1}, s{S_T0}, 2")
    A(f"v_add_u32 v{T+20}, s{S_T1}, v{T+20}")
    A(f"buffer_load_dword v{V_E0}, v{T+20}, s[8:11], s{S_TAB} offen")
    A(f"s_mul_i32 s{S_T0}, s{S_T0}, {CB}")
    A(f"s_lshr_b32 s{S_T1}, s{S_B}, 6")
    A(f"s_lshl_b32 s{S_T1}, s{S_T1}, 4")
    A(f"s_bfe_u32 s{S_T2}, s{S_B}, 0x20004")
    A(f"s_cmp_eq_u32 s{S_T2}, s{S_W}")
    A(f"s_cselect_b32 s{S_T3}, -1, 0")
    A("s_waitcnt vmcnt(0)")
    A(f"v_lshrrev_b32 v{T+21}, 16, v{V_E0}")
    A(f"v_and_b32 v{V_E0}, 0xffff, v{V_E0}")
    A(f"v_add_u32 v{V_E0}, s{S_T1}, v{V_E0}")
    A(f"v_max_u32 v{T+21}, s{S_T1}, v{T+21}")
    A(f"v_subrev_u32 v{T+21}, s{S_T1}, v{T+21}")
    A(f"v_and_b32 v{T+21}, s{S_T3}, v{T+21}")
    A(f"v_lshl_or_b32 v{V_E0}, v{T+21}, 16, v{V_E0}")
    load_rec(0, V_E0, f"s{S_T0}")
    for u in range(1, 5):
        A(f"s_mov_b64 {sr(S_VAL+2*u,2)}, 0")
    A("s_waitcnt lgkmcnt(0)")
    A("s_barrier")
    A(f"s_lshl_b32 s{S_T0}, s{S_T0}, 1")
    A(f"s_add_u32 s{S_T0}, s{S_T0}, {COFOFF}")
    phase_a(0, 0, f"s{S_T0}")
    A("s_branch L_a_done")
    A.label("L_k2_end")
    A("s_endpgm")
    return A, 512, 102

def epilogue(A, o):
    V_TW, V_TR, V_WR, V_N2 = 1, 2, 3, 4
    PK = lambda m, q: 112 + 8 * (m - 16) + 2 * q
    OUTB = [32, 48, 64, 80, 96, 184, 200, 216]
    OUT = lambda oo, t: OUTB[2 * oo + t]
    TF = [8, 12, 16]
    TMP = 232
    NOD = 240
    A(f"v_and_b32 v5, 31, v0")
    A(f"v_lshrrev_b32 v6, 5, v0")
    A(f"v_lshlrev_b32 v{V_TW}, 3, v5")
    A(f"v_lshl_add_u32 v{V_TW}, v6, 8, v{V_TW}")
    A(f"v_add_u32 v{V_TW}, s{S_WB}, v{V_TW}")
    A(f"v_min_u32 v{V_TR}, 24, v5")
    A(f"v_mul_u32_u24 v{V_TR}, 1040, v{V_TR}")
    A(f"v_lshl_add_u32 v{V_TR}, v6, 4, v{V_TR}")
    A(f"v_add_u32 v{V_TR}, s{S_WB}, v{V_TR}")
    A(f"v_lshlrev_b32 v{V_WR}, 4, v0")
    A(f"v_lshlrev_b32 v{V_N2}, 2, v5")
    A(f"s_lshl_b32 s{S_T0}, s{S_W}, 7")
    A(f"v_lshl_add_u32 v7, v6, 4, s{S_T0}")
    for a in range(3):
        A(f"ds_read_b128 {vr(8+4*a,4)}, v7 offset:{L_NODE+32*a}")
    A(f"ds_read_b32 v20, v7 offset:{L_NODE+96}")
    A("s_nop 1")
    for m in range(16, 25):
        s = 112 + 16 * (m - 16)
        for k in range(8):
            A(f"v_cvt_pk_bf16_f32 v{PK(m,0)+k}, v{s+2*k}, v{s+2*k+1}")
    A("s_waitcnt lgkmcnt(0)")
    for i in range(13):
        A(f"v_add_u32 v{NOD+i}, v{8+i}, v{V_N2}")

    def conv_write(q, lst):
        out = []
        k = 0
        for m in range(25):
            off = m * 1040 + (q & 1) * 512
            if m < 16:
                t = TMP + 4 * (k & 1); k += 1
                for i in range(4):
                    out.append(f"v_accvgpr_read_b32 v{t+i}, a{16*m+4*q+i}")
                out.append(f"v_cvt_pk_bf16_f32 v{t}, v{t}, v{t+1}")
                out.append(f"v_cvt_pk_bf16_f32 v{t+1}, v{t+2}, v{t+3}")
                out.append(f"ds_write_b64 v{V_TW}, {vr(t,2)} offset:{off}")
            else:
                out.append(f"ds_write_b64 v{V_TW}, {vr(PK(m,q),2)} offset:{off}")
        return out

    plan = {0: [(0, 0, 0), (1, 3, 1), (2, 3, 2), (3, 3, 3)],
            1: [(0, 2, 1), (1, 1, 0), (2, 4, 3), (3, 5, 2)],
            2: [(0, 2, 2), (1, 5, 3), (2, 1, 0), (3, 4, 1)],
            3: [(3, 1, 0), (2, 5, 1), (1, 4, 2), (0, 2, 3)]}
    hole = lambda h: 16 * (h & 15) + 4 * (h >> 4)
    if o.wglobal:
        wbase = {0: 0, 3: 8, 2: 0, 1: 16, 4: 24, 5: 8}
    else:
        wbase = {0: 0, 3: 8, 2: 16, 1: 24, 4: 0, 5: 8}
    steps = []
    for q in range(4):
        steps += [(q, c, b, oo, s) for (c, b, oo) in plan[q] for s in range(4)]
    loaded = set()
    lds = []
    vm = []
    need = {}
    wpos = {}
    def issue(ins):
        A(ins)
        if ins.startswith("ds_"):
            lds.append(ins)
        if ins.startswith("buffer_"):
            vm.append(ins)
    def wload(b, f):
        sreg = 24 + 2 * b + (f >> 2)
        issue(f"buffer_load_dwordx4 {ar(hole(wbase[b]+f),4)}, v{V_WR}, s[8:11], s{sreg} offen offset:{(f & 3)*1024}")
        wpos[(b, f)] = len(vm)
    def reads(k):
        q, c, b, oo, s = steps[k]
        toff = (q & 1) * 512 + (s >> 1) * 256 + c * 64 + (s & 1) * 32
        issue(f"ds_read_b128 {vr(TF[k % 3],4)}, v{V_TR} offset:{toff}")
        if (b, s) not in loaded and not o.wglobal:
            loaded.add((b, s))
            for t in range(2):
                issue(f"ds_read_b128 {ar(hole(wbase[b]+2*s+t),4)}, v{V_WR} offset:{L_WF + b*8192 + (2*s+t)*1024}")
        need[k] = len(lds)
    if o.wglobal:
        for b in range(6):
            for h in range(2):
                A(f"s_mov_b32 s{24+2*b+h}, {WFOFF + b*8192 + h*4096}")
    first = conv_write(0, None)
    nconv = 0
    for ins in first:
        issue(ins)
        if o.wglobal and ins.startswith("v_accvgpr_read") and ins.split("a")[-1].isdigit() and int(ins.split(", a")[1]) % 16 == 3:
            wload(0 if nconv < 8 else 3, nconv & 7)
            nconv += 1
    stamp(A, o, 10)
    G = lambda t, i: 112 + 16 * t + i
    post = gate_and_store(o, OUT, G, NOD, TMP)
    if o.pk:
        A("s_mov_b32 s40, 0xbfb8aa3b")
        A("s_mov_b32 s41, 0xbfb8aa3b")
        A("s_mov_b32 s42, 1.0")
        A("s_mov_b32 s43, 1.0")
    later = {}
    if o.wglobal:
        for f in range(8):
            later.setdefault(5 + f // 2, []).append((2, f))
            later.setdefault(9 + f // 2, []).append((1, f))
            later.setdefault(14 + f // 2, []).append((4, f))
            later.setdefault(18 + f // 2, []).append((5, f))
    started = set()
    waited = 0
    reads(0); reads(1)
    for k in range(64):
        q, c, b, oo, s = steps[k]
        kk = k % 16
        if kk == 0:
            fill = conv_write(q + 1, None) if q < 3 else []
        n = len(fill)
        chunk = fill[min(kk, 14) * n // 14:min(kk + 1, 14) * n // 14]
        if k + 2 < 64:
            reads(k + 2)
        cnt = len(lds) - need[k]
        assert cnt <= 15
        w = f"s_waitcnt lgkmcnt({cnt})"
        if o.wglobal and wpos[(b, 2 * s + 1)] > waited:
            waited = wpos[(b, 2 * s + 1)]
            w = f"s_waitcnt vmcnt({len(vm) - waited}) lgkmcnt({cnt})"
        A(w)
        for t in range(2):
            d = vr(OUT(oo, t), 16)
            cc = d if (oo, t) in started else "0"
            started.add((oo, t))
            if "m" not in o.diag or cc == "0":
                A(f"v_mfma_f32_32x32x16_bf16 {d}, {vr(TF[k % 3],4)}, {ar(hole(wbase[b]+2*s+t),4)}, {cc}")
            for ins in (chunk[:len(chunk)//2] if t == 0 else chunk[len(chunk)//2:]):
                if "w" in o.diag and ins.startswith("ds_"): continue
                if "v" in o.diag and ins.startswith("v_"): continue
                issue(ins)
            if k in later:
                wload(*later[k][t])
        if q == 3 and kk >= 6:
            pos = kk - 6
            j, part = pos // 4, pos % 4
            if j < 3:
                p = post[j]
                nparts = 4 if j < 2 else 2
                for ins in p[part * len(p) // nparts:(part + 1) * len(p) // nparts]:
                    A(ins)
        if k == 47:
            stamp(A, o, 11)
    stamp(A, o, 12)
    A("s_nop 11")
    for ins in post[3]:
        A(ins)

E_TW, E_TR, E_WR, E_N2, E_ND = 44, 45, 46, 47, 48
def epi_setup(A):
    A(f"v_and_b32 v49, 31, v0")
    A(f"v_lshrrev_b32 v50, 5, v0")
    A(f"v_lshlrev_b32 v{E_TW}, 3, v49")
    A(f"v_lshl_add_u32 v{E_TW}, v50, 8, v{E_TW}")
    A(f"v_add_u32 v{E_TW}, s{S_WB}, v{E_TW}")
    A(f"v_min_u32 v{E_TR}, 24, v49")
    A(f"v_mul_u32_u24 v{E_TR}, 1040, v{E_TR}")
    A(f"v_lshl_add_u32 v{E_TR}, v50, 4, v{E_TR}")
    A(f"v_add_u32 v{E_TR}, s{S_WB}, v{E_TR}")
    A(f"v_lshlrev_b32 v{E_WR}, 4, v0")
    A(f"v_lshlrev_b32 v{E_N2}, 2, v49")
    A(f"s_lshl_b32 s{S_T0}, s{S_W}, 7")
    A(f"v_lshl_add_u32 v{E_ND}, v50, 4, s{S_T0}")

def epilogue2(A, o):
    V_TW, V_TR, V_WR, V_N2, V_ND = 1, 2, 3, 4, 5
    PK = lambda m, q: 112 + 8 * (m - 16) + 2 * q
    OUTB = [32, 48, 64, 80, 96, 184, 200, 216]
    OUT = lambda oo, t: OUTB[2 * oo + t]
    TF = [8, 12, 16] if o.tdist == 2 else [8, 12, 16, 20]
    NT, TD = len(TF), o.tdist
    TMP = 232
    NOD = 240
    G = lambda t, i: 112 + 16 * t + i
    for _ in range(o.pad_epi):
        A("s_nop 0")
    for k, r in enumerate((E_TW, E_TR, E_WR, E_N2, E_ND)):
        A(f"v_mov_b32 v{1+k}, v{r}")
    A("s_nop 3")
    def pack(m, qs):
        s0 = 112 + 16 * (m - 16)
        return [f"v_cvt_pk_bf16_f32 v{PK(m,q)+h}, v{s0+4*q+2*h}, v{s0+4*q+2*h+1}" for q in qs for h in range(2)]
    def conv(q, nodes, sets=None):
        if not o.stagger:
            out = []
            for m in nodes:
                off = m * 1040 + (q & 1) * 512
                if m < 16:
                    t = TMP + 4 * (m & 1)
                    out += [f"v_accvgpr_read_b32 v{t+i}, a{16*m+4*q+i}" for i in range(4)]
                    out.append(f"v_cvt_pk_bf16_f32 v{t}, v{t}, v{t+1}")
                    out.append(f"v_cvt_pk_bf16_f32 v{t+1}, v{t+2}, v{t+3}")
                    out.append(f"ds_write_b64 v{V_TW}, {vr(t,2)} offset:{off}")
                else:
                    out.append(f"ds_write_b64 v{V_TW}, {vr(PK(m,q),2)} offset:{off}")
            return out
        sets = sets or [TMP, TMP + 4, 24, 28]
        an = [m for m in nodes if m < 16]
        vn = [m for m in nodes if m >= 16]
        out = []
        n = len(an)
        for i in range(n + 2):
            rd = [f"v_accvgpr_read_b32 v{sets[i % len(sets)]+k}, a{16*an[i]+4*q+k}" for k in range(4)] if i < n else []
            cv = []
            if 0 <= i - 1 < n:
                t = sets[(i - 1) % len(sets)]
                cv = [f"v_cvt_pk_bf16_f32 v{t}, v{t}, v{t+1}", f"v_cvt_pk_bf16_f32 v{t+1}, v{t+2}, v{t+3}"]
            wr = []
            if 0 <= i - 2 < n:
                t = sets[(i - 2) % len(sets)]
                wr = [f"ds_write_b64 v{V_TW}, {vr(t,2)} offset:{an[i-2]*1040 + (q & 1)*512}"]
            vw = []
            if vn and i >= n + 2 - len(vn) - 0 or (vn and i % 2 == 1 and False):
                m = vn.pop(0)
                vw = [f"ds_write_b64 v{V_TW}, {vr(PK(m,q),2)} offset:{m*1040 + (q & 1)*512}"]
            out += rd[:2] + wr + cv[:1] + rd[2:] + vw + cv[1:]
        for m in vn:
            out.append(f"ds_write_b64 v{V_TW}, {vr(PK(m,q),2)} offset:{m*1040 + (q & 1)*512}")
        return out
    lds = []
    vm = []; wpos = {}
    def issue(ins):
        if "; W" in ins:
            ins, tag = ins.split(" ; W")
            vm.append(ins)
            wpos[tuple(int(x) for x in tag.split("."))] = len(vm)
        elif ins.startswith("buffer_"):
            vm.append(ins)
        A(ins)
        if ins.startswith("ds_"):
            lds.append(ins)
    late = []
    if o.latepack:
        pend = []
        for m in range(16, 25):
            t = 20 + 2 * ((m - 16) % 6)
            s0 = 112 + 16 * (m - 16)
            A(f"v_cvt_pk_bf16_f32 v{t}, v{s0}, v{s0+1}")
            A(f"v_cvt_pk_bf16_f32 v{t+1}, v{s0+2}, v{s0+3}")
            pend.append(f"ds_write_b64 v{V_TW}, {vr(t,2)} offset:{m*1040}")
            if len(pend) > (2 if o.stagger else 0):
                issue(pend.pop(0))
        for ins in pend:
            issue(ins)
        for m in (23, 24):
            pass
        CT = [24, 28]
    else:
        for m in range(16, 25):
            for ins in pack(m, range(4)):
                A(ins)
        CT = [TMP, TMP + 4]
    def conv0(q, nodes, ct):
        return [x.replace(f"v{TMP}", f"v{TMP}") for x in conv(q, nodes)]
    if o.latepack:
        if o.stagger:
            for ins in conv(0, list(range(16)), [24, 28, 20]):
                issue(ins)
        else:
            for m in range(16):
                t = CT[m & 1]
                for i in range(4):
                    A(f"v_accvgpr_read_b32 v{t+i}, a{16*m+i}")
                A(f"v_cvt_pk_bf16_f32 v{t}, v{t}, v{t+1}")
                A(f"v_cvt_pk_bf16_f32 v{t+1}, v{t+2}, v{t+3}")
                issue(f"ds_write_b64 v{V_TW}, {vr(t,2)} offset:{m*1040}")
        late = [x for m in range(16, 25) for x in pack(m, (1, 2, 3))]
    else:
        for ins in conv(0, list(range(16, 25)) + list(range(16))):
            issue(ins)
    stamp(A, o, 10)
    blocks = [(0, 0, 0, 0), (0, 1, 3, 1), (0, 2, 3, 2), (0, 3, 3, 3),
              (1, 0, 2, 1), (1, 1, 1, 0), (1, 2, 4, 3), (1, 3, 5, 2),
              (2, 2, 1, 0), (2, 0, 2, 2), (3, 3, 1, 0), (2, 3, 4, 1),
              (3, 2, 5, 1), (3, 1, 4, 2), (2, 1, 5, 3), (3, 0, 2, 3)]
    steps = [b + (s,) for b in blocks for s in range(4)]
    hole = lambda h: 16 * (h & 15) + 4 * (h >> 4)
    wbase = {0: 0, 3: 8, 2: 0, 1: 16, 4: 24, 5: 8} if o.whyb else {0: 0, 3: 8, 2: 16, 1: 24, 4: 0, 5: 8}
    def wld(b, f):
        return f"buffer_load_dwordx4 {ar(hole(wbase[b]+f),4)}, v{V_WR}, s[8:11], s{24+2*b+(f>>2)} offen offset:{(f&3)*1024} ; W{b}.{f}"
    if o.whyb:
        for b in (1, 2, 4, 5):
            for h in range(2):
                A(f"s_mov_b32 s{24+2*b+h}, {WFOFF + b*8192 + h*4096}")
    firstq = {q: min(k for k, st in enumerate(steps) if st[0] == q) for q in range(4)}
    lastq = {q: max(k for k, st in enumerate(steps) if st[0] == q) for q in range(4)}
    lasto = {oo: max(k for k, st in enumerate(steps) if st[3] == oo) for oo in range(4)}
    loaded = set(); need = {}
    def read_list(k):
        q, c, b, oo, s = steps[k]
        toff = (q & 1) * 512 + (s >> 1) * 256 + c * 64 + (s & 1) * 32
        r = [f"ds_read_b128 {vr(TF[k % NT],4)}, v{V_TR} offset:{toff}"]
        if (b, s) not in loaded and not (o.whyb and b not in (0, 3)):
            loaded.add((b, s))
            for t in range(2):
                r.append(f"ds_read_b128 {ar(hole(wbase[b]+2*s+t),4)}, v{V_WR} offset:{L_WF + b*8192 + (2*s+t)*1024}")
        return r
    def cost(ins):
        if ins.startswith("ds_write"): return 7
        if ins.startswith(("v_exp", "v_rcp")): return 8
        if ins.startswith("s_"): return 4
        return 5 if ins.startswith(("ds_", "buffer_", "v_cvt")) else 4.5
    post = gate_and_store(o, OUT, G, NOD, TMP)
    nodj = [f"ds_read_b128 {vr(NOD+4*a,4)}, v{V_ND} offset:{L_NODE+32*a}" for a in range(3)]
    nodj += [f"ds_read_b32 v{NOD+12}, v{V_ND} offset:{L_NODE+96}", "s_waitcnt lgkmcnt(0)"]
    nodj += [f"v_add_u32 v{NOD+i}, v{NOD+i}, v{V_N2}" for i in range(13)]
    NG = 128
    jobs = []
    if late:
        jobs.append([0, 2 * 7 + 1, late])
    for q in (1, 2, 3):
        rel = 0 if q == 1 else 2 * (lastq[q - 2] - TD) + 1
        cl = conv(q, list(range(16)) + list(range(16, 25)))
        if o.whyb and q == 1:
            c2 = []
            for ins in cl:
                c2.append(ins)
                if ins.startswith("v_accvgpr_read") and int(ins.split(", a")[1]) % 16 == 7:
                    m = int(ins.split(", a")[1]) // 16
                    c2.append(wld(1 if m < 8 else 4, m & 7))
            cl = c2
        jobs.append([rel, 2 * (firstq[q] - TD) - 1, cl])
    jobs.append([2 * (firstq[3] - TD), 2 * (lasto[0] + 1), nodj])
    if o.whyb:
        for s_ in range(4):
            jobs.append([2 * s_ + 2, 2 * s_ + 9, [wld(2, 2 * s_), wld(2, 2 * s_ + 1)]])
            jobs.append([2 * (12 + s_) + 2, 2 * (12 + s_) + 9, [wld(5, 2 * s_), wld(5, 2 * s_ + 1)]])
    for oo in range(4):
        rel = 2 * (lasto[oo] + 1) + 1
        jobs.append([rel, NG - 1 if oo < 3 else 10**6, post[oo], oo, False])
    rls = [read_list(k) for k in range(64)]
    fixedc = [sum(cost(x) for x in rls[g // 2 + TD]) if (g % 2 == 0 and g // 2 + TD < 64) else (4 if g % 2 else 0) for g in range(NG)]
    for k in range(TD):
        for ins in rls[k]: issue(ins)
        need[k] = len(lds)
    started = set()
    done_at = {}
    waited = [0]
    def emit_gap(g, fixed):
        budget = o.gapmin
        for j in jobs:
            if j[2] and g <= j[1] < NG and j[0] <= g + o.look:
                tot = sum(cost(x) for jj in jobs if jj[1] <= j[1] for x in jj[2]) + sum(fixedc[g:j[1] + 1])
                budget = max(budget, tot / (j[1] - g + 1))
        used = fixed
        for j in sorted(jobs, key=lambda j: (j[1], j[0])):
            if j[0] > g:
                continue
            while j[2] and (used + cost(j[2][0]) / 2 <= budget or j[1] <= g):
                if len(j) > 3 and not j[4]:
                    d = len(A.L) - done_at[j[3]]
                    if d < 12:
                        A(f"s_nop {11 - d}")
                    j[4] = True
                ins = j[2].pop(0)
                if "w" in o.diag and ins.startswith("ds_write") or "v" in o.diag and ins.startswith(("v_acc", "v_cvt")) and len(j) == 3:
                    pass
                elif ins.startswith("s_waitcnt lgkmcnt(0)"):
                    A(ins)
                else:
                    issue(ins)
                used += cost(ins)
            if j[2]:
                break
    for k in range(64):
        q, c, b, oo, s = steps[k]
        cnt = min(15, len(lds) - need[k])
        w = f"s_waitcnt vmcnt(0) lgkmcnt({cnt})" if k == 0 else f"s_waitcnt lgkmcnt({cnt})"
        if o.whyb and b not in (0, 3):
            p_ = max(wpos[(b, 2 * s)], wpos[(b, 2 * s + 1)])
            if p_ > waited[0]:
                waited[0] = p_
                w = f"s_waitcnt vmcnt({len(vm) - p_}) lgkmcnt({cnt})"
        A(w)
        for t in range(2):
            d = vr(OUT(oo, t), 16)
            cc = d if (oo, t) in started else "0"
            started.add((oo, t))
            A(f"v_mfma_f32_32x32x16_bf16 {d}, {vr(TF[k % NT],4)}, {ar(hole(wbase[b]+2*s+t),4)}, {cc}")
            done_at[oo] = len(A.L)
            fixed = 0
            if t == 0 and k + TD < 64:
                rl = rls[k + TD]
                for ins in rl:
                    issue(ins)
                need[k + TD] = len(lds)
                fixed += sum(cost(x) for x in rl)
            if t == 1:
                fixed += 4
            emit_gap(2 * k + t, fixed)
        if k == 47:
            stamp(A, o, 11)
    stamp(A, o, 12)
    A("s_nop 11")
    for j in jobs:
        for ins in j[2]:
            A(ins)

def gate_and_store(o, OUT, G, NOD, TMP):
    res = []
    p = []
    for t in range(2):
        if o.pk:
            for i in range(0, 13, 2):
                p.append(f"v_pk_mul_f32 {vr(G(t,i),2)}, {vr(OUT(0,t)+i,2)}, s[40:41]")
        else:
            for i in range(13):
                p.append(f"v_mul_f32 v{G(t,i)}, 0xbfb8aa3b, v{OUT(0,t)+i}")
        for i in range(13):
            p.append(f"v_exp_f32 v{G(t,i)}, v{G(t,i)}")
        if o.pk:
            for i in range(0, 13, 2):
                p.append(f"v_pk_add_f32 {vr(G(t,i),2)}, {vr(G(t,i),2)}, s[42:43]")
        else:
            for i in range(13):
                p.append(f"v_add_f32 v{G(t,i)}, 1.0, v{G(t,i)}")
        for i in range(13):
            p.append(f"v_rcp_f32 v{G(t,i)}, v{G(t,i)}")
    for i in range(13):
        r = TMP + (i & 7)
        p.append(f"v_cvt_pk_bf16_f32 v{r}, v{OUT(0,0)+i}, v{OUT(0,1)+i}")
        p.append(f"buffer_store_dword v{r}, v{NOD+i}, s[12:15], 0 offen {o.out_store}")
    res.append(p)
    for oo in range(1, 4):
        p = []
        for i in range(13):
            r = TMP + (i & 7)
            if o.pk:
                if i % 2 == 0:
                    p.append(f"v_pk_mul_f32 {vr(OUT(oo,0)+i,2)}, {vr(OUT(oo,0)+i,2)}, {vr(G(0,i),2)}")
                    p.append(f"v_pk_mul_f32 {vr(OUT(oo,1)+i,2)}, {vr(OUT(oo,1)+i,2)}, {vr(G(1,i),2)}")
            else:
                p.append(f"v_mul_f32 v{OUT(oo,0)+i}, v{OUT(oo,0)+i}, v{G(0,i)}")
                p.append(f"v_mul_f32 v{OUT(oo,1)+i}, v{OUT(oo,1)+i}, v{G(1,i)}")
            p.append(f"v_cvt_pk_bf16_f32 v{r}, v{OUT(oo,0)+i}, v{OUT(oo,1)+i}")
            pol = o.last_store if (oo == 3 and o.last_store is not None) else o.out_store
            p.append(f"buffer_store_dword v{r}, v{NOD+i}, s[12:15], 0 offen offset:{128*oo} {pol}")
        res.append(p)
    return res

def descriptor(name, vg, sg):
    accum = min(256, (vg + 3) // 4 * 4)
    return f""".amdhsa_kernel {name}
  .amdhsa_next_free_vgpr {vg}
  .amdhsa_next_free_sgpr {sg}
  .amdhsa_accum_offset {accum}
  .amdhsa_group_segment_fixed_size 0
  .amdhsa_kernarg_size 96
  .amdhsa_user_sgpr_count 2
  .amdhsa_user_sgpr_kernarg_segment_ptr 1
  .amdhsa_system_sgpr_workgroup_id_x 1
  .amdhsa_float_denorm_mode_32 3
.end_amdhsa_kernel"""

HEADER = """; Equiformer-style tensor-product message passing (gather, tensor product, scatter-sum, gate), two launches.
; is accumulated first and the two weight matrices (scaled by w_rad) are applied once per node.
;                go straight into a 32x32x16 MFMA; node-level GEMMs, sigmoid gate and bf16 stores at the end.
"""

def build(o):
    a1, v1, s1 = k1b(o) if o.k1q > 1 else k1(o)
    k1blk = K1_BLOCK if o.k1q == 1 else 448
    a2, v2, s2 = k2(o)
    n1, n2 = "sort_kernel", "main_kernel"
    t = HEADER
    t += "; @launch kernel=empty_kernel grid=(256,1,1) block=(64,1,1) lds=0\n" * o.extra_pre
    t += f"; @launch kernel={n1} grid=(256,1,1) block=({k1blk},1,1) lds={K1_LDS if o.k1q == 1 else K1_STG + CH * 12}\n"
    t += f"; @launch kernel={n2} grid=(256,1,1) block=(256,1,1) lds={K2_LDS}\n"
    t += "; @launch kernel=empty_kernel grid=(256,1,1) block=(64,1,1) lds=0\n" * o.extra_post
    extra = o.extra_pre + o.extra_post
    t += '.amdgcn_target "amdgcn-amd-amdhsa--gfx950"\n.text\n'
    for n, a in ((n1, a1), (n2, a2)):
        t += f".globl {n}\n.p2align 8\n.type {n},@function\n{n}:\n{a.text()}\n"
    if extra:
        t += ".globl empty_kernel\n.p2align 8\n.type empty_kernel,@function\nempty_kernel:\n    s_endpgm\n"
    t += '.section .rodata,"a"\n.p2align 6\n' + descriptor(n1, v1, s1) + "\n.p2align 6\n" + descriptor(n2, v2, s2) + "\n"
    if extra:
        t += ".p2align 6\n" + descriptor("empty_kernel", 8, 16) + "\n"
    return t, a1, a2

if __name__ == "__main__":
    o = Opt()
    t, a1, a2 = build(o)
    out = sys.argv[1] if len(sys.argv) > 1 else f"cdna_kernels/{NAME}.s"
    open(out, "w").write(t)
    print("wrote", out, len(a1.L), len(a2.L))
```

```python
import numpy as np
from gen import *
from emu import bf16_rne, f32
def bf(x): return bf16_rne(np.asarray(x,dtype=np.float32)).astype(np.uint16)
def unbf(u): return (np.asarray(u).astype(np.uint32)<<16).view(np.float32)
def make_inputs(seed, dist="uniform"):
    rng=np.random.default_rng(seed)
    d={}
    d['x']=bf(rng.standard_normal((N,256))*0.4)
    r=rng.standard_normal((E,3)); r/=np.linalg.norm(r,axis=1,keepdims=True)
    d['rhat']=bf(r); d['e_attr']=bf(rng.standard_normal((E,1))*0.4)
    src=rng.integers(0,N,E); dst=rng.integers(0,N,E)
    if dist=="hub":
        dst[:60]=5
        dst[dst//98==7]=9
    if dist=="deg":
        dst[np.arange(0,E,3200)[:120]+17]=1234
    if dist=="seg33":
        e0=5*3200
        dst[e0:e0+30]=np.arange(100,130)
    if dist=="empty":
        m=(dst>=98)&(dst<196); dst[m]=rng.integers(300,20000,m.sum())
        m=(dst==0); dst[m]=50
    if dist=="onenode": dst[:]=12345
    if dist=="sorted": dst=np.sort(dst)
    if dist=="lastnode": dst[::7]=N-1; src[::5]=N-1; src[1::11]=0
    if dist=="fewsrc": src=rng.integers(0,3,E)
    if dist=="skew": dst=np.minimum((rng.pareto(1.2,E)*300).astype(np.int64),N-1)
    d['src']=src.astype(np.int32); d['dst']=dst.astype(np.int32)
    d['w_rad']=bf(rng.standard_normal((1,320))*0.4)
    d['w_si0']=bf(rng.standard_normal((128,64))*0.4); d['w_si1']=bf(rng.standard_normal((192,64))*0.05)
    eps=np.zeros((3,3,3)); eps[0,1,2]=eps[1,2,0]=eps[2,0,1]=1; eps[0,2,1]=eps[2,1,0]=eps[1,0,2]=-1
    d['cg_eps']=bf(eps)
    return d
def k1_model(d, seed=0, soa=False, nbk=16, rot=True):
    ws=np.random.default_rng(seed).integers(0,256,WS_USED,dtype=np.uint8)
    src=d['src'].astype(np.int64); dst=d['dst'].astype(np.int64)
    b=(dst*43980466)>>32
    node=dst-((b*3125+31)>>5)
    prod=src*171776
    if rot: prod=(prod-((b>>5)<<29))&0xffffffff
    key=((src|(node<<20)|(prod&0xc0000000)|((prod>>10)&0xc0000)) if nbk==16 else (src|(node<<19)|(prod&0xc0000000)|((prod>>11)&0x40000))).astype(np.uint32)
    a=unbf(d['e_attr'][:,0]); Y=unbf(d['rhat'])
    c=[d['e_attr'][:,0].astype(np.uint32)]+[bf(a*Y[:,j]).astype(np.uint32) for j in range(3)]
    rec=np.stack([c[0]|(c[1]<<16),c[2]|(c[3]<<16),key],axis=1).astype(np.uint32)
    chunk=np.arange(E)//CH
    order=np.lexsort((b,chunk))
    rs=rec[order]
    if soa:
        ws[:COFOFF]=np.ascontiguousarray(rs[:,2]).view(np.uint8); ws[COFOFF:REC_TOTAL]=np.ascontiguousarray(rs[:,:2]).view(np.uint8).reshape(-1)
    else:
        ws[:REC_TOTAL]=rs.view(np.uint8).reshape(-1)
    cnt=np.zeros((256,256),dtype=np.int64)
    np.add.at(cnt,(chunk,b),1)
    start=np.cumsum(cnt,axis=1)-cnt
    tab=(start|(cnt<<16)).T.astype(np.uint32)
    ws[TABOFF:TABOFF+262144]=np.ascontiguousarray(tab).view(np.uint8).reshape(-1)
    wr=unbf(d['w_rad']).reshape(5,64); W0=unbf(d['w_si0']); W1=unbf(d['w_si1'])
    blocks=[wr[0][:,None]*W0[:64],wr[1][:,None]*W0[64:],wr[2][:,None]*W1[:64],wr[3][:,None]*W1[64:128],wr[4][:,None]*W1[128:],-(wr[4][:,None]*W1[128:])]
    WF=np.zeros((6,8,64,8),dtype=np.uint16)
    l=np.arange(64); n=l&31; kg=l>>5
    for bi,Wb in enumerate(blocks):
        for f in range(8):
            s,t=f>>1,f&1; hh=s>>1; u=(s&1)*2+kg
            for ii in range(8):
                ch=(2*u+(ii>>2))*8+4*hh+(ii&3)
                WF[bi,f,:,ii]=bf(Wb[ch,2*n+t])
    ws[WFOFF:WFOFF+49152]=WF.view(np.uint8).reshape(-1)
    return ws
def reference_nodes(d, nodes):
    x=unbf(d['x']).astype(np.float64); Y=unbf(d['rhat']).astype(np.float64); a=unbf(d['e_attr'])[:,0].astype(np.float64)
    wr=unbf(d['w_rad']).reshape(5,64).astype(np.float64); W0=unbf(d['w_si0']).astype(np.float64); W1=unbf(d['w_si1']).astype(np.float64)
    lo,hi=nodes[0],nodes[-1]+1
    m=(d['dst']>=lo)&(d['dst']<hi)
    s=d['src'][m]; t=d['dst'][m]-lo
    f0=x[s,:64]; f1=x[s,64:].reshape(-1,3,64); Ye=Y[m]; ae=a[m]
    R=ae[:,None,None]*wr[None]
    p00=f0*R[:,0]; p110=np.einsum('ejc,ej->ec',f1,Ye)*R[:,1]
    p01=f0[:,None,:]*Ye[:,:,None]*R[:,2][:,None]; p10=f1*R[:,3][:,None]
    eps=unbf(d['cg_eps']).astype(np.float64)
    p111=np.einsum('ijk,ekc,ej->eic',eps,f1,Ye)*R[:,4][:,None]
    m0=np.concatenate([p00,p110],-1)@W0; m1=np.concatenate([p01,p10,p111],-1)@W1
    agg0=np.zeros((hi-lo,64)); agg1=np.zeros((hi-lo,3,64))
    np.add.at(agg0,t,m0); np.add.at(agg1,t,m1)
    g=1/(1+np.exp(-agg0))
    return np.concatenate([agg0,(agg1*g[:,None,:]).reshape(-1,192)],-1)
```

```python
import sys, time
import numpy as np
import gen, emu, model
from gen import *
def setup(d, ws):
    mem=emu.Mem(); ptrs=[]
    for k in ['x','rhat','e_attr','src','dst','w_rad','w_si0','w_si1','cg_eps']:
        ptrs.append(mem.add(k,d[k]))
    out=np.full((N,256),0x7fc1,dtype=np.uint16)
    ptrs.append(mem.add('out',out,True)); dbg=np.zeros(64,dtype=np.uint32); ptrs.append(mem.add('dbg',dbg,True))
    ptrs.append(mem.add('ws',ws,True))
    ka=[]
    for p in ptrs: ka+= [p&0xffffffff,p>>32]
    return mem,ka,out
def test_k1(o,d,wgs):
    t,a1,a2=build(o); prog,labels=emu.parse(a1.L)
    ref=model.k1_model(d,soa=o.soa,nbk=o.nbk,rot=o.rot)
    ws=np.random.default_rng(5).integers(0,256,WS_USED,dtype=np.uint8)
    mem,ka,out=setup(d,ws)
    for wg in wgs:
        g=emu.run_wg(prog,labels,mem,ka,wg,K1_BLOCK if o.k1q==1 else 448,K1_LDS if o.k1q==1 else K1_STG+CH*12,72 if o.k1q==1 else 112,72)
        if wg>=256: continue
        c=(wg&7)*32+(wg>>3)
        tab=ws[TABOFF:TABOFF+262144].view(np.uint32).reshape(256,256)[:,c]; rtab=ref[TABOFF:TABOFF+262144].view(np.uint32).reshape(256,256)[:,c]
        assert np.array_equal(tab,rtab),("tab",wg)
        if c<250:
            def recs(w):
                if not o.soa: return w[c*CHB:(c+1)*CHB].view(np.uint32).reshape(-1,3)
                return np.concatenate([w[COFOFF+c*CH*8:COFOFF+(c+1)*CH*8].view(np.uint32).reshape(-1,2), w[c*CH*4:(c+1)*CH*4].view(np.uint32).reshape(-1,1)],axis=1)
            r=recs(ws); rr=recs(ref)
            for b in range(256):
                s,n=tab[b]&0xffff,tab[b]>>16
                x=sorted(map(tuple,r[s:s+n])); y=sorted(map(tuple,rr[s:s+n]))
                assert x==y,("rec",wg,b)
        else:
            bi=c-250
            assert np.array_equal(ws[WFOFF+bi*8192:WFOFF+(bi+1)*8192],ref[WFOFF+bi*8192:WFOFF+(bi+1)*8192]),("wf",bi)
        print("k1 wg",wg,"ok",g.waves[0].steps,flush=True)
def test_k2(o,d,bins,**kw):
    t,a1,a2=build(o); prog,labels=emu.parse(a2.L)
    ws=model.k1_model(d,soa=o.soa,nbk=o.nbk,rot=o.rot)
    mem,ka,out=setup(d,ws)
    for b in bins:
        wg=(b&31)*8+(b>>5) if b<256 else b
        t0=time.time()
        before=out.copy()
        g=emu.run_wg(prog,labels,mem,ka,wg,256,K2_LDS,512,102,race_ignore=[(L_FLAG,L_FLAG+4)],**kw)
        if b>=256:
            assert np.array_equal(before,out); continue
        lo=(b*3125+31)>>5; hi=((b+1)*3125+31)>>5
        ref=model.reference_nodes(d,np.arange(lo,hi))
        got=model.unbf(out[lo:hi]).astype(np.float64)
        ch=np.nonzero((before!=out).any(axis=1))[0]
        assert ch.min()>=lo and ch.max()<hi
        err=np.abs(got-ref)
        w=g.waves[1]
        print(f"k2 bin {b}: err0 {np.nanmax(err[:,:64]):.4f} err1 {np.nanmax(err[:,64:]):.5f} nan {np.isnan(got).sum()} absmax {np.abs(ref[:,:64]).max():.2f} steps {[x.steps for x in g.waves]} mfma {[x.count['v_mfma_f32_32x32x16_bf16'] for x in g.waves]} t {time.time()-t0:.1f}s",flush=True)
if __name__=="__main__":
    o=Opt()
    for a in sys.argv[1:]:
        if "=" in a:
            k_,v_=a.split("="); setattr(o,k_,eval(v_))
    d=model.make_inputs(0)
    if "k1" in sys.argv: test_k1(o,d,[0,9,255,215,223,231,239,247,256])
    if "k2" in sys.argv: test_k2(o,d,[0,77,255,260])
```
